```python
import torch

def _softmax(x, axis=-1):
    return torch.softmax(x, dim=axis)
def _gelu(x):
    return torch.nn.functional.gelu(x, approximate="tanh")
def _silu(x):
    return torch.nn.functional.silu(x)
def _sigmoid(x):
    return torch.sigmoid(x)
def _layernorm(x, axis=-1, eps=1e-5):
    m = x.mean(dim=axis, keepdim=True)
    v = x.var(dim=axis, keepdim=True, unbiased=False)
    return (x - m) / torch.sqrt(v + eps)
def _scatter_add(tgt, idx, src, axis=0):
    return tgt.clone().index_add_(axis, idx, src)
def _segment_sum(src, seg, n):
    out = torch.zeros((n,) + src.shape[1:], dtype=src.dtype)
    return out.index_add_(0, seg, src)
def _pad(x, pw):
    flat = tuple(v for pair in reversed(pw) for v in pair)
    return torch.nn.functional.pad(x, flat)

kernel_name = 'sequential_preLN__gqa_block_cached__mixer_token_mlp__decode'

def setup_inputs():

    _w = (lambda a: (lambda t: t.to(torch.bfloat16) if t.is_floating_point() else t)(torch.as_tensor(a)))
    def _A_setup():
        B, Sq, D = 8, 1, 448
        Hq, Hkv, Sk, Dh = 16, 8, 8192, 256
        assert Hq % Hkv == 0, (Hq, Hkv)
        return {
            "x": _w((lambda *s: torch.randn(*s, dtype=torch.bfloat16) * 0.05)(B, Sq, D)),
            "k_cache": _w((lambda *s: torch.randn(*s, dtype=torch.bfloat16) * 1.6)(B, Hkv, Sk, Dh)),
            "v_cache": _w((lambda *s: torch.randn(*s, dtype=torch.bfloat16) * 0.8)(B, Hkv, Sk, Dh)),
            "wq": _w((lambda *s: torch.randn(*s, dtype=torch.bfloat16) * 1.6)(D, Hq * Dh) * (D ** -0.5)),
            "wo": _w((lambda *s: torch.randn(*s, dtype=torch.bfloat16) * 0.8)(Hq * Dh, D) * ((Hq * Dh) ** -0.5)),
        }
    _A_in = _A_setup()

    def _B_setup():
        B, S, D, F = 8, 1, 448, 1792
        return {
            "x": _w((lambda *s: torch.randn(*s, dtype=torch.bfloat16) * 0.05)(B, S, D)),
            "w1": _w((lambda *s: torch.randn(*s, dtype=torch.bfloat16) * 0.4)(S, F) * (S ** -0.5)),
            "b1": _w((lambda *s: torch.randn(*s, dtype=torch.bfloat16) * 0.4)(F) * 0.02),
            "w2": _w((lambda *s: torch.randn(*s, dtype=torch.bfloat16) * 0.4)(F, S) * (F ** -0.5)),
            "b2": _w((lambda *s: torch.randn(*s, dtype=torch.bfloat16) * 0.4)(S) * 0.02),
        }
    _B_in = _B_setup()

    return {
        "A_x": _A_in["x"],
        "A_k_cache": _A_in["k_cache"],
        "A_v_cache": _A_in["v_cache"],
        "A_wq": _A_in["wq"],
        "A_wo": _A_in["wo"],
        "B_x": _B_in["x"],
        "B_w1": _B_in["w1"],
        "B_b1": _B_in["b1"],
        "B_w2": _B_in["w2"],
        "B_b2": _B_in["b2"],
    }

def reference(A_x, A_k_cache, A_v_cache, A_wq, A_wo, B_x, B_w1, B_b1, B_w2, B_b2):
    def _A_ref(x, k_cache, v_cache, wq, wo):
        B, Sq, D = x.shape
        Hq, Dh = 16, 256
        Hkv = k_cache.shape[1]
        rep = Hq // Hkv
        q = (lambda x, *d: x.permute(*d))((x @ wq).reshape(B, Sq, Hq, Dh), 0, 2, 1, 3)
        k = (lambda x, n, axis: torch.repeat_interleave(x, n, dim=axis))(k_cache, rep, axis=1)
        v = (lambda x, n, axis: torch.repeat_interleave(x, n, dim=axis))(v_cache, rep, axis=1)
        scores = torch.einsum("bhqd,bhkd->bhqk", q, k) * (Dh ** -0.5)
        p = _softmax(scores, axis=-1)
        o = torch.einsum("bhqk,bhkd->bhqd", p, v)
        return (lambda x, *d: x.permute(*d))(o, 0, 2, 1, 3).reshape(B, Sq, Hq * Dh) @ wo

    def _B_ref(x, w1, b1, w2, b2):
        B, S, D = x.shape
        h = _layernorm(x, axis=-1)
        u = torch.einsum("bsd,sf->bdf", h, w1) + b1
        u = _gelu(u)
        y = torch.einsum("bdf,fs->bds", u, w2) + b2
        return (lambda x, *d: x.permute(*d))(y, 0, 2, 1)

    x = A_x
    h = x + _A_ref(_layernorm(x, axis=-1), A_k_cache, A_v_cache, A_wq, A_wo)
    h2 = h + _B_ref(_layernorm(h, axis=-1), B_w1, B_b1, B_w2, B_b2)
    return h2
```

```python
import sys, math, struct

NAME = "sequential_preLN__gqa_block_cached__mixer_token_mlp__decode"
OUT = "cdna_kernels/%s.s" % NAME

def f2u(x):
    return struct.unpack("<I", struct.pack("<f", x))[0]

class Asm:
    def __init__(self):
        self.lines = []
    def __call__(self, s):
        import re
        for l in s.strip("\n").split("\n"):
            l = l.strip()
            m = re.search(r"offset:(\d+)", l)
            if m and l.startswith("buffer_"):
                assert int(m.group(1)) < 4096, l
            if m and l.startswith("ds_"):
                assert int(m.group(1)) < 65536, l
            self.lines.append("    " + l)
    def label(self, l):
        self.lines.append(l + ":")
    def raw(self, s):
        self.lines.append(s)
    def text(self):
        return "\n".join(self.lines) + "\n"

WS_Q = 0
WS_OP = 0x10000
WS_ML = 0x90000
WS_P2 = 0xA0000
WS_BYTES = 0x100000

LOG2E = 1.4426950408889634
SCALE_C = 0.0625 * LOG2E

def prologue(a, nwg, done_label):
    a(f"s_cmp_ge_u32 s2, {nwg}")
    a(f"s_cbranch_scc1 {done_label}")
    a("s_load_dwordx16 s[16:31], s[0:1], 0")
    a("s_load_dwordx8 s[32:39], s[0:1], 64")
    a("s_load_dwordx2 s[40:41], s[0:1], 96")

def srd(a, d, base, nbytes):
    a(f"s_mov_b32 s{d}, s{base}")
    a(f"s_and_b32 s{d+1}, s{base+1}, 0xffff")
    a(f"s_mov_b32 s{d+2}, {nbytes}")
    a(f"s_mov_b32 s{d+3}, 0x00020000")

def wave_reduce(a, op, v, t):
    for ctl in ["quad_perm:[1,0,3,2]", "quad_perm:[2,3,0,1]", "row_half_mirror", "row_mirror"]:
        a("s_nop 1")
        a(f"{op}_dpp v{v}, v{v}, v{v} {ctl} row_mask:0xf bank_mask:0xf")
    a(f"v_mov_b32 v{t}, v{v}")
    a("s_nop 1")
    a(f"v_permlane16_swap_b32 v{v}, v{t}")
    a("s_nop 1")
    a(f"{op} v{v}, v{v}, v{t}")
    a(f"v_mov_b32 v{t}, v{v}")
    a("s_nop 1")
    a(f"v_permlane32_swap_b32 v{v}, v{t}")
    a("s_nop 1")
    a(f"{op} v{v}, v{v}, v{t}")

def group_reduce(a, op, v, t):
    a(f"v_mov_b32 v{t}, v{v}")
    a("s_nop 1")
    a(f"v_permlane16_swap_b32 v{v}, v{t}")
    a("s_nop 1")
    a(f"{op} v{v}, v{v}, v{t}")
    a(f"v_mov_b32 v{t}, v{v}")
    a("s_nop 1")
    a(f"v_permlane32_swap_b32 v{v}, v{t}")
    a("s_nop 1")
    a(f"{op} v{v}, v{v}, v{t}")

def bf16r(a, v, t=None):
    a(f"v_cvt_pk_bf16_f32 v{v}, v{v}, v{v}")
    a(f"v_and_b32 v{v}, 0xffff0000, v{v}")

def unpack8(a, src, dst):
    for i in range(4):
        a(f"v_lshlrev_b32 v{dst+2*i}, 16, v{src+i}")
        a(f"v_and_b32 v{dst+2*i+1}, 0xffff0000, v{src+i}")

def layernorm8(a, x, t0, t1, t2, smask, rnd_out=True):
    a(f"v_add_f32 v{t0}, v{x}, v{x+1}")
    for i in range(2, 8):
        a(f"v_add_f32 v{t0}, v{t0}, v{x+i}")
    wave_reduce(a, "v_add_f32", t0, t1)
    a(f"v_mul_f32 v{t0}, {hex(f2u(1.0/448))}, v{t0}")
    a(f"v_sub_f32 v{t2}, v{x}, v{t0}")
    a(f"v_mul_f32 v{t1}, v{t2}, v{t2}")
    for i in range(1, 8):
        a(f"v_sub_f32 v{t2}, v{x+i}, v{t0}")
        a(f"v_fmac_f32 v{t1}, v{t2}, v{t2}")
    a(f"v_cndmask_b32 v{t1}, 0, v{t1}, s[{smask}:{smask+1}]")
    wave_reduce(a, "v_add_f32", t1, t2)
    a(f"v_mul_f32 v{t1}, {hex(f2u(1.0/448))}, v{t1}")
    bf16r(a, t1)
    a(f"v_add_f32 v{t1}, {hex(f2u(1e-5))}, v{t1}")
    bf16r(a, t1)
    a(f"v_sqrt_f32 v{t1}, v{t1}")
    a("s_nop 0")
    bf16r(a, t1)
    a(f"v_rcp_f32 v{t1}, v{t1}")
    bf16r(a, t0)
    for i in range(8):
        a(f"v_sub_f32 v{x+i}, v{x+i}, v{t0}")
        bf16r(a, x+i)
        a(f"v_mul_f32 v{x+i}, v{x+i}, v{t1}")
        bf16r(a, x+i)

def pack8(a, x, dst):
    for i in range(4):
        a(f"v_cvt_pk_bf16_f32 v{dst+i}, v{x+2*i}, v{x+2*i+1}")

def kd(a, name, vgpr, sgpr=102):
    a.raw(".section .rodata,\"a\"")
    a.raw(".p2align 6")
    a.raw(f".amdhsa_kernel {name}")
    a.raw(f"  .amdhsa_next_free_vgpr {vgpr}")
    a.raw(f"  .amdhsa_next_free_sgpr {sgpr}")
    a.raw(f"  .amdhsa_accum_offset {((vgpr+3)//4)*4}")
    a.raw("  .amdhsa_group_segment_fixed_size 0")
    a.raw("  .amdhsa_kernarg_size 104")
    a.raw("  .amdhsa_user_sgpr_count 2")
    a.raw("  .amdhsa_user_sgpr_kernarg_segment_ptr 1")
    a.raw("  .amdhsa_system_sgpr_workgroup_id_x 1")
    a.raw(".end_amdhsa_kernel")

def kstart(a, name):
    a.raw(".text")
    a.raw(f".globl {name}")
    a.raw(".p2align 8")
    a.raw(f".type {name},@function")
    a.label(name)

def gen_qproj(a, name):
    kstart(a, name)
    prologue(a, 256, name + "_done")
    a("v_lshrrev_b32 v1, 6, v0")
    a("v_and_b32 v2, 63, v0")
    a("s_nop 0")
    a("v_readfirstlane_b32 s3, v1")
    a("s_waitcnt lgkmcnt(0)")
    srd(a, 44, 16, 7168)
    srd(a, 48, 22, 448*4096*2)
    srd(a, 52, 40, WS_BYTES)
    a("v_cmp_gt_u32 s[56:57], 56, v2")
    a("v_lshlrev_b32 v3, 4, v2")
    a("v_mov_b32 v4, 0x7fff0000")
    a("s_nop 0")
    a("v_cndmask_b32 v3, v4, v3, s[56:57]")
    a("s_mul_i32 s4, s3, 1792")
    a("buffer_load_dwordx4 v[8:11], v3, s[44:47], s4 offen")
    a("buffer_load_dwordx4 v[12:15], v3, s[44:47], s4 offen offset:896")
    a("v_lshrrev_b32 v5, 1, v2")
    a("v_lshlrev_b32 v5, 13, v5")
    a("v_and_b32 v6, 1, v2")
    a("v_lshl_add_u32 v5, v6, 4, v5")
    a("s_lshl_b32 s5, s2, 5")
    a("s_lshl_b32 s6, s3, 18")
    a("s_add_u32 s5, s5, s6")
    a("s_lshl_b32 s7, s3, 10")
    for i in range(4):
        if i == 3:
            a("s_cmp_ge_u32 s3, 2")
            a(f"s_cbranch_scc1 {name}_nodma")
        a("s_mov_b32 m0, s7")
        a("s_nop 0")
        a("buffer_load_dwordx4 v5, s[48:51], s5 offen lds")
        a("s_add_u32 s5, s5, 0x100000")
        a("s_add_u32 s7, s7, 4096")
    a.label(name + "_nodma")
    a("s_waitcnt vmcnt(3)")
    a("s_waitcnt vmcnt(0)")
    unpack8(a, 8, 16)
    unpack8(a, 12, 24)
    layernorm8(a, 16, 32, 33, 34, 56)
    layernorm8(a, 24, 32, 33, 34, 56)
    pack8(a, 16, 8)
    pack8(a, 24, 12)
    a("v_lshlrev_b32 v3, 4, v2")
    a("s_add_u32 s4, s4, 14336")
    a("v_add_u32 v3, s4, v3")
    a("s_mov_b64 s[58:59], exec")
    a("s_mov_b64 exec, s[56:57]")
    a("ds_write_b128 v3, v[8:11]")
    a("ds_write_b128 v3, v[12:15] offset:896")
    a("s_mov_b64 exec, s[58:59]")
    a("s_waitcnt vmcnt(0) lgkmcnt(0)")
    a("s_barrier")
    a("s_cmp_lg_u32 s3, 0")
    a(f"s_cbranch_scc1 {name}_done")
    a("v_lshrrev_b32 v3, 4, v2")
    a("v_bfe_u32 v4, v2, 2, 2")
    a("v_lshl_add_u32 v4, v3, 3, v4")
    a("v_lshlrev_b32 v4, 5, v4")
    a("v_and_b32 v5, 3, v2")
    a("v_lshl_add_u32 v4, v5, 3, v4")
    a("v_and_b32 v5, 7, v2")
    a("v_mul_u32_u24 v5, 896, v5")
    a("v_lshl_add_u32 v5, v3, 4, v5")
    for j in range(14):
        a(f"ds_read_b64_tr_b16 v[{40+4*j}:{41+4*j}], v4 offset:{j*1024}")
        a(f"ds_read_b64_tr_b16 v[{42+4*j}:{43+4*j}], v4 offset:{j*1024+128}")
        a(f"ds_read_b128 v[{100+4*j}:{103+4*j}], v5 offset:{14336+j*64}")
    a("s_waitcnt lgkmcnt(0)")
    for j in range(14):
        c = "0" if j == 0 else "v[32:35]"
        a(f"v_mfma_f32_16x16x32_bf16 v[32:35], v[{40+4*j}:{43+4*j}], v[{100+4*j}:{103+4*j}], {c}")
    a("s_nop 7")
    a("s_nop 3")
    a("v_cvt_pk_bf16_f32 v36, v32, v33")
    a("v_cvt_pk_bf16_f32 v37, v34, v35")
    a("v_and_b32 v5, 15, v2")
    a("v_cmp_gt_u32 vcc, 8, v5")
    a("v_lshlrev_b32 v5, 13, v5")
    a("v_lshl_add_u32 v5, v3, 3, v5")
    a("s_lshl_b32 s5, s2, 5")
    a("s_and_b64 exec, exec, vcc")
    a(f"buffer_store_dwordx2 v[36:37], v5, s[52:55], s5 offen offset:{WS_Q}")
    a.label(name + "_done")
    a("s_endpgm")
    kd(a, name, 160)

NT = " nt"
def gen_attn(a, name):
    kstart(a, name)
    prologue(a, 256, name + "_done")
    QF = 16
    OA = 64
    KF = 128
    VF = 160
    KOFF = 192
    VOFF = 200
    KRA = 208
    VRA = 212
    SA = 220
    PB = 224
    M = 226; L = 227; AL = 228; T0 = 229; T1 = 230; T2 = 231; T3 = 232; T4=233; T5=234
    a("v_lshrrev_b32 v1, 6, v0")
    a("v_and_b32 v2, 63, v0")
    a("s_nop 0")
    a("v_readfirstlane_b32 s3, v1")
    a("v_lshrrev_b32 v3, 5, v2")
    a("v_and_b32 v4, 31, v2")
    for p in range(8):
        a(f"v_add_u32 v5, {2*p}, v3")
        a("v_xor_b32 v6, v4, v5")
        a("v_lshlrev_b32 v6, 4, v6")
        a(f"v_lshl_add_u32 v{KOFF+p}, v3, 9, v6")
        a("v_and_b32 v5, 7, v5")
        a("v_lshlrev_b32 v5, 1, v5")
        a("v_xor_b32 v6, v4, v5")
        a("v_lshlrev_b32 v6, 4, v6")
        a(f"v_lshl_add_u32 v{VOFF+p}, v3, 9, v6")
    a("s_lshl_b32 s8, s3, 15")
    a("v_and_b32 v3, 15, v2")
    a("v_lshrrev_b32 v4, 4, v2")
    for jj in range(4):
        a(f"v_add_u32 v5, {4*jj}, v4")
        a("v_xor_b32 v5, v5, v3")
        a("v_lshlrev_b32 v5, 4, v5")
        a(f"v_lshl_add_u32 v5, v3, 9, v5")
        a(f"v_add_u32 v{KRA+jj}, s8, v5")
    a("v_bfe_u32 v5, v2, 2, 2")
    a("v_lshl_add_u32 v5, v4, 2, v5")
    a("v_and_b32 v6, 7, v5")
    a("v_and_b32 v7, 3, v2")
    a("v_lshlrev_b32 v7, 3, v7")
    a("v_lshl_add_u32 v7, v5, 9, v7")
    a("v_add_u32 v7, s8, v7")
    for n in range(8):
        a(f"v_xor_b32 v8, {n}, v6")
        a(f"v_lshl_add_u32 v{VRA+n}, v8, 5, v7")
    a("s_waitcnt lgkmcnt(0)")
    srd(a, 44, 18, 0x10000000)
    srd(a, 48, 20, 0x10000000)
    srd(a, 52, 40, WS_BYTES)
    a("s_lshr_b32 s4, s2, 2")
    a("s_and_b32 s5, s2, 3")
    a("s_lshl_b32 s9, s4, 22")
    a("s_lshl_b32 s6, s5, 20")
    a("s_add_u32 s9, s9, s6")
    a("s_lshl_b32 s6, s3, 18")
    a("s_add_u32 s9, s9, s6")
    a("s_mov_b32 s10, s9")

    def issue(kind, slot):
        srd_ = "s[44:47]" if kind == "K" else "s[48:51]"
        so = "s9" if kind == "K" else "s10"
        off = KOFF if kind == "K" else VOFF
        a(f"s_add_u32 s11, s8, {slot*8192}")
        a("s_mov_b32 m0, s11")
        a(f"s_add_u32 s12, {so}, 4096")
        for p in range(4):
            a(f"buffer_load_dwordx4 v{off+p}, {srd_}, {so} offen offset:{p*1024}{NT} lds")
        a(f"s_add_u32 s11, s8, {slot*8192+4096}")
        a("s_mov_b32 m0, s11")
        a(f"s_add_u32 {so}, {so}, 8192")
        for p in range(4):
            a(f"buffer_load_dwordx4 v{off+4+p}, {srd_}, s12 offen offset:{p*1024}{NT} lds")

    issue("K", 0); issue("V", 1); issue("K", 2); issue("V", 3)
    a("v_cmp_gt_u32 vcc, 2, v3")
    a("v_lshlrev_b32 v5, 9, v3")
    a("v_lshl_add_u32 v5, v4, 4, v5")
    a("v_mov_b32 v6, 0x7fff0000")
    a("v_cndmask_b32 v5, v6, v5, vcc")
    a("s_lshl_b32 s6, s4, 10")
    for j in range(8):
        a(f"buffer_load_dwordx4 v[{QF+4*j}:{QF+4*j+3}], v5, s[52:55], s6 offen offset:{WS_Q + j*64}")
    for i in range(64):
        a(f"v_mov_b32 v{OA+i}, 0")
    a(f"v_mov_b32 v{M}, 0xf149f2ca")
    a(f"v_mov_b32 v{L}, 0")
    a(f"s_mov_b32 s14, {hex(f2u(SCALE_C))}")
    a("s_waitcnt vmcnt(0)")

    def step(kslot, vslot, do_issue, wk, wv, tag):
        a(f"s_waitcnt vmcnt({wk})")
        for j in range(8):
            a(f"ds_read_b128 v[{KF+4*j}:{KF+4*j+3}], v{KRA+(j&3)} offset:{kslot*8192 + (j>>2)*256}")
        for j in range(8):
            a(f"s_waitcnt lgkmcnt({7-j})")
            c = "0" if j == 0 else f"v[{SA}:{SA+3}]"
            a(f"v_mfma_f32_16x16x32_bf16 v[{SA}:{SA+3}], v[{KF+4*j}:{KF+4*j+3}], v[{QF+4*j}:{QF+4*j+3}], {c}")
        if do_issue:
            issue("K", kslot)
        else:
            a("s_nop 7")
            a("s_nop 1")
        a(f"v_cvt_pk_bf16_f32 v{T0}, v{SA}, v{SA+1}")
        a(f"v_cvt_pk_bf16_f32 v{T1}, v{SA+2}, v{SA+3}")
        a(f"v_lshlrev_b32 v{SA}, 16, v{T0}")
        a(f"v_and_b32 v{SA+1}, 0xffff0000, v{T0}")
        a(f"v_lshlrev_b32 v{SA+2}, 16, v{T1}")
        a(f"v_and_b32 v{SA+3}, 0xffff0000, v{T1}")
        a(f"v_max3_f32 v{T0}, v{SA}, v{SA+1}, v{SA+2}")
        a(f"v_max_f32 v{T0}, v{T0}, v{SA+3}")
        group_reduce(a, "v_max_f32", T0, T1)
        a(f"v_mul_f32 v{T0}, s14, v{T0}")
        a(f"v_max_f32 v{T0}, v{T0}, v{M}")
        a(f"v_sub_f32 v{AL}, v{M}, v{T0}")
        a(f"v_exp_f32 v{AL}, v{AL}")
        a(f"v_mov_b32 v{M}, v{T0}")
        for r in range(4):
            a(f"v_fma_f32 v{SA+r}, v{SA+r}, s14, -v{T0}")
        for r in range(4):
            a(f"v_exp_f32 v{SA+r}, v{SA+r}")
        a(f"v_cmp_neq_f32 vcc, 1.0, v{AL}")
        a(f"v_cvt_pk_bf16_f32 v{PB}, v{SA}, v{SA+1}")
        a(f"v_cvt_pk_bf16_f32 v{PB+1}, v{SA+2}, v{SA+3}")
        a(f"v_add_f32 v{T1}, v{SA}, v{SA+1}")
        a(f"v_add_f32 v{T2}, v{SA+2}, v{SA+3}")
        a(f"v_add_f32 v{T1}, v{T1}, v{T2}")
        a(f"v_fma_f32 v{L}, v{L}, v{AL}, v{T1}")
        a(f"s_cbranch_vccz {name}_nors_{tag}")
        for i in range(64):
            a(f"v_mul_f32 v{OA+i}, v{OA+i}, v{AL}")
        a.label(f"{name}_nors_{tag}")
        a(f"s_waitcnt vmcnt({wv})")
        for n in range(16):
            a(f"ds_read_b64_tr_b16 v[{VF+2*n}:{VF+2*n+1}], v{VRA+(n&7)} offset:{vslot*8192 + (n>>3)*256}")
        for n in range(16):
            a(f"s_waitcnt lgkmcnt({min(15-n,15)})")
            a(f"v_mfma_f32_16x16x16_bf16 v[{OA+4*n}:{OA+4*n+3}], v[{VF+2*n}:{VF+2*n+1}], v[{PB}:{PB+1}], v[{OA+4*n}:{OA+4*n+3}]")
        if do_issue:
            issue("V", vslot)

    a("s_mov_b32 s13, 0")
    a.label(name + "_loop")
    step(0, 1, True, 24, 24, "a")
    step(2, 3, True, 24, 24, "b")
    a("s_add_u32 s13, s13, 1")
    a("s_cmp_lt_u32 s13, 15")
    a(f"s_cbranch_scc1 {name}_loop")
    step(0, 1, False, 24, 16, "c")
    step(2, 3, False, 8, 0, "d")
    group_reduce(a, "v_add_f32", L, T1)
    a("s_nop 7")
    a("v_cmp_gt_u32 vcc, 2, v3")
    a("v_lshlrev_b32 v5, 10, v3")
    a("v_lshl_add_u32 v5, v4, 4, v5")
    a("v_add_u32 v5, s8, v5")
    a("s_mov_b64 s[58:59], exec")
    a("s_and_b64 exec, exec, vcc")
    for n in range(16):
        a(f"ds_write_b128 v5, v[{OA+4*n}:{OA+4*n+3}] offset:{n*64}")
    a("v_cmp_gt_u32 vcc, 2, v2")
    a("v_lshlrev_b32 v5, 3, v2")
    a("v_add_u32 v5, s8, v5")
    a("s_and_b64 exec, exec, vcc")
    a(f"ds_write_b64 v5, v[{M}:{M+1}] offset:2048")
    a("s_mov_b64 exec, s[58:59]")
    a("s_waitcnt lgkmcnt(0)")
    a("s_barrier")
    a("v_lshrrev_b32 v5, 7, v0")
    a("v_lshlrev_b32 v6, 3, v5")
    a("v_lshlrev_b32 v7, 3, v0")
    a("v_add_u32 v9, 0x10000, v6")
    a("v_add_u32 v10, 0x10000, v7")
    for w in range(4):
        a(f"ds_read_b64 v[{16+2*w}:{17+2*w}], v{6 if w<2 else 9} offset:{(w&1)*32768+2048}")
        a(f"ds_read_b64 v[{24+2*w}:{25+2*w}], v{7 if w<2 else 10} offset:{(w&1)*32768}")
    a("s_waitcnt lgkmcnt(0)")
    a("v_max_f32 v32, v16, v18")
    a("v_max3_f32 v32, v32, v20, v22")
    for w in range(4):
        a(f"v_sub_f32 v{16+2*w}, v{16+2*w}, v32")
        a(f"v_exp_f32 v{16+2*w}, v{16+2*w}")
    a("s_nop 0")
    a("v_mul_f32 v33, v16, v17")
    a("v_mul_f32 v34, v16, v24")
    a("v_mul_f32 v35, v16, v25")
    for w in range(1, 4):
        a(f"v_fmac_f32 v33, v{16+2*w}, v{17+2*w}")
        a(f"v_fmac_f32 v34, v{16+2*w}, v{24+2*w}")
        a(f"v_fmac_f32 v35, v{16+2*w}, v{25+2*w}")
    a("s_lshl_b32 s6, s2, 11")
    a(f"s_add_u32 s6, s6, {WS_OP}")
    a("buffer_store_dwordx2 v[34:35], v7, s[52:55], s6 offen")
    a("v_and_b32 v8, 127, v0")
    a("v_cmp_eq_u32 vcc, 0, v8")
    a("s_lshl_b32 s6, s2, 4")
    a(f"s_add_u32 s6, s6, {WS_ML}")
    a("s_and_b64 exec, exec, vcc")
    a("buffer_store_dwordx2 v[32:33], v6, s[52:55], s6 offen")
    a.label(name + "_done")
    a("s_endpgm")
    kd(a, name, 240)

def gen_comb(a, name):
    kstart(a, name)
    prologue(a, 224, name + "_done")
    a("v_lshrrev_b32 v1, 6, v0")
    a("v_and_b32 v2, 63, v0")
    a("s_nop 0")
    a("v_readfirstlane_b32 s3, v1")
    a("s_mul_i32 s4, s2, 4682")
    a("s_lshr_b32 s4, s4, 16")
    a("s_mul_i32 s5, s4, 14")
    a("s_sub_u32 s5, s2, s5")
    a("s_waitcnt lgkmcnt(0)")
    srd(a, 48, 24, 4096*448*2)
    srd(a, 52, 40, WS_BYTES)
    a("v_lshrrev_b32 v5, 2, v2")
    a("v_mul_u32_u24 v5, 896, v5")
    a("v_and_b32 v6, 3, v2")
    a("v_lshl_add_u32 v5, v6, 4, v5")
    a("s_mul_i32 s6, s4, 229376")
    a("s_lshl_b32 s7, s5, 6")
    a("s_add_u32 s6, s6, s7")
    a("s_mul_i32 s7, s3, 14336")
    a("s_add_u32 s6, s6, s7")
    a("s_lshl_b32 s7, s3, 10")
    for i in range(4):
        a("s_mov_b32 m0, s7")
        a("s_nop 0")
        a("buffer_load_dwordx4 v5, s[48:51], s6 offen lds")
        a("s_add_u32 s6, s6, 57344")
        a("s_add_u32 s7, s7, 4096")
    a("v_lshrrev_b32 v3, 5, v0")
    a("v_and_b32 v4, 31, v0")
    a("v_lshlrev_b32 v6, 16, v3")
    a("v_lshl_add_u32 v6, v4, 5, v6")
    a("s_lshr_b32 s8, s4, 1")
    a("s_and_b32 s9, s4, 1")
    a("s_lshl_b32 s10, s8, 13")
    a("s_lshl_b32 s11, s9, 10")
    a("s_add_u32 s10, s10, s11")
    a(f"s_add_u32 s10, s10, {WS_OP}")
    a("s_add_u32 s11, s10, 4096")
    for s in range(4):
        a(f"buffer_load_dwordx4 v[{16+8*s}:{19+8*s}], v6, s[52:55], s{10+(s>>1)} offen offset:{(s&1)*2048}")
        a(f"buffer_load_dwordx4 v[{20+8*s}:{23+8*s}], v6, s[52:55], s{10+(s>>1)} offen offset:{(s&1)*2048+16}")
    a("v_lshlrev_b32 v7, 9, v3")
    a("s_lshl_b32 s10, s8, 6")
    a("s_lshl_b32 s11, s9, 3")
    a("s_add_u32 s10, s10, s11")
    a(f"s_add_u32 s10, s10, {WS_ML}")
    for s in range(4):
        a(f"buffer_load_dwordx2 v[{48+2*s}:{49+2*s}], v7, s[52:55], s10 offen offset:{s*16}")
    a("s_waitcnt vmcnt(0)")
    a("v_max_f32 v56, v48, v50")
    a("v_max3_f32 v56, v56, v52, v54")
    for s in range(4):
        a(f"v_sub_f32 v{48+2*s}, v{48+2*s}, v56")
        a(f"v_exp_f32 v{48+2*s}, v{48+2*s}")
    a("s_nop 0")
    a("v_mul_f32 v57, v48, v49")
    for s in range(1, 4):
        a(f"v_fmac_f32 v57, v{48+2*s}, v{49+2*s}")
    a("v_rcp_f32 v57, v57")
    a("s_nop 0")
    for s in range(4):
        a(f"v_mul_f32 v{48+2*s}, v{48+2*s}, v57")
    for i in range(8):
        a(f"v_mul_f32 v{60+i}, v48, v{16+i}")
        for s in range(1, 4):
            a(f"v_fmac_f32 v{60+i}, v{48+2*s}, v{16+8*s+i}")
    pack8(a, 60, 68)
    a("v_lshlrev_b32 v6, 4, v0")
    a("ds_write_b128 v6, v[68:71] offset:16384")
    a("s_waitcnt vmcnt(0) lgkmcnt(0)")
    a("s_barrier")
    a("s_cmp_ge_u32 s3, 2")
    a(f"s_cbranch_scc1 {name}_done")
    a("v_lshrrev_b32 v3, 4, v2")
    a("v_bfe_u32 v4, v2, 2, 2")
    a("v_lshl_add_u32 v4, v3, 3, v4")
    a("v_lshlrev_b32 v4, 6, v4")
    a("v_and_b32 v5, 3, v2")
    a("v_lshl_add_u32 v4, v5, 3, v4")
    a("s_lshl_b32 s6, s3, 5")
    a("v_add_u32 v4, s6, v4")
    a("v_and_b32 v5, 7, v2")
    a("v_lshlrev_b32 v5, 9, v5")
    a("v_lshl_add_u32 v5, v3, 4, v5")
    for j in range(8):
        a(f"ds_read_b64_tr_b16 v[{80+4*j}:{81+4*j}], v4 offset:{j*2048}")
        a(f"ds_read_b64_tr_b16 v[{82+4*j}:{83+4*j}], v4 offset:{j*2048+256}")
        a(f"ds_read_b128 v[{112+4*j}:{115+4*j}], v5 offset:{16384+j*64}")
    a("s_waitcnt lgkmcnt(0)")
    for j in range(8):
        c = "0" if j == 0 else "v[32:35]"
        a(f"v_mfma_f32_16x16x32_bf16 v[32:35], v[{80+4*j}:{83+4*j}], v[{112+4*j}:{115+4*j}], {c}")
    a("v_and_b32 v5, 15, v2")
    a("v_cmp_gt_u32 vcc, 8, v5")
    a("v_mul_u32_u24 v5, 1792, v5")
    a("v_lshl_add_u32 v5, v3, 4, v5")
    a("s_mul_i32 s6, s4, 14336")
    a("s_lshl_b32 s7, s5, 7")
    a("s_add_u32 s6, s6, s7")
    a("s_lshl_b32 s7, s3, 6")
    a("s_add_u32 s6, s6, s7")
    a(f"s_add_u32 s6, s6, {WS_P2}")
    a("s_nop 7")
    a("s_and_b64 exec, exec, vcc")
    a("buffer_store_dwordx4 v[32:35], v5, s[52:55], s6 offen")
    a.label(name + "_done")
    a("s_endpgm")
    kd(a, name, 160)

def gen_final(a, name):
    kstart(a, name)
    prologue(a, 256, name + "_done")
    a("v_lshrrev_b32 v1, 6, v0")
    a("v_and_b32 v2, 63, v0")
    a("s_nop 0")
    a("v_readfirstlane_b32 s3, v1")
    a("s_lshr_b32 s4, s2, 5")
    a("s_and_b32 s5, s2, 31")
    a("s_waitcnt lgkmcnt(0)")
    srd(a, 44, 16, 7168)
    srd(a, 52, 40, WS_BYTES)
    srd(a, 60, 28, 3588)
    srd(a, 64, 30, 3588)
    srd(a, 68, 32, 3588)
    srd(a, 72, 34, 4)
    srd(a, 76, 36, 7172)
    a("v_lshlrev_b32 v3, 1, v0")
    for i in range(7):
        a(f"buffer_load_ushort v{100+i}, v3, s[60:63], 0 offen offset:{i*512}")
        a(f"buffer_load_ushort v{108+i}, v3, s[64:67], 0 offen offset:{i*512}")
        a(f"buffer_load_ushort v{116+i}, v3, s[68:71], 0 offen offset:{i*512}")
    a("v_mov_b32 v4, 0")
    a("buffer_load_ushort v124, v4, s[72:75], 0 offen")
    a("s_cmp_lg_u32 s3, 0")
    a(f"s_cbranch_scc1 {name}_skip1")
    a("v_cmp_gt_u32 s[56:57], 56, v2")
    a("v_lshlrev_b32 v3, 5, v2")
    a("v_mov_b32 v4, 0x7fff0000")
    a("s_nop 0")
    a("v_cndmask_b32 v3, v4, v3, s[56:57]")
    a("s_mul_i32 s6, s4, 1792")
    a(f"s_add_u32 s6, s6, {WS_P2}")
    for h in range(16):
        a(f"buffer_load_dwordx4 v[{128+8*h}:{131+8*h}], v3, s[52:55], s6 offen")
        a(f"buffer_load_dwordx4 v[{132+8*h}:{135+8*h}], v3, s[52:55], s6 offen offset:16")
        a("s_add_u32 s6, s6, 14336")
    a("v_lshlrev_b32 v5, 4, v2")
    a("v_cndmask_b32 v5, v4, v5, s[56:57]")
    a("s_mul_i32 s6, s4, 896")
    a("buffer_load_dwordx4 v[8:11], v5, s[44:47], s6 offen")
    a("s_waitcnt vmcnt(0)")
    for h in range(1, 16):
        for i in range(8):
            a(f"v_add_f32 v{128+i}, v{128+i}, v{128+8*h+i}")
    unpack8(a, 8, 16)
    for i in range(8):
        bf16r(a, 128+i)
        a(f"v_add_f32 v{16+i}, v{16+i}, v{128+i}")
        bf16r(a, 16+i)
    a("v_lshlrev_b32 v3, 5, v2")
    a("s_mov_b64 s[58:59], exec")
    a("s_mov_b64 exec, s[56:57]")
    a("ds_write_b128 v3, v[16:19]")
    a("ds_write_b128 v3, v[20:23] offset:16")
    a("s_mov_b64 exec, s[58:59]")
    layernorm8(a, 16, 32, 33, 34, 56)
    for i in range(8):
        a(f"v_cndmask_b32 v{16+i}, 0, v{16+i}, s[56:57]")
    layernorm8(a, 16, 32, 33, 34, 56)
    a("s_mov_b64 exec, s[56:57]")
    a("ds_write_b128 v3, v[16:19] offset:2048")
    a("ds_write_b128 v3, v[20:23] offset:2064")
    a("s_mov_b64 exec, s[58:59]")
    a.label(name + "_skip1")
    a("s_waitcnt vmcnt(0) lgkmcnt(0)")
    a("s_barrier")
    for i in range(7):
        a(f"v_lshlrev_b32 v{100+i}, 16, v{100+i}")
        a(f"v_lshlrev_b32 v{108+i}, 16, v{108+i}")
        a(f"v_lshlrev_b32 v{116+i}, 16, v{116+i}")
    a("v_lshlrev_b32 v124, 16, v124")
    a("s_mul_i32 s6, s5, 56")
    a("v_mov_b32 v3, s6")
    for d in range(14):
        a(f"ds_read_b32 v{40+d}, v3 offset:{2048+4*d}")
    a("s_waitcnt lgkmcnt(0)")
    C1 = -2.0 * LOG2E * math.sqrt(2.0/math.pi)
    C2 = C1 * 0.044715
    a(f"s_mov_b32 s8, {hex(f2u(C1))}")
    a(f"v_mov_b32 v5, {hex(f2u(C2))}")
    for d in range(14):
        acc = 60 + d
        for i in range(7):
            u = 80; t = 81
            a(f"v_mul_f32 v{u}, v{40+d}, v{100+i}")
            bf16r(a, u)
            a(f"v_add_f32 v{u}, v{u}, v{108+i}")
            bf16r(a, u)
            a(f"v_mul_f32 v{t}, v{u}, v{u}")
            a(f"v_fma_f32 v{t}, v{t}, v5, s8")
            a(f"v_mul_f32 v{t}, v{t}, v{u}")
            a(f"v_exp_f32 v{t}, v{t}")
            a("s_nop 0")
            a(f"v_add_f32 v{t}, 1.0, v{t}")
            a(f"v_rcp_f32 v{t}, v{t}")
            a("s_nop 0")
            a(f"v_mul_f32 v{t}, v{t}, v{u}")
            bf16r(a, t)
            if i == 0:
                a(f"v_mul_f32 v{acc}, v{t}, v{116+i}")
            else:
                a(f"v_fmac_f32 v{acc}, v{t}, v{116+i}")
    for d in range(14):
        wave_reduce(a, "v_add_f32", 60+d, 80)
    a("v_cmp_eq_u32 vcc, 0, v2")
    a("s_lshl_b32 s6, s3, 6")
    a("v_mov_b32 v3, s6")
    a("s_mov_b64 s[58:59], exec")
    a("s_and_b64 exec, exec, vcc")
    for d in range(14):
        a(f"ds_write_b32 v3, v{60+d} offset:{4096+4*d}")
    a("s_mov_b64 exec, s[58:59]")
    a("s_waitcnt lgkmcnt(0)")
    a("s_barrier")
    a("s_cmp_lg_u32 s3, 0")
    a(f"s_cbranch_scc1 {name}_done")
    a("v_cmp_gt_u32 vcc, 14, v2")
    a("v_lshlrev_b32 v3, 2, v2")
    for w in range(4):
        a(f"ds_read_b32 v{40+w}, v3 offset:{4096+64*w}")
    a("s_mul_i32 s6, s5, 56")
    a("v_add_u32 v4, s6, v3")
    a("ds_read_b32 v44, v4")
    a("s_waitcnt lgkmcnt(0)")
    a("v_add_f32 v40, v40, v41")
    a("v_add_f32 v42, v42, v43")
    a("v_add_f32 v40, v40, v42")
    bf16r(a, 40)
    a("v_add_f32 v40, v40, v124")
    bf16r(a, 40)
    a("v_add_f32 v40, v40, v44")
    a("v_cvt_pk_bf16_f32 v40, v40, v40")
    a("v_lshlrev_b32 v3, 1, v2")
    a("s_mul_i32 s6, s4, 896")
    a("s_mul_i32 s7, s5, 28")
    a("s_add_u32 s6, s6, s7")
    a("s_and_b64 exec, exec, vcc")
    a("buffer_store_short v40, v3, s[76:79], s6 offen")
    a.label(name + "_done")
    a("s_endpgm")
    kd(a, name, 256)

def main():
    a = Asm()
    hdr = open("cdna_kernels/%s.s.ref" % NAME).read().split("\n")
    for l in hdr:
        if l.startswith("; @launch"):
            break
        if l.startswith("; Override") or l.startswith("; grid=ceil"):
            continue
        a.raw(l)
    a.raw("; @launch kernel=qproj_kernel grid=(256,1,1) block=(256,1,1) lds=21504")
    a.raw("; @launch kernel=attn_kernel grid=(256,1,1) block=(256,1,1) lds=131072")
    a.raw("; @launch kernel=comb_kernel grid=(224,1,1) block=(256,1,1) lds=20480")
    a.raw("; @launch kernel=final_kernel grid=(256,1,1) block=(256,1,1) lds=8192")
    a.raw('.amdgcn_target "amdgcn-amd-amdhsa--gfx950"')
    gen_qproj(a, "qproj_kernel")
    gen_attn(a, "attn_kernel")
    gen_comb(a, "comb_kernel")
    gen_final(a, "final_kernel")
    out = sys.argv[1] if len(sys.argv) > 1 else OUT
    open(out, "w").write(a.text())

if __name__ == "__main__":
    main()
```

```python
import sys, math, struct, os, re

NAME = "sequential_preLN__gqa_block_cached__mixer_token_mlp__decode"
KNAME = NAME + "_kernel"
OUT = "cdna_kernels/%s.s" % NAME

def f2u(x):
    return struct.unpack("<I", struct.pack("<f", x))[0]

class Asm:
    def __init__(self):
        self.lines = []
    def __call__(self, s):
        for l in s.strip("\n").split("\n"):
            l = l.strip()
            m = re.search(r"offset:(\d+)", l)
            if m and l.startswith("buffer_"):
                assert int(m.group(1)) < 4096, l
            if m and l.startswith("ds_"):
                assert int(m.group(1)) < 65536, l
            self.lines.append("    " + l)
    def label(self, l):
        self.lines.append(l + ":")
    def raw(self, s):
        self.lines.append(s)
    def text(self):
        return "\n".join(self.lines) + "\n"

WS_Q = 0
WS_OP = 0x10000
WS_ML = 0x90000
WS_P2 = 0xA0000
WS_BYTES = 0x100000

LOG2E = 1.4426950408889634
SCALE_C = 0.0625 * LOG2E
NT = os.environ.get("NT", " nt")

MB = 131072
L_WQ = MB
L_XN = MB + 14336
L_QL = MB + 21504
L_WO = MB
L_O = MB + 22528
L_H = MB + 26624
L_T = MB + 28672
LDS_BYTES = 163840

SPIN_MAX = 1 << 18

def srd(a, d, base, nbytes):
    a(f"s_mov_b32 s{d}, s{base}")
    a(f"s_and_b32 s{d+1}, s{base+1}, 0xffff")
    a(f"s_mov_b32 s{d+2}, {nbytes}")
    a(f"s_mov_b32 s{d+3}, 0x00020000")

def wave_reduce(a, op, v, t):
    for ctl in ["quad_perm:[1,0,3,2]", "quad_perm:[2,3,0,1]", "row_half_mirror", "row_mirror"]:
        a("s_nop 1")
        a(f"{op}_dpp v{v}, v{v}, v{v} {ctl} row_mask:0xf bank_mask:0xf")
    group_reduce(a, op, v, t)

def group_reduce(a, op, v, t):
    a(f"v_mov_b32 v{t}, v{v}")
    a("s_nop 1")
    a(f"v_permlane16_swap_b32 v{v}, v{t}")
    a("s_nop 1")
    a(f"{op} v{v}, v{v}, v{t}")
    a(f"v_mov_b32 v{t}, v{v}")
    a("s_nop 1")
    a(f"v_permlane32_swap_b32 v{v}, v{t}")
    a("s_nop 1")
    a(f"{op} v{v}, v{v}, v{t}")

def wave_reduce2(a, op, v, t, w, u):
    for ctl in ["quad_perm:[1,0,3,2]", "quad_perm:[2,3,0,1]", "row_half_mirror", "row_mirror"]:
        a("s_nop 0")
        a(f"{op}_dpp v{v}, v{v}, v{v} {ctl} row_mask:0xf bank_mask:0xf")
        a(f"{op}_dpp v{w}, v{w}, v{w} {ctl} row_mask:0xf bank_mask:0xf")
    for sw in ["v_permlane16_swap_b32", "v_permlane32_swap_b32"]:
        a(f"v_mov_b32 v{t}, v{v}")
        a(f"v_mov_b32 v{u}, v{w}")
        a("s_nop 1")
        a(f"{sw} v{v}, v{t}")
        a(f"{sw} v{w}, v{u}")
        a("s_nop 1")
        a(f"{op} v{v}, v{v}, v{t}")
        a(f"{op} v{w}, v{w}, v{u}")

def bf16r(a, v):
    a(f"v_cvt_pk_bf16_f32 v{v}, v{v}, v{v}")
    a(f"v_and_b32 v{v}, 0xffff0000, v{v}")

def bf16r2(a, v, w, t):
    a(f"v_cvt_pk_bf16_f32 v{t}, v{v}, v{w}")
    a(f"v_lshlrev_b32 v{v}, 16, v{t}")
    a(f"v_and_b32 v{w}, 0xffff0000, v{t}")

def unpack8(a, src, dst):
    for i in range(4):
        a(f"v_lshlrev_b32 v{dst+2*i}, 16, v{src+i}")
        a(f"v_and_b32 v{dst+2*i+1}, 0xffff0000, v{src+i}")

def layernorm8(a, x, t0, t1, t2, smask):
    a(f"v_add_f32 v{t0}, v{x}, v{x+1}")
    for i in range(2, 8):
        a(f"v_add_f32 v{t0}, v{t0}, v{x+i}")
    wave_reduce(a, "v_add_f32", t0, t1)
    a(f"v_mul_f32 v{t0}, {hex(f2u(1.0/448))}, v{t0}")
    a(f"v_sub_f32 v{t2}, v{x}, v{t0}")
    a(f"v_mul_f32 v{t1}, v{t2}, v{t2}")
    for i in range(1, 8):
        a(f"v_sub_f32 v{t2}, v{x+i}, v{t0}")
        a(f"v_fmac_f32 v{t1}, v{t2}, v{t2}")
    a(f"v_cndmask_b32 v{t1}, 0, v{t1}, s[{smask}:{smask+1}]")
    wave_reduce(a, "v_add_f32", t1, t2)
    a(f"v_mul_f32 v{t1}, {hex(f2u(1.0/448))}, v{t1}")
    bf16r(a, t1)
    a(f"v_add_f32 v{t1}, {hex(f2u(1e-5))}, v{t1}")
    bf16r(a, t1)
    a(f"v_sqrt_f32 v{t1}, v{t1}")
    a("s_nop 0")
    bf16r(a, t1)
    a(f"v_rcp_f32 v{t1}, v{t1}")
    bf16r(a, t0)
    for i in range(0, 8, 2):
        a(f"v_sub_f32 v{x+i}, v{x+i}, v{t0}")
        a(f"v_sub_f32 v{x+i+1}, v{x+i+1}, v{t0}")
        bf16r2(a, x+i, x+i+1, t2)
        a(f"v_mul_f32 v{x+i}, v{x+i}, v{t1}")
        a(f"v_mul_f32 v{x+i+1}, v{x+i+1}, v{t1}")
        bf16r2(a, x+i, x+i+1, t2)

def layernorm8x2(a, x, y, tx, ty, smask):
    t0, t1, t2 = tx; u0, u1, u2 = ty
    a(f"v_add_f32 v{t0}, v{x}, v{x+1}")
    a(f"v_add_f32 v{u0}, v{y}, v{y+1}")
    for i in range(2, 8):
        a(f"v_add_f32 v{t0}, v{t0}, v{x+i}")
        a(f"v_add_f32 v{u0}, v{u0}, v{y+i}")
    wave_reduce2(a, "v_add_f32", t0, t1, u0, u1)
    a(f"v_mul_f32 v{t0}, {hex(f2u(1.0/448))}, v{t0}")
    a(f"v_mul_f32 v{u0}, {hex(f2u(1.0/448))}, v{u0}")
    for i in range(8):
        a(f"v_sub_f32 v{t2}, v{x+i}, v{t0}")
        a(f"v_sub_f32 v{u2}, v{y+i}, v{u0}")
        if i == 0:
            a(f"v_mul_f32 v{t1}, v{t2}, v{t2}")
            a(f"v_mul_f32 v{u1}, v{u2}, v{u2}")
        else:
            a(f"v_fmac_f32 v{t1}, v{t2}, v{t2}")
            a(f"v_fmac_f32 v{u1}, v{u2}, v{u2}")
    a(f"v_cndmask_b32 v{t1}, 0, v{t1}, s[{smask}:{smask+1}]")
    a(f"v_cndmask_b32 v{u1}, 0, v{u1}, s[{smask}:{smask+1}]")
    wave_reduce2(a, "v_add_f32", t1, t2, u1, u2)
    a(f"v_mul_f32 v{t1}, {hex(f2u(1.0/448))}, v{t1}")
    a(f"v_mul_f32 v{u1}, {hex(f2u(1.0/448))}, v{u1}")
    bf16r2(a, t1, u1, t2)
    a(f"v_add_f32 v{t1}, {hex(f2u(1e-5))}, v{t1}")
    a(f"v_add_f32 v{u1}, {hex(f2u(1e-5))}, v{u1}")
    bf16r2(a, t1, u1, t2)
    a(f"v_sqrt_f32 v{t1}, v{t1}")
    a(f"v_sqrt_f32 v{u1}, v{u1}")
    a("s_nop 0")
    bf16r2(a, t1, u1, t2)
    a(f"v_rcp_f32 v{t1}, v{t1}")
    a(f"v_rcp_f32 v{u1}, v{u1}")
    bf16r2(a, t0, u0, t2)
    for (z, m, r_) in ((x, t0, t1), (y, u0, u1)):
        for i in range(0, 8, 2):
            a(f"v_sub_f32 v{z+i}, v{z+i}, v{m}")
            a(f"v_sub_f32 v{z+i+1}, v{z+i+1}, v{m}")
            bf16r2(a, z+i, z+i+1, t2)
            a(f"v_mul_f32 v{z+i}, v{z+i}, v{r_}")
            a(f"v_mul_f32 v{z+i+1}, v{z+i+1}, v{r_}")

def pack8(a, x, dst):
    for i in range(4):
        a(f"v_cvt_pk_bf16_f32 v{dst+i}, v{x+2*i}, v{x+2*i+1}")

def anysent(a, regs, t):
    regs = list(regs)
    a(f"v_max_u32 v{t}, v{regs[0]}, v{regs[1]}")
    i = 2
    while i < len(regs):
        if i + 1 < len(regs):
            a(f"v_max3_u32 v{t}, v{t}, v{regs[i]}, v{regs[i+1]}")
            i += 2
        else:
            a(f"v_max_u32 v{t}, v{t}, v{regs[i]}")
            i += 1

QF = 16; OA = 64; KF = 128; VF = 160; KOFF = 192; VOFF = 200; KRA = 208; VRA = 212
SA = 220; PB = 224; M = 226; L = 227; AL = 228; T0 = 229; T1 = 230; T2 = 231

def gen(a):
    n = KNAME
    a.raw(".text")
    a.raw(f".globl {n}")
    a.raw(".p2align 8")
    a.raw(f".type {n},@function")
    a.label(n)
    a("s_cmp_ge_u32 s2, 256")
    a("s_cbranch_scc1 L_done")
    a("s_load_dwordx16 s[16:31], s[0:1], 0")
    a("s_load_dwordx8 s[32:39], s[0:1], 64")
    a("s_load_dwordx2 s[40:41], s[0:1], 96")
    a("v_lshrrev_b32 v1, 6, v0")
    a("v_and_b32 v2, 63, v0")
    a("v_and_b32 v3, 15, v2")
    a("v_readfirstlane_b32 s3, v1")
    a("v_lshrrev_b32 v4, 4, v2")
    a("s_and_b32 s4, s2, 7")
    a("s_lshr_b32 s5, s2, 3")
    a("s_lshr_b32 s96, s5, 2")
    a("s_and_b32 s97, s5, 3")
    a("s_lshl_b32 s98, s4, 5")
    a("s_add_u32 s98, s98, s5")
    a("v_cmp_gt_u32 s[56:57], 56, v2")
    a("s_mov_b64 s[58:59], exec")
    a("s_waitcnt lgkmcnt(0)")
    srd(a, 44, 18, 0x10000000)
    srd(a, 48, 20, 0x10000000)
    srd(a, 52, 40, WS_BYTES)
    srd(a, 60, 16, 7168)
    srd(a, 64, 22, 448*4096*2)
    srd(a, 68, 24, 4096*448*2)
    srd(a, 72, 38, 256)
    srd(a, 76, 36, 7168)
    srd(a, 80, 28, 3584)
    srd(a, 84, 30, 3584)
    srd(a, 88, 32, 3584)
    srd(a, 92, 34, 4)
    a("s_cmp_eq_u32 s3, 4")
    a("s_cbranch_scc1 L_service")
    a("s_cmp_gt_u32 s3, 4")
    a("s_cbranch_scc1 L_idle")

    a("v_lshlrev_b32 v5, 4, v2")
    a("v_mov_b32 v6, 0x7fff0000")
    a("v_cndmask_b32 v5, v6, v5, s[56:57]")
    a("s_mul_i32 s6, s3, 1792")
    a("buffer_load_dwordx4 v[8:11], v5, s[60:63], s6 offen")
    a("buffer_load_dwordx4 v[12:15], v5, s[60:63], s6 offen offset:896")
    a("v_lshrrev_b32 v7, 5, v2")
    a("v_and_b32 v8+0, 31, v2".replace("v8+0", "v232"))
    for p in range(8):
        a(f"v_add_u32 v5, {2*p}, v7")
        a("v_xor_b32 v6, v232, v5")
        a("v_lshlrev_b32 v6, 4, v6")
        a(f"v_lshl_add_u32 v{KOFF+p}, v7, 9, v6")
        a(f"v_add_u32 v{KOFF+p}, {p*4096-(p&3)*1024}, v{KOFF+p}")
        a("v_and_b32 v5, 7, v5")
        a("v_lshlrev_b32 v5, 1, v5")
        a("v_xor_b32 v6, v232, v5")
        a("v_lshlrev_b32 v6, 4, v6")
        a(f"v_lshl_add_u32 v{VOFF+p}, v7, 9, v6")
        a(f"v_add_u32 v{VOFF+p}, {p*4096-(p&3)*1024}, v{VOFF+p}")
    a("s_lshl_b32 s8, s3, 15")
    a("s_lshl_b32 s9, s96, 3")
    a("s_add_u32 s9, s9, s4")
    a("s_lshl_b32 s9, s9, 22")
    a("s_lshl_b32 s6, s97, 20")
    a("s_add_u32 s9, s9, s6")
    a("s_lshl_b32 s6, s3, 10")
    a("s_add_u32 s9, s9, s6")
    a("s_mov_b32 s10, s9")

    def issue(kind, slot):
        srd_ = "s[44:47]" if kind == "K" else "s[48:51]"
        so = "s9" if kind == "K" else "s10"
        off = KOFF if kind == "K" else VOFF
        a(f"s_add_u32 s11, s8, {slot*8192}")
        a("s_mov_b32 m0, s11")
        a(f"s_add_u32 s12, s8, {slot*8192+4096}")
        for p in range(4):
            a(f"buffer_load_dwordx4 v{off+p}, {srd_}, {so} offen offset:{p*1024}{NT} lds")
        a("s_mov_b32 m0, s12")
        a("s_nop 0")
        for p in range(4):
            a(f"buffer_load_dwordx4 v{off+4+p}, {srd_}, {so} offen offset:{p*1024}{NT} lds")
        a(f"s_add_u32 {so}, {so}, 32768")

    issue("K", 0); issue("V", 1); issue("K", 2); issue("V", 3)
    for jj in range(4):
        a(f"v_add_u32 v5, {4*jj}, v4")
        a("v_xor_b32 v5, v5, v3")
        a("v_lshlrev_b32 v5, 4, v5")
        a(f"v_lshl_add_u32 v5, v3, 9, v5")
        a(f"v_add_u32 v{KRA+jj}, s8, v5")
    a("v_bfe_u32 v5, v2, 2, 2")
    a("v_lshl_add_u32 v5, v4, 2, v5")
    a("v_and_b32 v6, 7, v5")
    a("v_and_b32 v7, 3, v2")
    a("v_lshlrev_b32 v7, 3, v7")
    a("v_lshl_add_u32 v7, v5, 9, v7")
    a("v_add_u32 v7, s8, v7")
    for nn in range(8):
        a(f"v_xor_b32 v5, {nn}, v6")
        a(f"v_lshl_add_u32 v{VRA+nn}, v5, 5, v7")
    for i in range(64):
        a(f"v_mov_b32 v{OA+i}, 0")
    a(f"v_mov_b32 v{M}, 0xf149f2ca")
    a(f"v_mov_b32 v{L}, 0")
    a(f"s_mov_b32 s14, {hex(f2u(SCALE_C))}")
    a("s_waitcnt vmcnt(32)")
    unpack8(a, 8, 16)
    unpack8(a, 12, 24)
    layernorm8x2(a, 16, 24, (32, 33, 34), (35, 36, 37), 56)
    pack8(a, 16, 8)
    pack8(a, 24, 12)
    a("v_lshlrev_b32 v5, 4, v2")
    a("s_mul_i32 s6, s3, 1792")
    a(f"s_add_u32 s6, s6, {L_XN}")
    a("v_add_u32 v5, s6, v5")
    a("s_mov_b64 exec, s[56:57]")
    a("ds_write_b128 v5, v[8:11]")
    a("ds_write_b128 v5, v[12:15] offset:896")
    a("s_mov_b64 exec, s[58:59]")
    a("s_waitcnt lgkmcnt(0)")
    a("s_barrier")
    a("v_and_b32 v5, 1, v2")
    a("v_lshlrev_b32 v5, 9, v5")
    a("v_lshl_add_u32 v5, v4, 4, v5")
    a(f"v_add_u32 v5, {L_QL}, v5")
    a("s_barrier")
    for j in range(8):
        a(f"ds_read_b128 v[{QF+4*j}:{QF+4*j+3}], v5 offset:{j*64}")
    a("s_waitcnt lgkmcnt(0)")

    def step(kslot, vslot, do_issue, wk, wv, tag):
        a(f"s_waitcnt vmcnt({wk})")
        for j in range(8):
            a(f"ds_read_b128 v[{KF+4*j}:{KF+4*j+3}], v{KRA+(j&3)} offset:{kslot*8192 + (j>>2)*256}")
        for j in range(8):
            a(f"s_waitcnt lgkmcnt({7-j})")
            c = "0" if j == 0 else f"v[{SA}:{SA+3}]"
            a(f"v_mfma_f32_16x16x32_bf16 v[{SA}:{SA+3}], v[{KF+4*j}:{KF+4*j+3}], v[{QF+4*j}:{QF+4*j+3}], {c}")
        if do_issue:
            issue("K", kslot)
        else:
            a("s_nop 7")
            a("s_nop 1")
        a(f"v_cvt_pk_bf16_f32 v{T0}, v{SA}, v{SA+1}")
        a(f"v_cvt_pk_bf16_f32 v{T1}, v{SA+2}, v{SA+3}")
        a(f"v_lshlrev_b32 v{SA}, 16, v{T0}")
        a(f"v_and_b32 v{SA+1}, 0xffff0000, v{T0}")
        a(f"v_lshlrev_b32 v{SA+2}, 16, v{T1}")
        a(f"v_and_b32 v{SA+3}, 0xffff0000, v{T1}")
        a(f"v_max3_f32 v{T0}, v{SA}, v{SA+1}, v{SA+2}")
        a(f"v_max_f32 v{T0}, v{T0}, v{SA+3}")
        group_reduce(a, "v_max_f32", T0, T1)
        a(f"v_mul_f32 v{T0}, s14, v{T0}")
        a(f"v_max_f32 v{T0}, v{T0}, v{M}")
        a(f"v_sub_f32 v{AL}, v{M}, v{T0}")
        a(f"v_exp_f32 v{AL}, v{AL}")
        a(f"v_mov_b32 v{M}, v{T0}")
        for r in range(4):
            a(f"v_fma_f32 v{SA+r}, v{SA+r}, s14, -v{T0}")
        for r in range(4):
            a(f"v_exp_f32 v{SA+r}, v{SA+r}")
        a(f"v_cmp_neq_f32 vcc, 1.0, v{AL}")
        a(f"v_cvt_pk_bf16_f32 v{PB}, v{SA}, v{SA+1}")
        a(f"v_cvt_pk_bf16_f32 v{PB+1}, v{SA+2}, v{SA+3}")
        a(f"v_add_f32 v{T1}, v{SA}, v{SA+1}")
        a(f"v_add_f32 v{T2}, v{SA+2}, v{SA+3}")
        a(f"v_add_f32 v{T1}, v{T1}, v{T2}")
        a(f"v_fma_f32 v{L}, v{L}, v{AL}, v{T1}")
        a(f"s_cbranch_vccz L_nors_{tag}")
        for i in range(64):
            a(f"v_mul_f32 v{OA+i}, v{OA+i}, v{AL}")
        a.label(f"L_nors_{tag}")
        a(f"s_waitcnt vmcnt({wv})")
        for nn in range(16):
            a(f"ds_read_b64_tr_b16 v[{VF+2*nn}:{VF+2*nn+1}], v{VRA+(nn&7)} offset:{vslot*8192 + (nn>>3)*256}")
        for nn in range(16):
            a(f"s_waitcnt lgkmcnt({15-nn})")
            a(f"v_mfma_f32_16x16x16_bf16 v[{OA+4*nn}:{OA+4*nn+3}], v[{VF+2*nn}:{VF+2*nn+1}], v[{PB}:{PB+1}], v[{OA+4*nn}:{OA+4*nn+3}]")
        if do_issue:
            issue("V", vslot)

    a("s_mov_b32 s13, 0")
    a.label("L_loop")
    step(0, 1, True, 24, 24, "a")
    step(2, 3, True, 24, 24, "b")
    a("s_add_u32 s13, s13, 1")
    a("s_cmp_lt_u32 s13, 15")
    a("s_cbranch_scc1 L_loop")
    step(0, 1, False, 24, 16, "c")
    step(2, 3, False, 8, 0, "d")
    group_reduce(a, "v_add_f32", L, T1)
    a("s_nop 7")
    a("v_cmp_gt_u32 vcc, 2, v3")
    a("v_lshlrev_b32 v5, 10, v3")
    a("v_lshl_add_u32 v5, v4, 4, v5")
    a("v_add_u32 v5, s8, v5")
    a("s_and_b64 exec, exec, vcc")
    for nn in range(16):
        a(f"ds_write_b128 v5, v[{OA+4*nn}:{OA+4*nn+3}] offset:{nn*64}")
    a("v_cmp_gt_u32 vcc, 2, v2")
    a("v_lshlrev_b32 v5, 3, v2")
    a("v_add_u32 v5, s8, v5")
    a("s_and_b64 exec, exec, vcc")
    a(f"ds_write_b64 v5, v[{M}:{M+1}] offset:2048")
    a("s_mov_b64 exec, s[58:59]")
    a("s_waitcnt lgkmcnt(0)")
    a("s_barrier")
    a("v_lshrrev_b32 v5, 7, v0")
    a("v_lshlrev_b32 v6, 3, v5")
    a("v_lshlrev_b32 v7, 3, v0")
    a("v_add_u32 v9, 0x10000, v6")
    a("v_add_u32 v10, 0x10000, v7")
    for w in range(4):
        a(f"ds_read_b64 v[{16+2*w}:{17+2*w}], v{6 if w<2 else 9} offset:{(w&1)*32768+2048}")
        a(f"ds_read_b64 v[{24+2*w}:{25+2*w}], v{7 if w<2 else 10} offset:{(w&1)*32768}")
    a("s_waitcnt lgkmcnt(0)")
    a("v_max_f32 v32, v16, v18")
    a("v_max3_f32 v32, v32, v20, v22")
    for w in range(4):
        a(f"v_sub_f32 v{16+2*w}, v{16+2*w}, v32")
        a(f"v_exp_f32 v{16+2*w}, v{16+2*w}")
    a("s_nop 0")
    a("v_mul_f32 v33, v16, v17")
    a("v_mul_f32 v34, v16, v24")
    a("v_mul_f32 v35, v16, v25")
    for w in range(1, 4):
        a(f"v_fmac_f32 v33, v{16+2*w}, v{17+2*w}")
        a(f"v_fmac_f32 v34, v{16+2*w}, v{24+2*w}")
        a(f"v_fmac_f32 v35, v{16+2*w}, v{25+2*w}")
    a("s_lshl_b32 s6, s98, 11")
    a(f"s_add_u32 s6, s6, {WS_OP}")
    a("buffer_store_dwordx2 v[34:35], v7, s[52:55], s6 offen sc1")
    a("v_and_b32 v8, 127, v0")
    a("v_cmp_eq_u32 vcc, 0, v8")
    a("s_lshl_b32 s6, s98, 4")
    a(f"s_add_u32 s6, s6, {WS_ML}")
    a("s_and_b64 exec, exec, vcc")
    a("buffer_store_dwordx2 v[32:33], v6, s[52:55], s6 offen sc1")
    a("s_mov_b64 exec, s[58:59]")
    a("s_branch L_tail")

    a.label("L_service")
    a("v_lshrrev_b32 v5, 1, v2")
    a("v_lshlrev_b32 v5, 13, v5")
    a("v_and_b32 v6, 1, v2")
    a("v_lshl_add_u32 v5, v6, 4, v5")
    a("s_lshl_b32 s6, s98, 5")
    a(f"s_mov_b32 s7, {L_WQ}")
    for p in range(14):
        a("s_mov_b32 m0, s7")
        a("s_add_u32 s7, s7, 1024")
        a("buffer_load_dwordx4 v5, s[64:67], s6 offen lds")
        a("s_add_u32 s6, s6, 0x40000")
    for i in range(4):
        a(f"v_mov_b32 v{8+i}, -1")
    a("v_lshlrev_b32 v6, 4, v2")
    a("s_lshl_b32 s6, s98, 11")
    a(f"s_add_u32 s6, s6, {WS_OP}")
    a("buffer_store_dwordx4 v[8:11], v6, s[52:55], s6 offen sc1")
    a("buffer_store_dwordx4 v[8:11], v6, s[52:55], s6 offen offset:1024 sc1")
    a("v_cmp_eq_u32 vcc, 0, v2")
    a("s_lshl_b32 s6, s98, 4")
    a(f"s_add_u32 s6, s6, {WS_ML}")
    a("s_and_b64 exec, exec, vcc")
    a("buffer_store_dwordx4 v[8:11], v6, s[52:55], s6 offen sc1")
    a("s_mov_b64 exec, s[58:59]")
    a("s_cmp_ge_u32 s5, 14")
    a("s_cselect_b32 s99, 1, 0")
    a("s_mul_i32 s6, s99, 14")
    a("s_sub_u32 s100, s5, s6")
    a("s_lshl_b32 s101, s4, 1")
    a("s_add_u32 s101, s101, s99")
    a("s_cmp_ge_u32 s5, 28")
    a("s_cbranch_scc1 L_noclrp2")
    a("v_lshrrev_b32 v6, 3, v2")
    a("v_mul_u32_u24 v6, 1792, v6")
    a("v_and_b32 v7, 7, v2")
    a("v_lshl_add_u32 v6, v7, 4, v6")
    a("s_mul_i32 s6, s101, 14336")
    a("s_lshl_b32 s7, s100, 7")
    a("s_add_u32 s6, s6, s7")
    a(f"s_add_u32 s6, s6, {WS_P2}")
    a("buffer_store_dwordx4 v[8:11], v6, s[52:55], s6 offen sc1")
    a.label("L_noclrp2")
    a("v_bfe_u32 v6, v2, 2, 2")
    a("v_lshl_add_u32 v6, v4, 3, v6")
    a("v_lshlrev_b32 v6, 5, v6")
    a("v_and_b32 v7, 3, v2")
    a("v_lshl_add_u32 v6, v7, 3, v6")
    a(f"v_add_u32 v6, {L_WQ}, v6")
    a("v_and_b32 v7, 7, v2")
    a("v_mul_u32_u24 v7, 896, v7")
    a("v_lshl_add_u32 v7, v4, 4, v7")
    a(f"v_add_u32 v7, {L_XN}, v7")
    a("s_waitcnt vmcnt(0)")
    a("s_barrier")
    for j in range(14):
        a(f"ds_read_b64_tr_b16 v[{40+4*j}:{41+4*j}], v6 offset:{j*1024}")
        a(f"ds_read_b64_tr_b16 v[{42+4*j}:{43+4*j}], v6 offset:{j*1024+128}")
        a(f"ds_read_b128 v[{100+4*j}:{103+4*j}], v7 offset:{j*64}")
    a("s_waitcnt lgkmcnt(0)")
    for j in range(14):
        c = "0" if j == 0 else "v[32:35]"
        a(f"v_mfma_f32_16x16x32_bf16 v[32:35], v[{40+4*j}:{43+4*j}], v[{100+4*j}:{103+4*j}], {c}")
    a("v_cmp_gt_u32 vcc, 8, v3")
    a("v_lshlrev_b32 v5, 13, v3")
    a("v_lshl_add_u32 v5, v4, 3, v5")
    a("s_lshl_b32 s6, s98, 5")
    a("v_mov_b32 v8, 1")
    a("s_lshl_b32 s7, s4, 5")
    a("v_mov_b32 v9, s7")
    a("s_nop 4")
    a("v_cvt_pk_bf16_f32 v36, v32, v33")
    a("v_cvt_pk_bf16_f32 v37, v34, v35")
    a("s_and_b64 exec, exec, vcc")
    a(f"buffer_store_dwordx2 v[36:37], v5, s[52:55], s6 offen offset:{WS_Q} sc1")
    a("s_mov_b64 exec, 1")
    a("s_waitcnt vmcnt(0)")
    a("buffer_atomic_add v8, v9, s[72:75], 0 offen sc1")
    a("s_mov_b64 exec, s[58:59]")
    a("s_mov_b32 s13, 0")
    a.label("L_pollq")
    a("buffer_load_dword v10, v9, s[72:75], 0 offen sc1")
    a("s_add_u32 s13, s13, 1")
    a("s_waitcnt vmcnt(0)")
    a("v_readfirstlane_b32 s6, v10")
    a(f"s_cmp_ge_u32 s13, {SPIN_MAX}")
    a("s_cbranch_scc1 L_pollq_done")
    a("s_cmp_ge_u32 s6, 32")
    a("s_cbranch_scc0 L_pollq")
    a.label("L_pollq_done")
    a("v_lshlrev_b32 v5, 4, v2")
    a("s_lshl_b32 s6, s96, 13")
    a("s_lshl_b32 s7, s4, 10")
    a("s_add_u32 s6, s6, s7")
    a(f"buffer_load_dwordx4 v[12:15], v5, s[52:55], s6 offen offset:{WS_Q} sc1")
    a(f"v_add_u32 v5, {L_QL}, v5")
    a("s_waitcnt vmcnt(0)")
    a("ds_write_b128 v5, v[12:15]")
    a("s_waitcnt lgkmcnt(0)")
    a("s_barrier")
    a("s_cmp_ge_u32 s5, 28")
    a("s_cbranch_scc1 L_nowo")
    a("v_lshrrev_b32 v5, 2, v2")
    a("v_mul_u32_u24 v5, 896, v5")
    a("v_and_b32 v6, 3, v2")
    a("v_lshl_add_u32 v5, v6, 4, v5")
    a("s_mul_i32 s6, s101, 229376")
    a("s_lshl_b32 s7, s100, 6")
    a("s_add_u32 s6, s6, s7")
    a(f"s_mov_b32 s7, {L_WO}")
    for p in range(16):
        a("s_mov_b32 m0, s7")
        a("s_add_u32 s7, s7, 1024")
        a("buffer_load_dwordx4 v5, s[68:71], s6 offen lds")
        a("s_add_u32 s6, s6, 14336")
    a.label("L_nowo")
    a("v_lshlrev_b32 v9, 5, v2")
    a("v_cmp_gt_u32 vcc, 8, v2")
    a("s_mov_b32 s13, 0")
    a("s_and_b64 exec, exec, vcc")
    a.label("L_pollall")
    a("buffer_load_dword v10, v9, s[72:75], 0 offen sc1")
    a("s_add_u32 s13, s13, 1")
    a("s_waitcnt vmcnt(0)")
    a("v_cmp_gt_u32 vcc, 32, v10")
    a(f"s_cmp_ge_u32 s13, {SPIN_MAX}")
    a("s_cbranch_scc1 L_pollall_done")
    a("s_sleep 4")
    a("s_cbranch_vccnz L_pollall")
    a.label("L_pollall_done")
    a("s_mov_b64 exec, s[58:59]")
    a("s_barrier")
    a("s_branch L_tail")

    a.label("L_idle")
    a("s_barrier")
    a("s_barrier")
    a("s_barrier")

    a.label("L_tail")
    a("s_cmp_ge_u32 s5, 14")
    a("s_cselect_b32 s99, 1, 0")
    a("s_mul_i32 s6, s99, 14")
    a("s_sub_u32 s100, s5, s6")
    a("s_lshl_b32 s101, s4, 1")
    a("s_add_u32 s101, s101, s99")
    a("s_cmp_eq_u32 s3, 7")
    a("s_cbranch_scc1 L_now")
    a("v_mul_u32_u24 v5, 56, v2")
    for (base, sr) in ((128, 80), (144, 84), (160, 88)):
        for i in range(3):
            a(f"buffer_load_dwordx4 v[{base+4*i}:{base+4*i+3}], v5, s[{sr}:{sr+3}], 0 offen offset:{16*i}")
        a(f"buffer_load_dwordx2 v[{base+12}:{base+13}], v5, s[{sr}:{sr+3}], 0 offen offset:48")
    a("v_mov_b32 v6, 0")
    a("buffer_load_ushort v174, v6, s[92:95], 0 offen")
    a.label("L_now")
    a("s_cmp_ge_u32 s5, 28")
    a("s_cbranch_scc1 L_stageD")
    a("s_cmp_ge_u32 s3, 4")
    a("s_cbranch_scc1 L_bar4")
    a("v_lshrrev_b32 v5, 5, v0")
    a("v_and_b32 v6, 31, v0")
    a("v_lshlrev_b32 v7, 13, v5")
    a("v_lshl_add_u32 v7, v6, 5, v7")
    a("v_lshlrev_b32 v8, 6, v5")
    a("s_lshl_b32 s10, s4, 16")
    a("s_lshl_b32 s11, s99, 10")
    a("s_add_u32 s10, s10, s11")
    a(f"s_add_u32 s10, s10, {WS_OP}")
    a("s_add_u32 s11, s10, 4096")
    a("s_lshl_b32 s12, s4, 9")
    a("s_lshl_b32 s6, s99, 3")
    a("s_add_u32 s12, s12, s6")
    a(f"s_add_u32 s12, s12, {WS_ML}")
    a("s_mov_b32 s13, 0")
    a.label("L_pollC")
    for s in range(4):
        a(f"buffer_load_dwordx2 v[{48+2*s}:{49+2*s}], v8, s[52:55], s12 offen offset:{s*16} sc1")
    for s in range(4):
        a(f"buffer_load_dwordx4 v[{16+8*s}:{19+8*s}], v7, s[52:55], s{10+(s>>1)} offen offset:{(s&1)*2048} sc1")
        a(f"buffer_load_dwordx4 v[{20+8*s}:{23+8*s}], v7, s[52:55], s{10+(s>>1)} offen offset:{(s&1)*2048+16} sc1")
    a("s_add_u32 s13, s13, 1")
    a("s_waitcnt vmcnt(0)")
    anysent(a, range(16, 56), 56)
    a("v_cmp_eq_u32 vcc, -1, v56")
    a(f"s_cmp_ge_u32 s13, {SPIN_MAX}")
    a("s_cbranch_scc1 L_pollC_done")
    a("s_cbranch_vccnz L_pollC")
    a.label("L_pollC_done")
    a("v_max_f32 v56, v48, v50")
    a("v_max3_f32 v56, v56, v52, v54")
    for s in range(4):
        a(f"v_sub_f32 v{48+2*s}, v{48+2*s}, v56")
        a(f"v_exp_f32 v{48+2*s}, v{48+2*s}")
    a("s_nop 0")
    a("v_mul_f32 v57, v48, v49")
    for s in range(1, 4):
        a(f"v_fmac_f32 v57, v{48+2*s}, v{49+2*s}")
    a("v_rcp_f32 v57, v57")
    a("s_nop 0")
    for s in range(4):
        a(f"v_mul_f32 v{48+2*s}, v{48+2*s}, v57")
    for i in range(8):
        a(f"v_mul_f32 v{60+i}, v48, v{16+i}")
        for s in range(1, 4):
            a(f"v_fmac_f32 v{60+i}, v{48+2*s}, v{16+8*s+i}")
    pack8(a, 60, 68)
    a("v_lshlrev_b32 v6, 4, v0")
    a(f"v_add_u32 v6, {L_O}, v6")
    a("ds_write_b128 v6, v[68:71]")
    a("s_waitcnt lgkmcnt(0)")
    a.label("L_bar4")
    a("s_barrier")
    a("s_cmp_ge_u32 s3, 2")
    a("s_cbranch_scc1 L_stageD")
    a("v_bfe_u32 v5, v2, 2, 2")
    a("v_lshl_add_u32 v5, v4, 3, v5")
    a("v_lshlrev_b32 v5, 6, v5")
    a("v_and_b32 v6, 3, v2")
    a("v_lshl_add_u32 v5, v6, 3, v5")
    a("s_lshl_b32 s6, s3, 5")
    a(f"s_add_u32 s6, s6, {L_WO}")
    a("v_add_u32 v5, s6, v5")
    a("v_and_b32 v6, 7, v2")
    a("v_lshlrev_b32 v6, 9, v6")
    a("v_lshl_add_u32 v6, v4, 4, v6")
    a(f"v_add_u32 v6, {L_O}, v6")
    for j in range(8):
        a(f"ds_read_b64_tr_b16 v[{16+4*j}:{17+4*j}], v5 offset:{j*2048}")
        a(f"ds_read_b64_tr_b16 v[{18+4*j}:{19+4*j}], v5 offset:{j*2048+256}")
        a(f"ds_read_b128 v[{48+4*j}:{51+4*j}], v6 offset:{j*64}")
    a("s_waitcnt lgkmcnt(0)")
    for j in range(8):
        c = "0" if j == 0 else "v[80:83]"
        a(f"v_mfma_f32_16x16x32_bf16 v[80:83], v[{16+4*j}:{19+4*j}], v[{48+4*j}:{51+4*j}], {c}")
    a("v_cmp_gt_u32 vcc, 8, v3")
    a("v_mul_u32_u24 v5, 1792, v3")
    a("v_lshl_add_u32 v5, v4, 4, v5")
    a("s_mul_i32 s6, s101, 14336")
    a("s_lshl_b32 s7, s100, 7")
    a("s_add_u32 s6, s6, s7")
    a("s_lshl_b32 s7, s3, 6")
    a("s_add_u32 s6, s6, s7")
    a(f"s_add_u32 s6, s6, {WS_P2}")
    a("s_nop 3")
    a("s_and_b64 exec, exec, vcc")
    a("buffer_store_dwordx4 v[80:83], v5, s[52:55], s6 offen sc1")
    a("s_mov_b64 exec, s[58:59]")

    a.label("L_stageD")
    a("s_lshr_b32 s96, s2, 5")
    a("s_and_b32 s97, s2, 31")
    a("s_cmp_lg_u32 s3, 7")
    a("s_cbranch_scc1 L_bar5")
    a("v_lshlrev_b32 v5, 5, v2")
    a("v_mov_b32 v6, 0x7fff0000")
    a("v_cndmask_b32 v5, v6, v5, s[56:57]")
    a("v_lshlrev_b32 v7, 4, v2")
    a("v_cndmask_b32 v7, v6, v7, s[56:57]")
    a("s_mul_i32 s6, s96, 896")
    a("buffer_load_dwordx4 v[8:11], v7, s[60:63], s6 offen")
    a("s_mov_b32 s13, 0")
    a.label("L_pollD")
    a("s_mul_i32 s6, s96, 1792")
    a(f"s_add_u32 s6, s6, {WS_P2}")
    for h in range(16):
        a(f"buffer_load_dwordx4 v[{128+8*h}:{131+8*h}], v5, s[52:55], s6 offen sc1")
        a(f"buffer_load_dwordx4 v[{132+8*h}:{135+8*h}], v5, s[52:55], s6 offen offset:16 sc1")
        a("s_add_u32 s6, s6, 14336")
    a("s_add_u32 s13, s13, 1")
    a("s_waitcnt vmcnt(0)")
    anysent(a, range(128, 256), 12)
    a("v_cmp_eq_u32 vcc, -1, v12")
    a(f"s_cmp_ge_u32 s13, {SPIN_MAX}")
    a("s_cbranch_scc1 L_pollD_done")
    a("s_cbranch_vccnz L_pollD")
    a.label("L_pollD_done")
    for h in range(1, 16):
        for i in range(8):
            a(f"v_add_f32 v{128+i}, v{128+i}, v{128+8*h+i}")
    unpack8(a, 8, 16)
    for i in range(0, 8, 2):
        bf16r2(a, 128+i, 129+i, 12)
        a(f"v_add_f32 v{16+i}, v{16+i}, v{128+i}")
        a(f"v_add_f32 v{17+i}, v{17+i}, v{129+i}")
        bf16r2(a, 16+i, 17+i, 12)
    a("v_lshlrev_b32 v5, 5, v2")
    a(f"v_add_u32 v5, {L_H}, v5")
    a("s_mov_b64 exec, s[56:57]")
    a("ds_write_b128 v5, v[16:19]")
    a("ds_write_b128 v5, v[20:23] offset:16")
    a("s_mov_b64 exec, s[58:59]")
    layernorm8(a, 16, 32, 33, 34, 56)
    for i in range(8):
        a(f"v_cndmask_b32 v{16+i}, 0, v{16+i}, s[56:57]")
    layernorm8(a, 16, 32, 33, 34, 56)
    a("s_mov_b64 exec, s[56:57]")
    a(f"ds_write_b128 v5, v[16:19] offset:{L_T-L_H}")
    a(f"ds_write_b128 v5, v[20:23] offset:{L_T-L_H+16}")
    a("s_mov_b64 exec, s[58:59]")
    a("s_waitcnt lgkmcnt(0)")
    a("s_barrier")
    a("s_branch L_done")
    a.label("L_bar5")
    a("s_waitcnt vmcnt(0)")
    for i in range(14):
        a(f"v_lshlrev_b32 v{16+2*i}, 16, v{128+i}")
        a(f"v_and_b32 v{17+2*i}, 0xffff0000, v{128+i}")
        a(f"v_lshlrev_b32 v{44+2*i}, 16, v{144+i}")
        a(f"v_and_b32 v{45+2*i}, 0xffff0000, v{144+i}")
    a("v_lshlrev_b32 v174, 16, v174")
    C1 = -2.0 * LOG2E * math.sqrt(2.0/math.pi)
    C2 = C1 * 0.044715
    a(f"v_mov_b32 v72, {hex(f2u(C1))}")
    a(f"v_mov_b32 v73, {hex(f2u(C1))}")
    a(f"v_mov_b32 v74, {hex(f2u(C2))}")
    a(f"v_mov_b32 v75, {hex(f2u(C2))}")
    a("v_mov_b32 v76, 1.0")
    a("v_mov_b32 v77, 1.0")
    a("v_mov_b32 v78, 0")
    a("v_mov_b32 v79, 0")
    a("s_mul_i32 s6, s97, 56")
    a("s_lshl_b32 s7, s3, 3")
    a("s_add_u32 s6, s6, s7")
    a(f"s_add_u32 s6, s6, {L_H}")
    a("v_mov_b32 v5, s6")
    a("s_barrier")
    a(f"ds_read_b64 v[80:81], v5 offset:{L_T-L_H}")
    a("ds_read_b64 v[82:83], v5")
    a("s_waitcnt lgkmcnt(0)")
    for i in range(14):
        U = [84, 92]; Tt = [86, 94]; C = [88, 96]
        for d in range(2):
            osel = "op_sel_hi:[0,1]" if d == 0 else "op_sel:[1,0] op_sel_hi:[1,1]"
            a(f"v_pk_mul_f32 v[{U[d]}:{U[d]+1}], v[80:81], v[{16+2*i}:{17+2*i}] {osel}")
        for d in range(2):
            bf16r2(a, U[d], U[d]+1, C[d])
        for d in range(2):
            a(f"v_pk_add_f32 v[{U[d]}:{U[d]+1}], v[{U[d]}:{U[d]+1}], v[{44+2*i}:{45+2*i}]")
        for d in range(2):
            bf16r2(a, U[d], U[d]+1, C[d])
        for d in range(2):
            a(f"v_pk_mul_f32 v[{Tt[d]}:{Tt[d]+1}], v[{U[d]}:{U[d]+1}], v[{U[d]}:{U[d]+1}]")
        for d in range(2):
            a(f"v_pk_fma_f32 v[{Tt[d]}:{Tt[d]+1}], v[{Tt[d]}:{Tt[d]+1}], v[74:75], v[72:73]")
        for d in range(2):
            a(f"v_pk_mul_f32 v[{Tt[d]}:{Tt[d]+1}], v[{Tt[d]}:{Tt[d]+1}], v[{U[d]}:{U[d]+1}]")
        for d in range(2):
            a(f"v_exp_f32 v{Tt[d]}, v{Tt[d]}")
            a(f"v_exp_f32 v{Tt[d]+1}, v{Tt[d]+1}")
        for d in range(2):
            a(f"v_pk_add_f32 v[{Tt[d]}:{Tt[d]+1}], v[{Tt[d]}:{Tt[d]+1}], v[76:77]")
        for d in range(2):
            a(f"v_rcp_f32 v{Tt[d]}, v{Tt[d]}")
            a(f"v_rcp_f32 v{Tt[d]+1}, v{Tt[d]+1}")
        for d in range(2):
            a(f"v_pk_mul_f32 v[{Tt[d]}:{Tt[d]+1}], v[{Tt[d]}:{Tt[d]+1}], v[{U[d]}:{U[d]+1}]")
        for d in range(2):
            a(f"v_cvt_pk_bf16_f32 v{C[d]}, v{Tt[d]}, v{Tt[d]+1}")
        for d in range(2):
            a(f"v_dot2_f32_bf16 v{78+d}, v{C[d]}, v{160+i}, v{78+d}")
    a("s_nop 3")
    wave_reduce2(a, "v_add_f32", 78, 84, 79, 85)
    bf16r2(a, 78, 79, 84)
    a("v_add_f32 v78, v78, v174")
    a("v_add_f32 v79, v79, v174")
    bf16r2(a, 78, 79, 84)
    a("v_add_f32 v78, v78, v82")
    a("v_add_f32 v79, v79, v83")
    a("v_cvt_pk_bf16_f32 v78, v78, v79")
    a("s_mul_i32 s6, s96, 896")
    a("s_mul_i32 s7, s97, 28")
    a("s_add_u32 s6, s6, s7")
    a("s_lshl_b32 s7, s3, 2")
    a("s_add_u32 s6, s6, s7")
    a("v_mov_b32 v5, 0")
    a("s_mov_b64 exec, 1")
    a("buffer_store_dword v78, v5, s[76:79], s6 offen")
    a.label("L_done")
    a("s_endpgm")
    a.raw(".section .rodata,\"a\"")
    a.raw(".p2align 6")
    a.raw(f".amdhsa_kernel {n}")
    a.raw("  .amdhsa_next_free_vgpr 256")
    a.raw("  .amdhsa_next_free_sgpr 102")
    a.raw("  .amdhsa_accum_offset 256")
    a.raw("  .amdhsa_group_segment_fixed_size 0")
    a.raw("  .amdhsa_kernarg_size 104")
    a.raw("  .amdhsa_user_sgpr_count 2")
    a.raw("  .amdhsa_user_sgpr_kernarg_segment_ptr 1")
    a.raw("  .amdhsa_system_sgpr_workgroup_id_x 1")
    a.raw(".end_amdhsa_kernel")

def main():
    a = Asm()
    hdr = open("cdna_kernels/%s.s.ref" % NAME).read().split("\n")
    for l in hdr:
        if l.startswith("; @launch"):
            break
        a.raw(l)
    a.raw(f"; @launch grid=(256,1,1) block=(512,1,1) lds={LDS_BYTES}")
    a.raw('.amdgcn_target "amdgcn-amd-amdhsa--gfx950"')
    gen(a)
    out = sys.argv[1] if len(sys.argv) > 1 else OUT
    open(out, "w").write(a.text())

if __name__ == "__main__":
    main()
```

```python
import sys, math, struct, os, re

NAME = "sequential_preLN__gqa_block_cached__mixer_token_mlp__decode"
KNAME = NAME + "_kernel"
OUT = "cdna_kernels/%s.s" % NAME

def f2u(x):
    return struct.unpack("<I", struct.pack("<f", x))[0]

class Asm:
    def __init__(self):
        self.lines = []
    def __call__(self, s):
        for l in s.strip("\n").split("\n"):
            l = l.strip()
            m = re.search(r"offset:(\d+)", l)
            if m and l.startswith("buffer_"):
                assert int(m.group(1)) < 4096, l
            if m and l.startswith("ds_"):
                assert int(m.group(1)) < 65536, l
            self.lines.append("    " + l)
    def label(self, l):
        self.lines.append(l + ":")
    def raw(self, s):
        self.lines.append(s)
    def text(self):
        return "\n".join(self.lines) + "\n"

WS_Q = 0
WS_OP = 0x20000
WS_ML = 0xA0000
WS_P2 = 0xB0000
WS_FL = 0xA2000
WS_BYTES = 0x400000

LOG2E = 1.4426950408889634
SCALE_C = 0.0625 * LOG2E
NT = os.environ.get("NT", " nt")

MB = 131072
L_WQ = MB
L_XN = MB + 14336
L_QL = MB + 21504
L_WO = MB
L_O = MB + 22528
L_H = MB + 26624
L_T = MB + 28672
L_F = MB + 31744
L_NEXT = MB + 31808
NSTAT = int(os.environ.get("NSTAT", "24"))
LOOK = int(os.environ.get("LOOK", "4"))
LDS_BYTES = 163840

SPIN_MAX = 1 << 18

def srd(a, d, base, nbytes):
    a(f"s_mov_b32 s{d}, s{base}")
    a(f"s_and_b32 s{d+1}, s{base+1}, 0xffff")
    a(f"s_mov_b32 s{d+2}, {nbytes}")
    a(f"s_mov_b32 s{d+3}, 0x00020000")

def wave_reduce(a, op, v, t):
    for ctl in ["quad_perm:[1,0,3,2]", "quad_perm:[2,3,0,1]", "row_half_mirror", "row_mirror"]:
        a("s_nop 1")
        a(f"{op}_dpp v{v}, v{v}, v{v} {ctl} row_mask:0xf bank_mask:0xf")
    group_reduce(a, op, v, t)

def group_reduce(a, op, v, t):
    a(f"v_mov_b32 v{t}, v{v}")
    a("s_nop 1")
    a(f"v_permlane16_swap_b32 v{v}, v{t}")
    a("s_nop 1")
    a(f"{op} v{v}, v{v}, v{t}")
    a(f"v_mov_b32 v{t}, v{v}")
    a("s_nop 1")
    a(f"v_permlane32_swap_b32 v{v}, v{t}")
    a("s_nop 1")
    a(f"{op} v{v}, v{v}, v{t}")

def wave_reduce2(a, op, v, t, w, u):
    for ctl in ["quad_perm:[1,0,3,2]", "quad_perm:[2,3,0,1]", "row_half_mirror", "row_mirror"]:
        a("s_nop 0")
        a(f"{op}_dpp v{v}, v{v}, v{v} {ctl} row_mask:0xf bank_mask:0xf")
        a(f"{op}_dpp v{w}, v{w}, v{w} {ctl} row_mask:0xf bank_mask:0xf")
    for sw in ["v_permlane16_swap_b32", "v_permlane32_swap_b32"]:
        a(f"v_mov_b32 v{t}, v{v}")
        a(f"v_mov_b32 v{u}, v{w}")
        a("s_nop 1")
        a(f"{sw} v{v}, v{t}")
        a(f"{sw} v{w}, v{u}")
        a("s_nop 1")
        a(f"{op} v{v}, v{v}, v{t}")
        a(f"{op} v{w}, v{w}, v{u}")

def bf16r(a, v):
    a(f"v_cvt_pk_bf16_f32 v{v}, v{v}, v{v}")
    a(f"v_and_b32 v{v}, 0xffff0000, v{v}")

def bf16r2(a, v, w, t):
    a(f"v_cvt_pk_bf16_f32 v{t}, v{v}, v{w}")
    a(f"v_lshlrev_b32 v{v}, 16, v{t}")
    a(f"v_and_b32 v{w}, 0xffff0000, v{t}")

def unpack8(a, src, dst):
    for i in range(4):
        a(f"v_lshlrev_b32 v{dst+2*i}, 16, v{src+i}")
        a(f"v_and_b32 v{dst+2*i+1}, 0xffff0000, v{src+i}")

def layernorm8(a, x, t0, t1, t2, smask):
    a(f"v_add_f32 v{t0}, v{x}, v{x+1}")
    for i in range(2, 8):
        a(f"v_add_f32 v{t0}, v{t0}, v{x+i}")
    wave_reduce(a, "v_add_f32", t0, t1)
    a(f"v_mul_f32 v{t0}, {hex(f2u(1.0/448))}, v{t0}")
    a(f"v_sub_f32 v{t2}, v{x}, v{t0}")
    a(f"v_mul_f32 v{t1}, v{t2}, v{t2}")
    for i in range(1, 8):
        a(f"v_sub_f32 v{t2}, v{x+i}, v{t0}")
        a(f"v_fmac_f32 v{t1}, v{t2}, v{t2}")
    a(f"v_cndmask_b32 v{t1}, 0, v{t1}, s[{smask}:{smask+1}]")
    wave_reduce(a, "v_add_f32", t1, t2)
    a(f"v_mul_f32 v{t1}, {hex(f2u(1.0/448))}, v{t1}")
    bf16r(a, t1)
    a(f"v_add_f32 v{t1}, {hex(f2u(1e-5))}, v{t1}")
    bf16r(a, t1)
    a(f"v_sqrt_f32 v{t1}, v{t1}")
    a("s_nop 0")
    bf16r(a, t1)
    a(f"v_rcp_f32 v{t1}, v{t1}")
    bf16r(a, t0)
    for i in range(0, 8, 2):
        a(f"v_sub_f32 v{x+i}, v{x+i}, v{t0}")
        a(f"v_sub_f32 v{x+i+1}, v{x+i+1}, v{t0}")
        bf16r2(a, x+i, x+i+1, t2)
        a(f"v_mul_f32 v{x+i}, v{x+i}, v{t1}")
        a(f"v_mul_f32 v{x+i+1}, v{x+i+1}, v{t1}")
        bf16r2(a, x+i, x+i+1, t2)

def layernorm8x2(a, x, y, tx, ty, smask):
    t0, t1, t2 = tx; u0, u1, u2 = ty
    a(f"v_add_f32 v{t0}, v{x}, v{x+1}")
    a(f"v_add_f32 v{u0}, v{y}, v{y+1}")
    for i in range(2, 8):
        a(f"v_add_f32 v{t0}, v{t0}, v{x+i}")
        a(f"v_add_f32 v{u0}, v{u0}, v{y+i}")
    wave_reduce2(a, "v_add_f32", t0, t1, u0, u1)
    a(f"v_mul_f32 v{t0}, {hex(f2u(1.0/448))}, v{t0}")
    a(f"v_mul_f32 v{u0}, {hex(f2u(1.0/448))}, v{u0}")
    for i in range(8):
        a(f"v_sub_f32 v{t2}, v{x+i}, v{t0}")
        a(f"v_sub_f32 v{u2}, v{y+i}, v{u0}")
        if i == 0:
            a(f"v_mul_f32 v{t1}, v{t2}, v{t2}")
            a(f"v_mul_f32 v{u1}, v{u2}, v{u2}")
        else:
            a(f"v_fmac_f32 v{t1}, v{t2}, v{t2}")
            a(f"v_fmac_f32 v{u1}, v{u2}, v{u2}")
    a(f"v_cndmask_b32 v{t1}, 0, v{t1}, s[{smask}:{smask+1}]")
    a(f"v_cndmask_b32 v{u1}, 0, v{u1}, s[{smask}:{smask+1}]")
    wave_reduce2(a, "v_add_f32", t1, t2, u1, u2)
    a(f"v_mul_f32 v{t1}, {hex(f2u(1.0/448))}, v{t1}")
    a(f"v_mul_f32 v{u1}, {hex(f2u(1.0/448))}, v{u1}")
    bf16r2(a, t1, u1, t2)
    a(f"v_add_f32 v{t1}, {hex(f2u(1e-5))}, v{t1}")
    a(f"v_add_f32 v{u1}, {hex(f2u(1e-5))}, v{u1}")
    bf16r2(a, t1, u1, t2)
    a(f"v_sqrt_f32 v{t1}, v{t1}")
    a(f"v_sqrt_f32 v{u1}, v{u1}")
    a("s_nop 0")
    bf16r2(a, t1, u1, t2)
    a(f"v_rcp_f32 v{t1}, v{t1}")
    a(f"v_rcp_f32 v{u1}, v{u1}")
    bf16r2(a, t0, u0, t2)
    for (z, m, r_) in ((x, t0, t1), (y, u0, u1)):
        for i in range(0, 8, 2):
            a(f"v_sub_f32 v{z+i}, v{z+i}, v{m}")
            a(f"v_sub_f32 v{z+i+1}, v{z+i+1}, v{m}")
            bf16r2(a, z+i, z+i+1, t2)
            a(f"v_mul_f32 v{z+i}, v{z+i}, v{r_}")
            a(f"v_mul_f32 v{z+i+1}, v{z+i+1}, v{r_}")

def pack8(a, x, dst):
    for i in range(4):
        a(f"v_cvt_pk_bf16_f32 v{dst+i}, v{x+2*i}, v{x+2*i+1}")

def anysent(a, regs, t):
    regs = list(regs)
    a(f"v_max_u32 v{t}, v{regs[0]}, v{regs[1]}")
    i = 2
    while i < len(regs):
        if i + 1 < len(regs):
            a(f"v_max3_u32 v{t}, v{t}, v{regs[i]}, v{regs[i+1]}")
            i += 2
        else:
            a(f"v_max_u32 v{t}, v{t}, v{regs[i]}")
            i += 1

QF = 16; OA = 64; KF = 128; VF = 160; KOFF = 192; VOFF = 200; KRA = 208; VRA = 212
SA = 220; PB = 224; M = 226; L = 227; AL = 228; T0 = 229; T1 = 230; T2 = 231

STAMP = int(os.environ.get("STAMP", "0"))
PRE = int(os.environ.get("PRE", "2"))
LATE0 = int(os.environ.get("LATE0", "0"))
MAP = int(os.environ.get("MAP", "1"))
def stamp(a, idx, va=233, vb=234):
    if not STAMP: return
    a("s_memrealtime s[42:43]")
    a("s_waitcnt lgkmcnt(0)")
    a(f"v_mov_b32 v{va}, s42")
    a("s_lshl_b32 s42, s2, 7")
    a(f"s_add_u32 s42, s42, {0x200000 + idx*4}")
    a(f"v_mov_b32 v{vb}, 0")
    a("s_mov_b64 exec, 1")
    a(f"buffer_store_dword v{va}, v{vb}, s[52:55], s42 offen")
    a("s_mov_b64 exec, s[58:59]")

def gen(a):
    n = KNAME
    a.raw(".text")
    a.raw(f".globl {n}")
    a.raw(".p2align 8")
    a.raw(f".type {n},@function")
    a.label(n)
    a("s_cmp_ge_u32 s2, 256")
    a("s_cbranch_scc1 L_done")
    a("s_load_dwordx16 s[16:31], s[0:1], 0")
    a("s_load_dwordx8 s[32:39], s[0:1], 64")
    a("s_load_dwordx2 s[40:41], s[0:1], 96")
    a("v_lshrrev_b32 v1, 6, v0")
    a("v_and_b32 v2, 63, v0")
    a("v_and_b32 v3, 15, v2")
    a("v_readfirstlane_b32 s3, v1")
    a("v_lshrrev_b32 v4, 4, v2")
    if MAP == 0:
        a("s_and_b32 s4, s2, 7")
        a("s_lshr_b32 s5, s2, 3")
    else:
        a("s_lshr_b32 s4, s2, 5")
        a("s_and_b32 s5, s2, 31")
    a("s_lshr_b32 s96, s5, 2")
    a("s_and_b32 s97, s5, 3")
    a("s_lshl_b32 s98, s4, 5")
    a("s_add_u32 s98, s98, s5")
    a("v_cmp_gt_u32 s[56:57], 56, v2")
    a("s_mov_b64 s[58:59], exec")
    a("s_waitcnt lgkmcnt(0)")
    srd(a, 44, 18, 0x10000000)
    srd(a, 48, 20, 0x10000000)
    srd(a, 52, 40, WS_BYTES)
    srd(a, 60, 16, 7168)
    srd(a, 64, 22, 448*4096*2)
    srd(a, 68, 24, 4096*448*2)
    srd(a, 72, 38, 256)
    srd(a, 76, 36, 7168)
    srd(a, 80, 28, 3584)
    srd(a, 84, 30, 3584)
    srd(a, 88, 32, 3584)
    srd(a, 92, 34, 4)
    a("s_cmp_ge_u32 s3, 4")
    a("s_cbranch_scc1 L_helpers")

    if STAMP:
        a("s_cmp_lg_u32 s3, 0")
        a("s_cbranch_scc1 L_st0")
        stamp(a, 0)
        a.label("L_st0")
    a("v_lshrrev_b32 v7, 5, v2")
    a("v_and_b32 v8, 31, v2")
    for p in range(8):
        a(f"v_add_u32 v5, {2*p}, v7")
        a("v_xor_b32 v6, v8, v5")
        a("v_lshlrev_b32 v6, 4, v6")
        a(f"v_lshl_add_u32 v{KOFF+p}, v7, 9, v6")
        a(f"v_add_u32 v{KOFF+p}, {p*4096-(p&3)*1024}, v{KOFF+p}")
        a("v_and_b32 v5, 7, v5")
        a("v_lshlrev_b32 v5, 1, v5")
        a("v_xor_b32 v6, v8, v5")
        a("v_lshlrev_b32 v6, 4, v6")
        a(f"v_lshl_add_u32 v{VOFF+p}, v7, 9, v6")
        a(f"v_add_u32 v{VOFF+p}, {p*4096-(p&3)*1024}, v{VOFF+p}")
    a("s_lshl_b32 s8, s3, 15")
    a("s_lshl_b32 s20, s96, 3")
    a("s_add_u32 s20, s20, s4")
    a("s_lshl_b32 s20, s20, 22")
    a("s_lshl_b32 s6, s3, 10")
    a("s_add_u32 s20, s20, s6")
    a(f"s_mul_i32 s6, s97, {NSTAT*32768}")
    a("s_add_u32 s9, s20, s6")

    def issue(kind, slot):
        srd_ = "s[44:47]" if kind == "K" else "s[48:51]"
        so = "s9"
        off = KOFF if kind == "K" else VOFF
        a(f"s_add_u32 s11, s8, {slot*8192}")
        a("s_mov_b32 m0, s11")
        a(f"s_add_u32 s12, s8, {slot*8192+4096}")
        for p in range(4):
            a(f"buffer_load_dwordx4 v{off+p}, {srd_}, {so} offen offset:{p*1024}{NT} lds")
        a("s_mov_b32 m0, s12")
        a("s_nop 0")
        for p in range(4):
            a(f"buffer_load_dwordx4 v{off+4+p}, {srd_}, {so} offen offset:{p*1024}{NT} lds")

    def ldsspin(word, target, lab):
        a(f"v_mov_b32 v5, {L_F + word*4}")
        a.label(lab)
        a("ds_read_b32 v6, v5")
        a("s_waitcnt lgkmcnt(0)")
        a("v_readfirstlane_b32 s6, v6")
        a(f"s_cmp_ge_u32 s6, {target}")
        a(f"s_cbranch_scc1 {lab}_d")
        a("s_sleep 1")
        a(f"s_branch {lab}")
        a.label(lab + "_d")

    units = [("K", 0), ("V", 1), ("K", 2), ("V", 3)]
    a("s_barrier")
    assert PRE == 2
    for u in units[:2]: issue(*u)
    a("s_add_u32 s9, s9, 32768")
    for jj in range(4):
        a(f"v_add_u32 v5, {4*jj}, v4")
        a("v_xor_b32 v5, v5, v3")
        a("v_lshlrev_b32 v5, 4, v5")
        a(f"v_lshl_add_u32 v5, v3, 9, v5")
        a(f"v_add_u32 v{KRA+jj}, s8, v5")
    a("v_bfe_u32 v5, v2, 2, 2")
    a("v_lshl_add_u32 v5, v4, 2, v5")
    a("v_and_b32 v6, 7, v5")
    a("v_and_b32 v7, 3, v2")
    a("v_lshlrev_b32 v7, 3, v7")
    a("v_lshl_add_u32 v7, v5, 9, v7")
    a("v_add_u32 v7, s8, v7")
    for nn in range(8):
        a(f"v_xor_b32 v5, {nn}, v6")
        a(f"v_lshl_add_u32 v{VRA+nn}, v5, 5, v7")
    for i in range(64):
        a(f"v_mov_b32 v{OA+i}, 0")
    a(f"v_mov_b32 v{M}, 0xf149f2ca")
    a(f"v_mov_b32 v{L}, 0")
    a(f"s_mov_b32 s14, {hex(f2u(SCALE_C))}")
    if PRE < 4:
        ldsspin(1, 1, "L_spin1")
        for u in units[PRE:]: issue(*u)
    ldsspin(2, 1, "L_spin2")
    a("v_and_b32 v5, 1, v2")
    a("v_lshlrev_b32 v5, 9, v5")
    a("v_lshl_add_u32 v5, v4, 4, v5")
    a(f"v_add_u32 v5, {L_QL}, v5")
    for j in range(8):
        a(f"ds_read_b128 v[{QF+4*j}:{QF+4*j+3}], v5 offset:{j*64}")
    a("s_waitcnt lgkmcnt(0)")
    a(f"v_mov_b32 v235, {L_NEXT+8}")
    a(f"v_mov_b32 v238, {L_F+12}")

    def step(kslot, vslot, do_issue, wk, wv, tag):
        a(f"s_waitcnt vmcnt({wk})")
        a("v_mov_b32 v237, s13")
        a("ds_read_b32 v236, v235")
        a("ds_write_b32 v238, v237")
        for j in range(8):
            a(f"ds_read_b128 v[{KF+4*j}:{KF+4*j+3}], v{KRA+(j&3)} offset:{kslot*8192 + (j>>2)*256}")
        for j in range(8):
            a(f"s_waitcnt lgkmcnt({7-j})")
            c = "0" if j == 0 else f"v[{SA}:{SA+3}]"
            a(f"v_mfma_f32_16x16x32_bf16 v[{SA}:{SA+3}], v[{KF+4*j}:{KF+4*j+3}], v[{QF+4*j}:{QF+4*j+3}], {c}")
        a("v_readfirstlane_b32 s6, v236")
        a("s_cmp_lg_u32 s6, -1")
        a(f"s_cbranch_scc1 L_nx_{tag}")
        a.label(f"L_nxs_{tag}")
        a("s_sleep 1")
        a("ds_read_b32 v236, v235")
        a("s_waitcnt lgkmcnt(0)")
        a("v_readfirstlane_b32 s6, v236")
        a("s_cmp_eq_u32 s6, -1")
        a(f"s_cbranch_scc1 L_nxs_{tag}")
        a.label(f"L_nx_{tag}")
        a("v_add_u32 v235, 4, v235")
        a("s_lshl_b32 s7, s6, 15")
        a("s_add_u32 s9, s20, s7")
        a("s_add_u32 s7, s13, 2")
        a("s_min_u32 s7, s7, s15")
        a("s_cmp_ge_u32 s6, 128")
        a("s_cselect_b32 s9, 0x7ff00000, s9")
        a("s_cselect_b32 s15, s7, s15")
        issue("K", kslot)
        a(f"v_cvt_pk_bf16_f32 v{T0}, v{SA}, v{SA+1}")
        a(f"v_cvt_pk_bf16_f32 v{T1}, v{SA+2}, v{SA+3}")
        a(f"v_lshlrev_b32 v{SA}, 16, v{T0}")
        a(f"v_and_b32 v{SA+1}, 0xffff0000, v{T0}")
        a(f"v_lshlrev_b32 v{SA+2}, 16, v{T1}")
        a(f"v_and_b32 v{SA+3}, 0xffff0000, v{T1}")
        a(f"v_max3_f32 v{T0}, v{SA}, v{SA+1}, v{SA+2}")
        a(f"v_max_f32 v{T0}, v{T0}, v{SA+3}")
        group_reduce(a, "v_max_f32", T0, T1)
        a(f"v_mul_f32 v{T0}, s14, v{T0}")
        a(f"v_max_f32 v{T0}, v{T0}, v{M}")
        a(f"v_sub_f32 v{AL}, v{M}, v{T0}")
        a(f"v_exp_f32 v{AL}, v{AL}")
        a(f"v_mov_b32 v{M}, v{T0}")
        for r in range(4):
            a(f"v_fma_f32 v{SA+r}, v{SA+r}, s14, -v{T0}")
        for r in range(4):
            a(f"v_exp_f32 v{SA+r}, v{SA+r}")
        a(f"v_cmp_neq_f32 vcc, 1.0, v{AL}")
        a(f"v_cvt_pk_bf16_f32 v{PB}, v{SA}, v{SA+1}")
        a(f"v_cvt_pk_bf16_f32 v{PB+1}, v{SA+2}, v{SA+3}")
        a(f"v_add_f32 v{T1}, v{SA}, v{SA+1}")
        a(f"v_add_f32 v{T2}, v{SA+2}, v{SA+3}")
        a(f"v_add_f32 v{T1}, v{T1}, v{T2}")
        a(f"v_fma_f32 v{L}, v{L}, v{AL}, v{T1}")
        a(f"s_cbranch_vccz L_nors_{tag}")
        for i in range(64):
            a(f"v_mul_f32 v{OA+i}, v{OA+i}, v{AL}")
        a.label(f"L_nors_{tag}")
        a(f"s_waitcnt vmcnt({wv})")
        for nn in range(16):
            a(f"ds_read_b64_tr_b16 v[{VF+2*nn}:{VF+2*nn+1}], v{VRA+(nn&7)} offset:{vslot*8192 + (nn>>3)*256}")
        for nn in range(16):
            a(f"s_waitcnt lgkmcnt({15-nn})")
            a(f"v_mfma_f32_16x16x16_bf16 v[{OA+4*nn}:{OA+4*nn+3}], v[{VF+2*nn}:{VF+2*nn+1}], v[{PB}:{PB+1}], v[{OA+4*nn}:{OA+4*nn+3}]")
        if do_issue:
            issue("V", vslot)

    a("s_mov_b32 s13, 0")
    a("s_mov_b32 s15, 1000")
    a.label("L_loop")
    step(0, 1, True, 24, 24, "a")
    a("s_add_u32 s13, s13, 1")
    a("s_cmp_ge_u32 s13, s15")
    a("s_cbranch_scc1 L_loop_done")
    step(2, 3, True, 24, 24, "b")
    a("s_add_u32 s13, s13, 1")
    a("s_cmp_lt_u32 s13, s15")
    a("s_cbranch_scc1 L_loop")
    a.label("L_loop_done")
    a("s_waitcnt vmcnt(0)")
    if STAMP:
        a("s_cmp_lg_u32 s3, 0")
        a("s_cbranch_scc1 L_st6")
        stamp(a, 6)
        a.label("L_st6")
    group_reduce(a, "v_add_f32", L, T1)
    a("s_nop 7")
    a("v_cmp_gt_u32 vcc, 2, v3")
    a("v_lshlrev_b32 v5, 10, v3")
    a("v_lshl_add_u32 v5, v4, 4, v5")
    a("v_add_u32 v5, s8, v5")
    a("s_and_b64 exec, exec, vcc")
    for nn in range(16):
        a(f"ds_write_b128 v5, v[{OA+4*nn}:{OA+4*nn+3}] offset:{nn*64}")
    a("v_cmp_gt_u32 vcc, 2, v2")
    a("v_lshlrev_b32 v5, 3, v2")
    a("v_add_u32 v5, s8, v5")
    a("s_and_b64 exec, exec, vcc")
    a(f"ds_write_b64 v5, v[{M}:{M+1}] offset:2048")
    a("s_mov_b64 exec, s[58:59]")
    a("s_waitcnt lgkmcnt(0)")
    a("s_barrier")
    a("v_lshrrev_b32 v5, 7, v0")
    a("v_lshlrev_b32 v6, 3, v5")
    a("v_lshlrev_b32 v7, 3, v0")
    a("v_add_u32 v9, 0x10000, v6")
    a("v_add_u32 v10, 0x10000, v7")
    for w in range(4):
        a(f"ds_read_b64 v[{16+2*w}:{17+2*w}], v{6 if w<2 else 9} offset:{(w&1)*32768+2048}")
        a(f"ds_read_b64 v[{24+2*w}:{25+2*w}], v{7 if w<2 else 10} offset:{(w&1)*32768}")
    a("s_waitcnt lgkmcnt(0)")
    a("v_max_f32 v32, v16, v18")
    a("v_max3_f32 v32, v32, v20, v22")
    for w in range(4):
        a(f"v_sub_f32 v{16+2*w}, v{16+2*w}, v32")
        a(f"v_exp_f32 v{16+2*w}, v{16+2*w}")
    a("s_nop 0")
    a("v_mul_f32 v33, v16, v17")
    a("v_mul_f32 v34, v16, v24")
    a("v_mul_f32 v35, v16, v25")
    for w in range(1, 4):
        a(f"v_fmac_f32 v33, v{16+2*w}, v{17+2*w}")
        a(f"v_fmac_f32 v34, v{16+2*w}, v{24+2*w}")
        a(f"v_fmac_f32 v35, v{16+2*w}, v{25+2*w}")
    a("s_lshl_b32 s6, s98, 11")
    a(f"s_add_u32 s6, s6, {WS_OP}")
    a("buffer_store_dwordx2 v[34:35], v7, s[52:55], s6 offen sc1")
    a("v_and_b32 v8, 127, v0")
    a("v_cmp_eq_u32 vcc, 0, v8")
    a("s_lshl_b32 s6, s98, 4")
    a(f"s_add_u32 s6, s6, {WS_ML}")
    a("s_and_b64 exec, exec, vcc")
    a("buffer_store_dwordx2 v[32:33], v6, s[52:55], s6 offen sc1")
    a("s_mov_b64 exec, s[58:59]")
    a("s_branch L_tail")

    a.label("L_helpers")
    a("s_memrealtime s[16:17]")
    a("v_lshlrev_b32 v5, 4, v2")
    a("v_mov_b32 v6, 0x7fff0000")
    a("v_cndmask_b32 v5, v6, v5, s[56:57]")
    a("s_sub_u32 s6, s3, 4")
    a("s_mul_i32 s15, s6, 1792")
    a("buffer_load_dwordx4 v[8:11], v5, s[60:63], s15 offen")
    a("buffer_load_dwordx4 v[12:15], v5, s[60:63], s15 offen offset:896")
    a("s_cmp_ge_u32 s5, 14")
    a("s_cselect_b32 s99, 1, 0")
    a("s_mul_i32 s6, s99, 14")
    a("s_sub_u32 s100, s5, s6")
    a("s_lshl_b32 s101, s4, 1")
    a("s_add_u32 s101, s101, s99")
    a("s_cmp_lg_u32 s3, 4")
    a("s_cbranch_scc1 L_h_not4")
    a("v_lshrrev_b32 v5, 1, v2")
    a("v_lshlrev_b32 v5, 13, v5")
    a("v_and_b32 v6, 1, v2")
    a("v_lshl_add_u32 v5, v6, 4, v5")
    a("s_lshl_b32 s6, s98, 5")
    a(f"s_mov_b32 s7, {L_WQ}")
    for p in range(14):
        a("s_mov_b32 m0, s7")
        a("s_add_u32 s7, s7, 1024")
        a("buffer_load_dwordx4 v5, s[64:67], s6 offen lds")
        a("s_add_u32 s6, s6, 0x40000")
    a(f"v_mov_b32 v5, {L_F}")
    for i in range(4):
        a(f"v_mov_b32 v{16+i}, 0")
    a("ds_write_b128 v5, v[16:19]")
    a(f"s_mul_i32 s6, s97, {NSTAT}")
    a("v_add_u32 v16, s6, v2")
    a(f"v_cmp_gt_u32 vcc, {NSTAT}, v2")
    a("v_lshlrev_b32 v5, 2, v2")
    a(f"v_add_u32 v5, {L_NEXT}, v5")
    a("v_cndmask_b32 v16, -1, v16, vcc")
    a("ds_write_b32 v5, v16")
    a("s_branch L_h_bar0")
    a.label("L_h_not4")
    a("s_cmp_lg_u32 s3, 6")
    a("s_cbranch_scc1 L_h_bar0")
    for i in range(4):
        a(f"v_mov_b32 v{16+i}, -1")
    a("v_lshlrev_b32 v6, 4, v2")
    a("s_lshl_b32 s6, s98, 11")
    a(f"s_add_u32 s6, s6, {WS_OP}")
    a("buffer_store_dwordx4 v[16:19], v6, s[52:55], s6 offen sc1")
    a("buffer_store_dwordx4 v[16:19], v6, s[52:55], s6 offen offset:1024 sc1")
    a("s_lshl_b32 s6, s98, 4")
    a(f"s_add_u32 s6, s6, {WS_ML}")
    a("s_mov_b64 exec, 1")
    a("buffer_store_dwordx4 v[16:19], v6, s[52:55], s6 offen sc1")
    a("s_mov_b64 exec, s[58:59]")
    a("s_cmp_ge_u32 s5, 28")
    a("s_cbranch_scc1 L_h_bar0")
    a("v_lshrrev_b32 v6, 3, v2")
    a("v_mul_u32_u24 v6, 1792, v6")
    a("v_and_b32 v7, 7, v2")
    a("v_lshl_add_u32 v6, v7, 4, v6")
    a("s_mul_i32 s6, s101, 14336")
    a("s_lshl_b32 s7, s100, 7")
    a("s_add_u32 s6, s6, s7")
    a(f"s_add_u32 s6, s6, {WS_P2}")
    a("buffer_store_dwordx4 v[16:19], v6, s[52:55], s6 offen sc1")
    a("s_lshl_b32 s6, s98, 2")
    a(f"s_add_u32 s6, s6, {WS_FL}")
    a("v_mov_b32 v6, 0")
    a("s_mov_b64 exec, 1")
    a("buffer_store_dword v16, v6, s[52:55], s6 offen sc1")
    a("s_mov_b64 exec, s[58:59]")
    a.label("L_h_bar0")
    a("s_waitcnt lgkmcnt(0)")
    if not LATE0: a("s_barrier")
    a("s_lshr_b64 s[16:17], s[16:17], 10")
    a("s_cmp_eq_u32 s3, 4")
    a("s_cbranch_scc1 L_h_w14")
    a("s_cmp_eq_u32 s3, 6")
    a("s_cbranch_scc1 L_h_w3")
    a("s_waitcnt vmcnt(0)")
    a("s_branch L_h_ln")
    a.label("L_h_w14")
    a(f"s_waitcnt vmcnt({0 if LATE0 else 14})")
    a("s_branch L_h_ln")
    a.label("L_h_w3")
    a("s_waitcnt vmcnt(3)")
    a.label("L_h_ln")
    if LATE0: a("s_barrier")
    unpack8(a, 8, 16)
    unpack8(a, 12, 24)
    layernorm8x2(a, 16, 24, (32, 33, 34), (35, 36, 37), 56)
    pack8(a, 16, 8)
    pack8(a, 24, 12)
    a("v_lshlrev_b32 v5, 4, v2")
    a(f"s_add_u32 s6, s15, {L_XN}")
    a("v_add_u32 v5, s6, v5")
    a("s_mov_b64 exec, s[56:57]")
    a("ds_write_b128 v5, v[8:11]")
    a("ds_write_b128 v5, v[12:15] offset:896")
    a("s_mov_b64 exec, 1")
    a(f"v_mov_b32 v5, {L_F}")
    a("v_mov_b32 v6, 1")
    a("s_waitcnt lgkmcnt(0)")
    a("ds_add_u32 v5, v6")
    a("s_mov_b64 exec, s[58:59]")
    a("s_lshl_b32 s7, s4, 2")
    a("v_mov_b32 v9, s7")
    a("v_mov_b32 v8, 1")
    a("s_cmp_eq_u32 s3, 4")
    a("s_cbranch_scc1 L_service")
    a("s_cmp_eq_u32 s3, 5")
    a("s_cbranch_scc1 L_w5")
    a("s_cmp_lg_u32 s3, 6")
    a("s_cbranch_scc1 L_h_bar3")
    a("s_waitcnt vmcnt(0)")
    a("s_mov_b64 exec, 1")
    a("buffer_atomic_add v8, v9, s[72:75], 0 offen sc1")
    a("s_mov_b64 exec, s[58:59]")
    a("s_branch L_h_bar3")
    a.label("L_w5")
    a("v_lshlrev_b32 v9, 2, v2")
    a("v_cmp_gt_u32 vcc, 8, v2")
    a("s_mov_b32 s13, 0")
    a("s_and_b64 exec, exec, vcc")
    a.label("L_pollall")
    a("s_sleep 64")
    a("buffer_load_dword v10, v9, s[72:75], 0 offen sc1")
    a("s_add_u32 s13, s13, 1")
    a("s_waitcnt vmcnt(0)")
    a("v_cmp_gt_u32 vcc, 64, v10")
    a(f"s_cmp_ge_u32 s13, {SPIN_MAX}")
    a("s_cbranch_scc1 L_pollall_done")
    a("s_cbranch_vccnz L_pollall")
    a.label("L_pollall_done")
    a("s_mov_b64 exec, s[58:59]")
    stamp(a, 12, 236, 237)
    a.label("L_h_bar3")
    a("s_barrier")
    a("s_branch L_tail")

    a.label("L_service")
    a("v_bfe_u32 v6, v2, 2, 2")
    a("v_lshl_add_u32 v6, v4, 3, v6")
    a("v_lshlrev_b32 v6, 5, v6")
    a("v_and_b32 v7, 3, v2")
    a("v_lshl_add_u32 v6, v7, 3, v6")
    a(f"v_add_u32 v10, {L_WQ}, v6")
    a("v_and_b32 v7, 7, v2")
    a("v_mul_u32_u24 v7, 896, v7")
    a("v_lshl_add_u32 v7, v4, 4, v7")
    a(f"v_add_u32 v7, {L_XN}, v7")
    a("s_waitcnt vmcnt(0)")
    stamp(a, 1, 236, 237)
    for j in range(14):
        a(f"ds_read_b64_tr_b16 v[{40+4*j}:{41+4*j}], v10 offset:{j*1024}")
        a(f"ds_read_b64_tr_b16 v[{42+4*j}:{43+4*j}], v10 offset:{j*1024+128}")
    ldsspin(0, 4, "L_spin0")
    stamp(a, 2, 236, 237)
    for j in range(14):
        a(f"ds_read_b128 v[{100+4*j}:{103+4*j}], v7 offset:{j*64}")
    for j in range(14):
        a(f"s_waitcnt lgkmcnt({13-j})")
        c = "0" if j == 0 else "v[32:35]"
        a(f"v_mfma_f32_16x16x32_bf16 v[32:35], v[{40+4*j}:{43+4*j}], v[{100+4*j}:{103+4*j}], {c}")
    a("v_cmp_gt_u32 vcc, 8, v3")
    a("v_lshlrev_b32 v5, 14, v3")
    a("v_lshl_add_u32 v5, v4, 4, v5")
    a("s_lshl_b32 s6, s98, 6")
    a("v_mov_b32 v37, s16")
    a("v_mov_b32 v39, s16")
    a(f"v_mov_b32 v6, {L_F+4}")
    a("s_sub_u32 s17, s16, 2")
    a("s_nop 1")
    a("v_cvt_pk_bf16_f32 v36, v32, v33")
    a("v_cvt_pk_bf16_f32 v38, v34, v35")
    a("s_and_b64 exec, exec, vcc")
    a(f"buffer_store_dwordx4 v[36:39], v5, s[52:55], s6 offen offset:{WS_Q} sc1")
    a("s_mov_b64 exec, 1")
    a("ds_write_b32 v6, v8")
    a("s_mov_b64 exec, s[58:59]")
    stamp(a, 3, 236, 237)
    a("v_lshlrev_b32 v5, 5, v2")
    a("s_lshl_b32 s6, s96, 14")
    a("s_lshl_b32 s7, s4, 11")
    a("s_add_u32 s15, s6, s7")
    a("s_mov_b32 s13, 0")
    a.label("L_pollq")
    a(f"buffer_load_dwordx4 v[12:15], v5, s[52:55], s15 offen offset:{WS_Q} sc1")
    a(f"buffer_load_dwordx4 v[16:19], v5, s[52:55], s15 offen offset:{WS_Q+16} sc1")
    a("s_waitcnt vmcnt(0)")
    a("s_cmp_lg_u32 s13, 0")
    a("s_cbranch_scc1 L_pq_noat")
    a("s_mov_b64 exec, 1")
    a("buffer_atomic_add v8, v9, s[72:75], 0 offen sc1")
    a("s_mov_b64 exec, s[58:59]")
    a.label("L_pq_noat")
    a("s_add_u32 s13, s13, 1")
    a("v_subrev_u32 v20, s17, v13")
    a("v_subrev_u32 v21, s17, v15")
    a("v_subrev_u32 v22, s17, v17")
    a("v_subrev_u32 v23, s17, v19")
    a("v_max_u32 v20, v20, v21")
    a("v_max3_u32 v20, v20, v22, v23")
    a("v_cmp_lt_u32 vcc, 4, v20")
    a("s_cbranch_vccz L_pollq_done")
    a("s_cmp_lt_u32 s13, 2048")
    a("s_cbranch_scc1 L_pollq")
    a("buffer_load_dword v10, v9, s[72:75], 0 offen sc1")
    a("s_waitcnt vmcnt(0)")
    a("v_readfirstlane_b32 s6, v10")
    a(f"s_cmp_ge_u32 s13, {SPIN_MAX}")
    a("s_cbranch_scc1 L_pollq_done")
    a("s_cmp_ge_u32 s6, 64")
    a("s_cbranch_scc0 L_pollq")
    a(f"buffer_load_dwordx4 v[12:15], v5, s[52:55], s15 offen offset:{WS_Q} sc1")
    a(f"buffer_load_dwordx4 v[16:19], v5, s[52:55], s15 offen offset:{WS_Q+16} sc1")
    a("s_waitcnt vmcnt(0)")
    a.label("L_pollq_done")
    stamp(a, 4, 236, 237)
    a("v_mov_b32 v13, v14")
    a("v_mov_b32 v14, v16")
    a("v_mov_b32 v15, v18")
    a("v_lshlrev_b32 v5, 4, v2")
    a(f"v_add_u32 v5, {L_QL}, v5")
    a(f"v_mov_b32 v6, {L_F+8}")
    a("ds_write_b128 v5, v[12:15]")
    a("s_waitcnt lgkmcnt(0)")
    a("s_mov_b64 exec, 1")
    a("ds_write_b32 v6, v8")
    a("s_mov_b64 exec, s[58:59]")
    stamp(a, 5, 236, 237)
    a("s_cmp_ge_u32 s5, 28")
    a("s_cbranch_scc1 L_nowo")
    a("v_lshrrev_b32 v5, 2, v2")
    a("v_mul_u32_u24 v5, 896, v5")
    a("v_and_b32 v6, 3, v2")
    a("v_lshl_add_u32 v5, v6, 4, v5")
    a("s_mul_i32 s6, s101, 229376")
    a("s_lshl_b32 s7, s100, 6")
    a("s_add_u32 s6, s6, s7")
    a(f"s_mov_b32 s7, {L_WO}")
    for p in range(16):
        a("s_mov_b32 m0, s7")
        a("s_add_u32 s7, s7, 1024")
        a("buffer_load_dwordx4 v5, s[68:71], s6 offen lds")
        a("s_add_u32 s6, s6, 14336")
    a.label("L_nowo")
    a("s_lshl_b32 s6, s4, 3")
    a("s_add_u32 s6, s6, s96")
    a("s_lshr_b32 s7, s6, 2")
    a("s_lshl_b32 s7, s7, 2")
    a("s_add_u32 s7, s7, 64")
    a("v_mov_b32 v9, s7")
    a("s_and_b32 s21, s6, 3")
    a("s_lshl_b32 s21, s21, 3")
    a("s_lshl_b32 s22, 1, s21")
    a(f"s_mov_b32 s23, {NSTAT}")
    a(f"v_mov_b32 v11, {L_F+12}")
    a.label("L_dyn")
    a("ds_read_b32 v6, v11")
    a("s_waitcnt lgkmcnt(0)")
    a("v_readfirstlane_b32 s6, v6")
    a(f"s_add_u32 s6, s6, {LOOK}")
    a("s_cmp_ge_u32 s6, s23")
    a("s_cbranch_scc1 L_dyn_go")
    a("s_sleep 4")
    a("s_branch L_dyn")
    a.label("L_dyn_go")
    a("v_mov_b32 v10, s22")
    a("s_mov_b64 exec, 1")
    a("buffer_atomic_add v10, v9, s[72:75], 0 offen sc0 sc1")
    a("s_waitcnt vmcnt(0)")
    a("s_mov_b64 exec, s[58:59]")
    a("v_readfirstlane_b32 s6, v10")
    a("s_lshr_b32 s6, s6, s21")
    a("s_and_b32 s6, s6, 0xff")
    a(f"s_add_u32 s7, s6, {4*NSTAT}")
    a(f"s_cmp_lt_u32 s6, {128-4*NSTAT}")
    a("s_cselect_b32 s7, s7, 0x1000")
    a("s_lshl_b32 s6, s23, 2")
    a(f"s_add_u32 s6, s6, {L_NEXT}")
    a("v_mov_b32 v12, s6")
    a("v_mov_b32 v13, s7")
    a("ds_write_b32 v12, v13")
    a("s_add_u32 s23, s23, 1")
    a("s_cmp_lt_u32 s7, 128")
    a("s_cbranch_scc1 L_dyn")
    a("v_add_u32 v12, 4, v12")
    a("ds_write_b32 v12, v13")
    a("s_waitcnt vmcnt(0) lgkmcnt(0)")
    a("s_barrier")
    stamp(a, 7, 236, 237)

    a.label("L_tail")
    a("s_cmp_ge_u32 s5, 14")
    a("s_cselect_b32 s99, 1, 0")
    a("s_mul_i32 s6, s99, 14")
    a("s_sub_u32 s100, s5, s6")
    a("s_lshl_b32 s101, s4, 1")
    a("s_add_u32 s101, s101, s99")
    a("s_cmp_eq_u32 s3, 7")
    a("s_cbranch_scc1 L_now")
    a("v_mul_u32_u24 v5, 56, v2")
    for (base, sr) in ((128, 80), (144, 84), (160, 88)):
        for i in range(3):
            a(f"buffer_load_dwordx4 v[{base+4*i}:{base+4*i+3}], v5, s[{sr}:{sr+3}], 0 offen offset:{16*i}")
        a(f"buffer_load_dwordx2 v[{base+12}:{base+13}], v5, s[{sr}:{sr+3}], 0 offen offset:48")
    a("v_mov_b32 v6, 0")
    a("buffer_load_ushort v174, v6, s[92:95], 0 offen")
    a.label("L_now")
    a("s_cmp_ge_u32 s5, 28")
    a("s_cbranch_scc1 L_stageD")
    a("s_cmp_ge_u32 s3, 4")
    a("s_cbranch_scc1 L_bar4")
    a("v_lshrrev_b32 v5, 5, v0")
    a("v_and_b32 v6, 31, v0")
    a("v_lshlrev_b32 v7, 13, v5")
    a("v_lshl_add_u32 v7, v6, 5, v7")
    a("v_lshlrev_b32 v8, 6, v5")
    a("s_lshl_b32 s10, s4, 16")
    a("s_lshl_b32 s11, s99, 10")
    a("s_add_u32 s10, s10, s11")
    a(f"s_add_u32 s10, s10, {WS_OP}")
    a("s_add_u32 s11, s10, 4096")
    a("s_lshl_b32 s12, s4, 9")
    a("s_lshl_b32 s6, s99, 3")
    a("s_add_u32 s12, s12, s6")
    a(f"s_add_u32 s12, s12, {WS_ML}")
    a("v_and_b32 v9, 31, v2")
    a("v_lshlrev_b32 v9, 4, v9")
    a("s_lshl_b32 s15, s4, 9")
    a(f"s_add_u32 s15, s15, {WS_ML}")
    a("s_mov_b32 s13, 0")
    a.label("L_pollC0")
    a("buffer_load_dwordx4 v[16:19], v9, s[52:55], s15 offen sc1")
    a("s_add_u32 s13, s13, 1")
    a("s_waitcnt vmcnt(0)")
    anysent(a, range(16, 20), 56)
    a("v_cmp_eq_u32 vcc, -1, v56")
    a(f"s_cmp_ge_u32 s13, {SPIN_MAX}")
    a("s_cbranch_scc1 L_pollC")
    a("s_cbranch_vccz L_pollC")
    a("s_sleep 8")
    a("s_branch L_pollC0")
    a.label("L_pollC")
    for s in range(4):
        a(f"buffer_load_dwordx2 v[{48+2*s}:{49+2*s}], v8, s[52:55], s12 offen offset:{s*16} sc1")
    for s in range(4):
        a(f"buffer_load_dwordx4 v[{16+8*s}:{19+8*s}], v7, s[52:55], s{10+(s>>1)} offen offset:{(s&1)*2048} sc1")
        a(f"buffer_load_dwordx4 v[{20+8*s}:{23+8*s}], v7, s[52:55], s{10+(s>>1)} offen offset:{(s&1)*2048+16} sc1")
    a("s_add_u32 s13, s13, 1")
    a("s_waitcnt vmcnt(0)")
    anysent(a, range(16, 56), 56)
    a("v_cmp_eq_u32 vcc, -1, v56")
    a(f"s_cmp_ge_u32 s13, {SPIN_MAX}")
    a("s_cbranch_scc1 L_pollC_done")
    a("s_cbranch_vccz L_pollC_done")
    a("s_sleep 4")
    a("s_branch L_pollC")
    a.label("L_pollC_done")
    if STAMP:
        a("s_cmp_lg_u32 s3, 0")
        a("s_cbranch_scc1 L_st8")
        stamp(a, 8)
        a.label("L_st8")
    a("v_max_f32 v56, v48, v50")
    a("v_max3_f32 v56, v56, v52, v54")
    for s in range(4):
        a(f"v_sub_f32 v{48+2*s}, v{48+2*s}, v56")
        a(f"v_exp_f32 v{48+2*s}, v{48+2*s}")
    a("s_nop 0")
    a("v_mul_f32 v57, v48, v49")
    for s in range(1, 4):
        a(f"v_fmac_f32 v57, v{48+2*s}, v{49+2*s}")
    a("v_rcp_f32 v57, v57")
    a("s_nop 0")
    for s in range(4):
        a(f"v_mul_f32 v{48+2*s}, v{48+2*s}, v57")
    for i in range(8):
        a(f"v_mul_f32 v{60+i}, v48, v{16+i}")
        for s in range(1, 4):
            a(f"v_fmac_f32 v{60+i}, v{48+2*s}, v{16+8*s+i}")
    pack8(a, 60, 68)
    a("v_lshlrev_b32 v6, 4, v0")
    a(f"v_add_u32 v6, {L_O}, v6")
    a("ds_write_b128 v6, v[68:71]")
    a("s_waitcnt lgkmcnt(0)")
    a.label("L_bar4")
    a("s_barrier")
    a("s_cmp_ge_u32 s3, 2")
    a("s_cbranch_scc1 L_stageD")
    a("v_bfe_u32 v5, v2, 2, 2")
    a("v_lshl_add_u32 v5, v4, 3, v5")
    a("v_lshlrev_b32 v5, 6, v5")
    a("v_and_b32 v6, 3, v2")
    a("v_lshl_add_u32 v5, v6, 3, v5")
    a("s_lshl_b32 s6, s3, 5")
    a(f"s_add_u32 s6, s6, {L_WO}")
    a("v_add_u32 v5, s6, v5")
    a("v_and_b32 v6, 7, v2")
    a("v_lshlrev_b32 v6, 9, v6")
    a("v_lshl_add_u32 v6, v4, 4, v6")
    a(f"v_add_u32 v6, {L_O}, v6")
    for j in range(8):
        a(f"ds_read_b64_tr_b16 v[{16+4*j}:{17+4*j}], v5 offset:{j*2048}")
        a(f"ds_read_b64_tr_b16 v[{18+4*j}:{19+4*j}], v5 offset:{j*2048+256}")
        a(f"ds_read_b128 v[{48+4*j}:{51+4*j}], v6 offset:{j*64}")
    a("s_waitcnt lgkmcnt(0)")
    for j in range(8):
        c = "0" if j == 0 else "v[80:83]"
        a(f"v_mfma_f32_16x16x32_bf16 v[80:83], v[{16+4*j}:{19+4*j}], v[{48+4*j}:{51+4*j}], {c}")
    a("v_cmp_gt_u32 vcc, 8, v3")
    a("v_mul_u32_u24 v5, 1792, v3")
    a("v_lshl_add_u32 v5, v4, 4, v5")
    a("s_mul_i32 s6, s101, 14336")
    a("s_lshl_b32 s7, s100, 7")
    a("s_add_u32 s6, s6, s7")
    a("s_lshl_b32 s7, s3, 6")
    a("s_add_u32 s6, s6, s7")
    a(f"s_add_u32 s6, s6, {WS_P2}")
    a("s_nop 3")
    a("s_and_b64 exec, exec, vcc")
    a("buffer_store_dwordx4 v[80:83], v5, s[52:55], s6 offen sc1")
    a("s_lshl_b32 s6, s98, 2")
    a(f"s_add_u32 s6, s6, {WS_FL}")
    a("v_mov_b32 v6, 0")
    a("s_mov_b64 exec, 1")
    a("s_cmp_eq_u32 s3, 1")
    a("s_cbranch_scc0 L_noflag")
    a("buffer_store_dword v6, v6, s[52:55], s6 offen sc1")
    a.label("L_noflag")
    a("s_mov_b64 exec, s[58:59]")
    if STAMP:
        a("s_cmp_lg_u32 s3, 0")
        a("s_cbranch_scc1 L_st9")
        stamp(a, 9)
        a.label("L_st9")

    a.label("L_stageD")
    a("s_lshr_b32 s96, s2, 5")
    a("s_and_b32 s97, s2, 31")
    a("s_cmp_lg_u32 s3, 7")
    a("s_cbranch_scc1 L_bar5")
    a("v_lshlrev_b32 v5, 5, v2")
    a("v_mov_b32 v6, 0x7fff0000")
    a("v_cndmask_b32 v5, v6, v5, s[56:57]")
    a("v_lshlrev_b32 v7, 4, v2")
    a("v_cndmask_b32 v7, v6, v7, s[56:57]")
    a("s_mul_i32 s6, s96, 896")
    a("buffer_load_dwordx4 v[8:11], v7, s[60:63], s6 offen")
    a("v_lshlrev_b32 v13, 4, v2")
    a("v_and_b32 v12, 7, v2")
    a("v_cmp_ne_u32 s[18:19], 7, v12")
    a("s_mov_b32 s13, 0")
    a.label("L_pollD0")
    a(f"s_mov_b32 s6, {WS_FL}")
    a("buffer_load_dwordx4 v[16:19], v13, s[52:55], s6 offen sc1")
    a("s_add_u32 s13, s13, 1")
    a("s_waitcnt vmcnt(0)")
    anysent(a, range(16, 20), 12)
    a("v_cmp_eq_u32 vcc, -1, v12")
    a("s_and_b64 vcc, vcc, s[18:19]")
    a(f"s_cmp_ge_u32 s13, {SPIN_MAX}")
    a("s_cbranch_scc1 L_pollD")
    a("s_cmp_eq_u64 vcc, 0")
    a("s_cbranch_scc1 L_pollD")
    a("s_sleep 8")
    a("s_branch L_pollD0")
    a.label("L_pollD")
    a("s_mul_i32 s6, s96, 1792")
    a(f"s_add_u32 s6, s6, {WS_P2}")
    for h in range(16):
        a(f"buffer_load_dwordx4 v[{128+8*h}:{131+8*h}], v5, s[52:55], s6 offen sc1")
        a(f"buffer_load_dwordx4 v[{132+8*h}:{135+8*h}], v5, s[52:55], s6 offen offset:16 sc1")
        a("s_add_u32 s6, s6, 14336")
    a("s_add_u32 s13, s13, 1")
    a("s_waitcnt vmcnt(0)")
    anysent(a, range(128, 256), 12)
    a("v_cmp_eq_u32 vcc, -1, v12")
    a(f"s_cmp_ge_u32 s13, {SPIN_MAX}")
    a("s_cbranch_scc1 L_pollD_done")
    a("s_cbranch_vccz L_pollD_done")
    a("s_sleep 4")
    a("s_branch L_pollD")
    a.label("L_pollD_done")
    stamp(a, 10, 13, 14)
    for h in range(1, 16):
        for i in range(8):
            a(f"v_add_f32 v{128+i}, v{128+i}, v{128+8*h+i}")
    unpack8(a, 8, 16)
    for i in range(0, 8, 2):
        bf16r2(a, 128+i, 129+i, 12)
        a(f"v_add_f32 v{16+i}, v{16+i}, v{128+i}")
        a(f"v_add_f32 v{17+i}, v{17+i}, v{129+i}")
        bf16r2(a, 16+i, 17+i, 12)
    a("v_lshlrev_b32 v5, 5, v2")
    a(f"v_add_u32 v5, {L_H}, v5")
    a("s_mov_b64 exec, s[56:57]")
    a("ds_write_b128 v5, v[16:19]")
    a("ds_write_b128 v5, v[20:23] offset:16")
    a("s_mov_b64 exec, s[58:59]")
    layernorm8(a, 16, 32, 33, 34, 56)
    for i in range(8):
        a(f"v_cndmask_b32 v{16+i}, 0, v{16+i}, s[56:57]")
    layernorm8(a, 16, 32, 33, 34, 56)
    a("s_mov_b64 exec, s[56:57]")
    a(f"ds_write_b128 v5, v[16:19] offset:{L_T-L_H}")
    a(f"ds_write_b128 v5, v[20:23] offset:{L_T-L_H+16}")
    a("s_mov_b64 exec, s[58:59]")
    a("s_waitcnt lgkmcnt(0)")
    stamp(a, 11, 13, 14)
    a("s_barrier")
    a("s_branch L_done")
    a.label("L_bar5")
    a("s_waitcnt vmcnt(0)")
    for i in range(14):
        a(f"v_lshlrev_b32 v{16+2*i}, 16, v{128+i}")
        a(f"v_and_b32 v{17+2*i}, 0xffff0000, v{128+i}")
        a(f"v_lshlrev_b32 v{44+2*i}, 16, v{144+i}")
        a(f"v_and_b32 v{45+2*i}, 0xffff0000, v{144+i}")
    a("v_lshlrev_b32 v174, 16, v174")
    C1 = -2.0 * LOG2E * math.sqrt(2.0/math.pi)
    C2 = C1 * 0.044715
    a(f"v_mov_b32 v72, {hex(f2u(C1))}")
    a(f"v_mov_b32 v73, {hex(f2u(C1))}")
    a(f"v_mov_b32 v74, {hex(f2u(C2))}")
    a(f"v_mov_b32 v75, {hex(f2u(C2))}")
    a("v_mov_b32 v76, 1.0")
    a("v_mov_b32 v77, 1.0")
    a("v_mov_b32 v78, 0")
    a("v_mov_b32 v79, 0")
    a("s_mul_i32 s6, s97, 56")
    a("s_lshl_b32 s7, s3, 3")
    a("s_add_u32 s6, s6, s7")
    a(f"s_add_u32 s6, s6, {L_H}")
    a("v_mov_b32 v5, s6")
    a("s_barrier")
    a(f"ds_read_b64 v[80:81], v5 offset:{L_T-L_H}")
    a("ds_read_b64 v[82:83], v5")
    a("s_waitcnt lgkmcnt(0)")
    for i in range(14):
        U = [84, 92]; Tt = [86, 94]; C = [88, 96]
        for d in range(2):
            osel = "op_sel_hi:[0,1]" if d == 0 else "op_sel:[1,0] op_sel_hi:[1,1]"
            a(f"v_pk_mul_f32 v[{U[d]}:{U[d]+1}], v[80:81], v[{16+2*i}:{17+2*i}] {osel}")
        for d in range(2):
            bf16r2(a, U[d], U[d]+1, C[d])
        for d in range(2):
            a(f"v_pk_add_f32 v[{U[d]}:{U[d]+1}], v[{U[d]}:{U[d]+1}], v[{44+2*i}:{45+2*i}]")
        for d in range(2):
            bf16r2(a, U[d], U[d]+1, C[d])
        for d in range(2):
            a(f"v_pk_mul_f32 v[{Tt[d]}:{Tt[d]+1}], v[{U[d]}:{U[d]+1}], v[{U[d]}:{U[d]+1}]")
        for d in range(2):
            a(f"v_pk_fma_f32 v[{Tt[d]}:{Tt[d]+1}], v[{Tt[d]}:{Tt[d]+1}], v[74:75], v[72:73]")
        for d in range(2):
            a(f"v_pk_mul_f32 v[{Tt[d]}:{Tt[d]+1}], v[{Tt[d]}:{Tt[d]+1}], v[{U[d]}:{U[d]+1}]")
        for d in range(2):
            a(f"v_exp_f32 v{Tt[d]}, v{Tt[d]}")
            a(f"v_exp_f32 v{Tt[d]+1}, v{Tt[d]+1}")
        for d in range(2):
            a(f"v_pk_add_f32 v[{Tt[d]}:{Tt[d]+1}], v[{Tt[d]}:{Tt[d]+1}], v[76:77]")
        for d in range(2):
            a(f"v_rcp_f32 v{Tt[d]}, v{Tt[d]}")
            a(f"v_rcp_f32 v{Tt[d]+1}, v{Tt[d]+1}")
        for d in range(2):
            a(f"v_pk_mul_f32 v[{Tt[d]}:{Tt[d]+1}], v[{Tt[d]}:{Tt[d]+1}], v[{U[d]}:{U[d]+1}]")
        for d in range(2):
            a(f"v_cvt_pk_bf16_f32 v{C[d]}, v{Tt[d]}, v{Tt[d]+1}")
        for d in range(2):
            a(f"v_dot2_f32_bf16 v{78+d}, v{C[d]}, v{160+i}, v{78+d}")
    a("s_nop 3")
    wave_reduce2(a, "v_add_f32", 78, 84, 79, 85)
    bf16r2(a, 78, 79, 84)
    a("v_add_f32 v78, v78, v174")
    a("v_add_f32 v79, v79, v174")
    bf16r2(a, 78, 79, 84)
    a("v_add_f32 v78, v78, v82")
    a("v_add_f32 v79, v79, v83")
    a("v_cvt_pk_bf16_f32 v78, v78, v79")
    a("s_mul_i32 s6, s96, 896")
    a("s_mul_i32 s7, s97, 28")
    a("s_add_u32 s6, s6, s7")
    a("s_lshl_b32 s7, s3, 2")
    a("s_add_u32 s6, s6, s7")
    a("v_mov_b32 v5, 0")
    a("s_mov_b64 exec, 1")
    a("buffer_store_dword v78, v5, s[76:79], s6 offen")
    if STAMP:
        a("s_cmp_lg_u32 s3, 0")
        a("s_cbranch_scc1 L_done")
        stamp(a, 13)
    a.label("L_done")
    a("s_endpgm")
    a.raw(".section .rodata,\"a\"")
    a.raw(".p2align 6")
    a.raw(f".amdhsa_kernel {n}")
    a.raw("  .amdhsa_next_free_vgpr 256")
    a.raw("  .amdhsa_next_free_sgpr 102")
    a.raw("  .amdhsa_accum_offset 256")
    a.raw("  .amdhsa_group_segment_fixed_size 0")
    a.raw("  .amdhsa_kernarg_size 104")
    a.raw("  .amdhsa_user_sgpr_count 2")
    a.raw("  .amdhsa_user_sgpr_kernarg_segment_ptr 1")
    a.raw("  .amdhsa_system_sgpr_workgroup_id_x 1")
    a.raw(".end_amdhsa_kernel")

def main():
    a = Asm()
    hdr = open("cdna_kernels/%s.s.ref" % NAME).read().split("\n")
    for l in hdr:
        if l.startswith("; @launch"):
            break
        a.raw(l)
    a.raw(f"; @launch grid=(256,1,1) block=(512,1,1) lds={LDS_BYTES}")
    a.raw('.amdgcn_target "amdgcn-amd-amdhsa--gfx950"')
    gen(a)
    out = sys.argv[1] if len(sys.argv) > 1 else OUT
    open(out, "w").write(a.text())

if __name__ == "__main__":
    main()
```

```python
import sys, math, struct, os, re

NAME = "sequential_preLN__gqa_block_cached__mixer_token_mlp__decode"
KNAME = NAME + "_kernel"
OUT = "cdna_kernels/%s.s" % NAME

def f2u(x):
    return struct.unpack("<I", struct.pack("<f", x))[0]

class Asm:
    def __init__(self):
        self.lines = []
    def __call__(self, s):
        for l in s.strip("\n").split("\n"):
            l = l.strip()
            m = re.search(r"offset:(\d+)", l)
            if m and l.startswith("buffer_"):
                assert int(m.group(1)) < 4096, l
            if m and l.startswith("ds_"):
                assert int(m.group(1)) < 65536, l
            self.lines.append("    " + l)
    def label(self, l):
        self.lines.append(l + ":")
    def raw(self, s):
        self.lines.append(s)
    def text(self):
        return "\n".join(self.lines) + "\n"

WS_Q = 0
WS_OP = 0x20000
WS_ML = 0xA0000
WS_P2 = 0xB0000
WS_FL = 0xA2000
WS_CNT = 0xA4000
WS_BYTES = 0x400000

LOG2E = 1.4426950408889634
SCALE_C = 0.0625 * LOG2E
NT = os.environ.get("NT", " nt")

MB = 131072
L_WQ = MB
L_XN = MB + 14336
L_QL = MB + 21504
L_WO = MB
L_O = MB + 22528
L_H = MB + 26624
L_T = MB + 28672
L_F = MB + 31744
L_NEXT = MB + 31808
NSTAT = int(os.environ.get("NSTAT", "24"))
LOOK = int(os.environ.get("LOOK", "6"))
DEPTH = int(os.environ.get("DEPTH", "3"))
VX = int(os.environ.get("VX", "0"))
BULK = int(os.environ.get("BULK", "0"))
LDS_BYTES = 163840

SPIN_MAX = 1 << 18

def srd(a, d, base, nbytes):
    a(f"s_mov_b32 s{d}, s{base}")
    a(f"s_and_b32 s{d+1}, s{base+1}, 0xffff")
    a(f"s_mov_b32 s{d+2}, {nbytes}")
    a(f"s_mov_b32 s{d+3}, 0x00020000")

def wave_reduce(a, op, v, t):
    for ctl in ["quad_perm:[1,0,3,2]", "quad_perm:[2,3,0,1]", "row_half_mirror", "row_mirror"]:
        a("s_nop 1")
        a(f"{op}_dpp v{v}, v{v}, v{v} {ctl} row_mask:0xf bank_mask:0xf")
    group_reduce(a, op, v, t)

def group_reduce(a, op, v, t):
    a(f"v_mov_b32 v{t}, v{v}")
    a("s_nop 1")
    a(f"v_permlane16_swap_b32 v{v}, v{t}")
    a("s_nop 1")
    a(f"{op} v{v}, v{v}, v{t}")
    a(f"v_mov_b32 v{t}, v{v}")
    a("s_nop 1")
    a(f"v_permlane32_swap_b32 v{v}, v{t}")
    a("s_nop 1")
    a(f"{op} v{v}, v{v}, v{t}")

def wave_reduce2(a, op, v, t, w, u):
    for ctl in ["quad_perm:[1,0,3,2]", "quad_perm:[2,3,0,1]", "row_half_mirror", "row_mirror"]:
        a("s_nop 0")
        a(f"{op}_dpp v{v}, v{v}, v{v} {ctl} row_mask:0xf bank_mask:0xf")
        a(f"{op}_dpp v{w}, v{w}, v{w} {ctl} row_mask:0xf bank_mask:0xf")
    for sw in ["v_permlane16_swap_b32", "v_permlane32_swap_b32"]:
        a(f"v_mov_b32 v{t}, v{v}")
        a(f"v_mov_b32 v{u}, v{w}")
        a("s_nop 1")
        a(f"{sw} v{v}, v{t}")
        a(f"{sw} v{w}, v{u}")
        a("s_nop 1")
        a(f"{op} v{v}, v{v}, v{t}")
        a(f"{op} v{w}, v{w}, v{u}")

def bf16r(a, v):
    a(f"v_cvt_pk_bf16_f32 v{v}, v{v}, v{v}")
    a(f"v_and_b32 v{v}, 0xffff0000, v{v}")

def bf16r2(a, v, w, t):
    a(f"v_cvt_pk_bf16_f32 v{t}, v{v}, v{w}")
    a(f"v_lshlrev_b32 v{v}, 16, v{t}")
    a(f"v_and_b32 v{w}, 0xffff0000, v{t}")

def unpack8(a, src, dst):
    for i in range(4):
        a(f"v_lshlrev_b32 v{dst+2*i}, 16, v{src+i}")
        a(f"v_and_b32 v{dst+2*i+1}, 0xffff0000, v{src+i}")

def layernorm8(a, x, t0, t1, t2, smask):
    a(f"v_add_f32 v{t0}, v{x}, v{x+1}")
    for i in range(2, 8):
        a(f"v_add_f32 v{t0}, v{t0}, v{x+i}")
    wave_reduce(a, "v_add_f32", t0, t1)
    a(f"v_mul_f32 v{t0}, {hex(f2u(1.0/448))}, v{t0}")
    a(f"v_sub_f32 v{t2}, v{x}, v{t0}")
    a(f"v_mul_f32 v{t1}, v{t2}, v{t2}")
    for i in range(1, 8):
        a(f"v_sub_f32 v{t2}, v{x+i}, v{t0}")
        a(f"v_fmac_f32 v{t1}, v{t2}, v{t2}")
    a(f"v_cndmask_b32 v{t1}, 0, v{t1}, s[{smask}:{smask+1}]")
    wave_reduce(a, "v_add_f32", t1, t2)
    a(f"v_mul_f32 v{t1}, {hex(f2u(1.0/448))}, v{t1}")
    bf16r(a, t1)
    a(f"v_add_f32 v{t1}, {hex(f2u(1e-5))}, v{t1}")
    bf16r(a, t1)
    a(f"v_sqrt_f32 v{t1}, v{t1}")
    a("s_nop 0")
    bf16r(a, t1)
    a(f"v_rcp_f32 v{t1}, v{t1}")
    bf16r(a, t0)
    for i in range(0, 8, 2):
        a(f"v_sub_f32 v{x+i}, v{x+i}, v{t0}")
        a(f"v_sub_f32 v{x+i+1}, v{x+i+1}, v{t0}")
        bf16r2(a, x+i, x+i+1, t2)
        a(f"v_mul_f32 v{x+i}, v{x+i}, v{t1}")
        a(f"v_mul_f32 v{x+i+1}, v{x+i+1}, v{t1}")
        bf16r2(a, x+i, x+i+1, t2)

def layernorm8x2(a, x, y, tx, ty, smask):
    t0, t1, t2 = tx; u0, u1, u2 = ty
    a(f"v_add_f32 v{t0}, v{x}, v{x+1}")
    a(f"v_add_f32 v{u0}, v{y}, v{y+1}")
    for i in range(2, 8):
        a(f"v_add_f32 v{t0}, v{t0}, v{x+i}")
        a(f"v_add_f32 v{u0}, v{u0}, v{y+i}")
    wave_reduce2(a, "v_add_f32", t0, t1, u0, u1)
    a(f"v_mul_f32 v{t0}, {hex(f2u(1.0/448))}, v{t0}")
    a(f"v_mul_f32 v{u0}, {hex(f2u(1.0/448))}, v{u0}")
    for i in range(8):
        a(f"v_sub_f32 v{t2}, v{x+i}, v{t0}")
        a(f"v_sub_f32 v{u2}, v{y+i}, v{u0}")
        if i == 0:
            a(f"v_mul_f32 v{t1}, v{t2}, v{t2}")
            a(f"v_mul_f32 v{u1}, v{u2}, v{u2}")
        else:
            a(f"v_fmac_f32 v{t1}, v{t2}, v{t2}")
            a(f"v_fmac_f32 v{u1}, v{u2}, v{u2}")
    a(f"v_cndmask_b32 v{t1}, 0, v{t1}, s[{smask}:{smask+1}]")
    a(f"v_cndmask_b32 v{u1}, 0, v{u1}, s[{smask}:{smask+1}]")
    wave_reduce2(a, "v_add_f32", t1, t2, u1, u2)
    a(f"v_mul_f32 v{t1}, {hex(f2u(1.0/448))}, v{t1}")
    a(f"v_mul_f32 v{u1}, {hex(f2u(1.0/448))}, v{u1}")
    bf16r2(a, t1, u1, t2)
    a(f"v_add_f32 v{t1}, {hex(f2u(1e-5))}, v{t1}")
    a(f"v_add_f32 v{u1}, {hex(f2u(1e-5))}, v{u1}")
    bf16r2(a, t1, u1, t2)
    a(f"v_sqrt_f32 v{t1}, v{t1}")
    a(f"v_sqrt_f32 v{u1}, v{u1}")
    a("s_nop 0")
    bf16r2(a, t1, u1, t2)
    a(f"v_rcp_f32 v{t1}, v{t1}")
    a(f"v_rcp_f32 v{u1}, v{u1}")
    bf16r2(a, t0, u0, t2)
    for (z, m, r_) in ((x, t0, t1), (y, u0, u1)):
        for i in range(0, 8, 2):
            a(f"v_sub_f32 v{z+i}, v{z+i}, v{m}")
            a(f"v_sub_f32 v{z+i+1}, v{z+i+1}, v{m}")
            bf16r2(a, z+i, z+i+1, t2)
            a(f"v_mul_f32 v{z+i}, v{z+i}, v{r_}")
            a(f"v_mul_f32 v{z+i+1}, v{z+i+1}, v{r_}")

def pack8(a, x, dst):
    for i in range(4):
        a(f"v_cvt_pk_bf16_f32 v{dst+i}, v{x+2*i}, v{x+2*i+1}")

def anysent(a, regs, t):
    regs = list(regs)
    a(f"v_max_u32 v{t}, v{regs[0]}, v{regs[1]}")
    i = 2
    while i < len(regs):
        if i + 1 < len(regs):
            a(f"v_max3_u32 v{t}, v{t}, v{regs[i]}, v{regs[i+1]}")
            i += 2
        else:
            a(f"v_max_u32 v{t}, v{t}, v{regs[i]}")
            i += 1

QF = 16; OA = 64; KF = 128; VF = 160; KOFF = 192; VOFF = 200; KRA = 208; VRA = 212
SA = 220; PB = 224; M = 226; L = 227; AL = 228; T0 = 229; T1 = 230; T2 = 231

STAMP = int(os.environ.get("STAMP", "0"))
PRE = int(os.environ.get("PRE", "2"))
LATE0 = int(os.environ.get("LATE0", "0"))
MAP = int(os.environ.get("MAP", "1"))
def stamp(a, idx, va=233, vb=234):
    if not STAMP: return
    a("s_memrealtime s[42:43]")
    a("s_waitcnt lgkmcnt(0)")
    a(f"v_mov_b32 v{va}, s42")
    a("s_lshl_b32 s42, s2, 7")
    a(f"s_add_u32 s42, s42, {0x200000 + idx*4}")
    a(f"v_mov_b32 v{vb}, 0")
    a("s_mov_b64 exec, 1")
    a(f"buffer_store_dword v{va}, v{vb}, s[52:55], s42 offen")
    a("s_mov_b64 exec, s[58:59]")

def gen(a):
    n = KNAME
    a.raw(".text")
    a.raw(f".globl {n}")
    a.raw(".p2align 8")
    a.raw(f".type {n},@function")
    a.label(n)
    a("s_cmp_ge_u32 s2, 256")
    a("s_cbranch_scc1 L_done")
    a("s_load_dwordx16 s[16:31], s[0:1], 0")
    a("s_load_dwordx8 s[32:39], s[0:1], 64")
    a("s_load_dwordx2 s[40:41], s[0:1], 96")
    a("v_lshrrev_b32 v1, 6, v0")
    a("v_and_b32 v2, 63, v0")
    a("v_and_b32 v3, 15, v2")
    a("v_readfirstlane_b32 s3, v1")
    a("v_lshrrev_b32 v4, 4, v2")
    if MAP == 0:
        a("s_and_b32 s4, s2, 7")
        a("s_lshr_b32 s5, s2, 3")
    else:
        a("s_lshr_b32 s4, s2, 5")
        a("s_and_b32 s5, s2, 31")
    a("s_lshr_b32 s96, s5, 2")
    a("s_and_b32 s97, s5, 3")
    a("s_lshl_b32 s98, s4, 5")
    a("s_add_u32 s98, s98, s5")
    a("v_cmp_gt_u32 s[56:57], 56, v2")
    a("s_mov_b64 s[58:59], exec")
    a("s_waitcnt lgkmcnt(0)")
    srd(a, 44, 18, 0x10000000)
    srd(a, 48, 20, 0x10000000)
    srd(a, 52, 40, WS_BYTES)
    srd(a, 60, 16, 7168)
    srd(a, 64, 22, 448*4096*2)
    srd(a, 68, 24, 4096*448*2)
    srd(a, 72, 38, 256)
    srd(a, 76, 36, 7168)
    srd(a, 80, 28, 3584)
    srd(a, 84, 30, 3584)
    srd(a, 88, 32, 3584)
    srd(a, 92, 34, 4)
    a("s_cmp_ge_u32 s3, 4")
    a("s_cbranch_scc1 L_helpers")

    if STAMP:
        a("s_cmp_lg_u32 s3, 0")
        a("s_cbranch_scc1 L_st0")
        stamp(a, 0)
        a.label("L_st0")
    a("v_lshrrev_b32 v7, 5, v2")
    a("v_and_b32 v8, 31, v2")
    for p in range(8):
        a(f"v_add_u32 v5, {2*p}, v7")
        a("v_xor_b32 v6, v8, v5")
        a("v_lshlrev_b32 v6, 4, v6")
        a(f"v_lshl_add_u32 v{KOFF+p}, v7, 9, v6")
        a(f"v_add_u32 v{KOFF+p}, {p*4096-(p&3)*1024}, v{KOFF+p}")
        a("v_and_b32 v5, 7, v5")
        a("v_lshlrev_b32 v5, 1, v5")
        a("v_xor_b32 v6, v8, v5")
        a("v_lshlrev_b32 v6, 4, v6")
        a(f"v_lshl_add_u32 v{VOFF+p}, v7, 9, v6")
        a(f"v_add_u32 v{VOFF+p}, {p*4096-(p&3)*1024}, v{VOFF+p}")
    a("s_lshl_b32 s8, s3, 15")
    a("s_lshl_b32 s20, s96, 3")
    a("s_add_u32 s20, s20, s4")
    a("s_lshl_b32 s20, s20, 22")
    a("s_lshl_b32 s6, s3, 10")
    a("s_add_u32 s20, s20, s6")
    a(f"s_mul_i32 s6, s97, {NSTAT*32768}")
    a("s_add_u32 s9, s20, s6")

    def issue(kind, slot):
        srd_ = "s[44:47]" if kind == "K" else "s[48:51]"
        so = "s9"
        off = KOFF if kind == "K" else VOFF
        a(f"s_add_u32 s11, s8, {slot*8192}")
        a("s_mov_b32 m0, s11")
        a(f"s_add_u32 s12, s8, {slot*8192+4096}")
        for p in range(4):
            a(f"buffer_load_dwordx4 v{off+p}, {srd_}, {so} offen offset:{p*1024}{NT} lds")
        a("s_mov_b32 m0, s12")
        a("s_nop 0")
        for p in range(4):
            a(f"buffer_load_dwordx4 v{off+4+p}, {srd_}, {so} offen offset:{p*1024}{NT} lds")

    def ldsspin(word, target, lab):
        a(f"v_mov_b32 v5, {L_F + word*4}")
        a.label(lab)
        a("ds_read_b32 v6, v5")
        a("s_waitcnt lgkmcnt(0)")
        a("v_readfirstlane_b32 s6, v6")
        a(f"s_cmp_ge_u32 s6, {target}")
        a(f"s_cbranch_scc1 {lab}_d")
        a("s_sleep 1")
        a(f"s_branch {lab}")
        a.label(lab + "_d")

    units = [("K", 0), ("V", 1), ("K", 2), ("V", 3)]
    a("s_barrier")
    assert PRE == 2
    for u in units[:2]: issue(*u)
    a("s_add_u32 s9, s9, 32768")
    for jj in range(4):
        a(f"v_add_u32 v5, {4*jj}, v4")
        a("v_xor_b32 v5, v5, v3")
        a("v_lshlrev_b32 v5, 4, v5")
        a(f"v_lshl_add_u32 v5, v3, 9, v5")
        a(f"v_add_u32 v{KRA+jj}, s8, v5")
    a("v_bfe_u32 v5, v2, 2, 2")
    a("v_lshl_add_u32 v5, v4, 2, v5")
    a("v_and_b32 v6, 7, v5")
    a("v_and_b32 v7, 3, v2")
    a("v_lshlrev_b32 v7, 3, v7")
    a("v_lshl_add_u32 v7, v5, 9, v7")
    a("v_add_u32 v7, s8, v7")
    for nn in range(8):
        a(f"v_xor_b32 v5, {nn}, v6")
        a(f"v_lshl_add_u32 v{VRA+nn}, v5, 5, v7")
    for i in range(64):
        a(f"v_mov_b32 v{OA+i}, 0")
    a(f"v_mov_b32 v{M}, 0xf149f2ca")
    a(f"v_mov_b32 v{L}, 0")
    a(f"s_mov_b32 s14, {hex(f2u(SCALE_C))}")
    if PRE < 4:
        ldsspin(1, 1, "L_spin1")
        for u in units[PRE:]: issue(*u)
    ldsspin(2, 1, "L_spin2")
    a("v_and_b32 v5, 1, v2")
    a("v_lshlrev_b32 v5, 9, v5")
    a("v_lshl_add_u32 v5, v4, 4, v5")
    a(f"v_add_u32 v5, {L_QL}, v5")
    for j in range(8):
        a(f"ds_read_b128 v[{QF+4*j}:{QF+4*j+3}], v5 offset:{j*64}")
    a("s_waitcnt lgkmcnt(0)")
    a(f"v_mov_b32 v235, {L_NEXT+8}")
    a(f"v_mov_b32 v238, {L_F+12}")

    def step(kslot, vslot, do_issue, wk, wv, tag):
        a("s_cmp_eq_u32 s15, 1000")
        a(f"s_cbranch_scc1 L_wk_{tag}")
        a("s_waitcnt vmcnt(0)")
        a.label(f"L_wk_{tag}")
        a(f"s_waitcnt vmcnt({wk})")
        a("v_mov_b32 v237, s13")
        a("ds_read_b32 v236, v235")
        if VX != 2: a("ds_write_b32 v238, v237")
        for j in range(8):
            a(f"ds_read_b128 v[{KF+4*j}:{KF+4*j+3}], v{KRA+(j&3)} offset:{kslot*8192 + (j>>2)*256}")
        for j in range(8):
            a(f"s_waitcnt lgkmcnt({7-j})")
            c = "0" if j == 0 else f"v[{SA}:{SA+3}]"
            a(f"v_mfma_f32_16x16x32_bf16 v[{SA}:{SA+3}], v[{KF+4*j}:{KF+4*j+3}], v[{QF+4*j}:{QF+4*j+3}], {c}")
        a("v_readfirstlane_b32 s6, v236")
        a("s_cmp_lg_u32 s6, -1")
        a(f"s_cbranch_scc1 L_nx_{tag}")
        a.label(f"L_nxs_{tag}")
        a("s_sleep 1")
        a("ds_read_b32 v236, v235")
        a("s_waitcnt lgkmcnt(0)")
        a("v_readfirstlane_b32 s6, v236")
        a("s_cmp_eq_u32 s6, -1")
        a(f"s_cbranch_scc1 L_nxs_{tag}")
        a.label(f"L_nx_{tag}")
        a("v_add_u32 v235, 4, v235")
        a("s_lshl_b32 s7, s6, 15")
        a("s_add_u32 s9, s20, s7")
        a("s_add_u32 s7, s13, 2")
        a("s_min_u32 s7, s7, s15")
        a("s_cmp_ge_u32 s6, 128")
        a("s_cselect_b32 s15, s7, s15")
        a(f"s_cbranch_scc1 L_noik_{tag}")
        issue("K", kslot)
        a.label(f"L_noik_{tag}")
        a("s_nop 3")
        a(f"v_cvt_pk_bf16_f32 v{T0}, v{SA}, v{SA+1}")
        a(f"v_cvt_pk_bf16_f32 v{T1}, v{SA+2}, v{SA+3}")
        a(f"v_lshlrev_b32 v{SA}, 16, v{T0}")
        a(f"v_and_b32 v{SA+1}, 0xffff0000, v{T0}")
        a(f"v_lshlrev_b32 v{SA+2}, 16, v{T1}")
        a(f"v_and_b32 v{SA+3}, 0xffff0000, v{T1}")
        a(f"v_max3_f32 v{T0}, v{SA}, v{SA+1}, v{SA+2}")
        a(f"v_max_f32 v{T0}, v{T0}, v{SA+3}")
        group_reduce(a, "v_max_f32", T0, T1)
        a(f"v_mul_f32 v{T0}, s14, v{T0}")
        a(f"v_max_f32 v{T0}, v{T0}, v{M}")
        a(f"v_sub_f32 v{AL}, v{M}, v{T0}")
        a(f"v_exp_f32 v{AL}, v{AL}")
        a(f"v_mov_b32 v{M}, v{T0}")
        for r in range(4):
            a(f"v_fma_f32 v{SA+r}, v{SA+r}, s14, -v{T0}")
        for r in range(4):
            a(f"v_exp_f32 v{SA+r}, v{SA+r}")
        a(f"v_cmp_neq_f32 vcc, 1.0, v{AL}")
        a(f"v_cvt_pk_bf16_f32 v{PB}, v{SA}, v{SA+1}")
        a(f"v_cvt_pk_bf16_f32 v{PB+1}, v{SA+2}, v{SA+3}")
        a(f"v_add_f32 v{T1}, v{SA}, v{SA+1}")
        a(f"v_add_f32 v{T2}, v{SA+2}, v{SA+3}")
        a(f"v_add_f32 v{T1}, v{T1}, v{T2}")
        a(f"v_fma_f32 v{L}, v{L}, v{AL}, v{T1}")
        a(f"s_cbranch_vccz L_nors_{tag}")
        for i in range(64):
            a(f"v_mul_f32 v{OA+i}, v{OA+i}, v{AL}")
        a.label(f"L_nors_{tag}")
        a("s_cmp_eq_u32 s15, 1000")
        a(f"s_cbranch_scc1 L_wv_{tag}")
        a("s_waitcnt vmcnt(0)")
        a.label(f"L_wv_{tag}")
        a(f"s_waitcnt vmcnt({wv})")
        for nn in range(16):
            a(f"ds_read_b64_tr_b16 v[{VF+2*nn}:{VF+2*nn+1}], v{VRA+(nn&7)} offset:{vslot*8192 + (nn>>3)*256}")
        for nn in range(16):
            a(f"s_waitcnt lgkmcnt({15-nn})")
            a(f"v_mfma_f32_16x16x16_bf16 v[{OA+4*nn}:{OA+4*nn+3}], v[{VF+2*nn}:{VF+2*nn+1}], v[{PB}:{PB+1}], v[{OA+4*nn}:{OA+4*nn+3}]")
        a("s_cmp_lg_u32 s15, 1000")
        a(f"s_cbranch_scc1 L_noiv_{tag}")
        issue("V", vslot)
        a.label(f"L_noiv_{tag}")

    a("s_mov_b32 s13, 0")
    a("s_mov_b32 s15, 1000")
    a.label("L_loop")
    step(0, 1, True, 24, 24, "a")
    a("s_add_u32 s13, s13, 1")
    a("s_cmp_ge_u32 s13, s15")
    a("s_cbranch_scc1 L_loop_done")
    step(2, 3, True, 24, 24, "b")
    a("s_add_u32 s13, s13, 1")
    a("s_cmp_lt_u32 s13, s15")
    a("s_cbranch_scc1 L_loop")
    a.label("L_loop_done")
    a("s_waitcnt vmcnt(0)")
    if STAMP:
        a("s_cmp_lg_u32 s3, 0")
        a("s_cbranch_scc1 L_st6")
        stamp(a, 6)
        a.label("L_st6")
    group_reduce(a, "v_add_f32", L, T1)
    a("s_nop 7")
    a("v_cmp_gt_u32 vcc, 2, v3")
    a("v_lshlrev_b32 v5, 10, v3")
    a("v_lshl_add_u32 v5, v4, 4, v5")
    a("v_add_u32 v5, s8, v5")
    a("s_and_b64 exec, exec, vcc")
    for nn in range(16):
        a(f"ds_write_b128 v5, v[{OA+4*nn}:{OA+4*nn+3}] offset:{nn*64}")
    a("v_cmp_gt_u32 vcc, 2, v2")
    a("v_lshlrev_b32 v5, 3, v2")
    a("v_add_u32 v5, s8, v5")
    a("s_and_b64 exec, exec, vcc")
    a(f"ds_write_b64 v5, v[{M}:{M+1}] offset:2048")
    a("s_mov_b64 exec, s[58:59]")
    a("s_waitcnt lgkmcnt(0)")
    a("s_barrier")
    a("v_lshrrev_b32 v5, 7, v0")
    a("v_lshlrev_b32 v6, 3, v5")
    a("v_lshlrev_b32 v7, 3, v0")
    a("v_add_u32 v9, 0x10000, v6")
    a("v_add_u32 v10, 0x10000, v7")
    for w in range(4):
        a(f"ds_read_b64 v[{16+2*w}:{17+2*w}], v{6 if w<2 else 9} offset:{(w&1)*32768+2048}")
        a(f"ds_read_b64 v[{24+2*w}:{25+2*w}], v{7 if w<2 else 10} offset:{(w&1)*32768}")
    a("s_waitcnt lgkmcnt(0)")
    a("v_max_f32 v32, v16, v18")
    a("v_max3_f32 v32, v32, v20, v22")
    for w in range(4):
        a(f"v_sub_f32 v{16+2*w}, v{16+2*w}, v32")
        a(f"v_exp_f32 v{16+2*w}, v{16+2*w}")
    a("s_nop 0")
    a("v_mul_f32 v33, v16, v17")
    a("v_mul_f32 v34, v16, v24")
    a("v_mul_f32 v35, v16, v25")
    for w in range(1, 4):
        a(f"v_fmac_f32 v33, v{16+2*w}, v{17+2*w}")
        a(f"v_fmac_f32 v34, v{16+2*w}, v{24+2*w}")
        a(f"v_fmac_f32 v35, v{16+2*w}, v{25+2*w}")
    a("s_lshl_b32 s6, s98, 11")
    a(f"s_add_u32 s6, s6, {WS_OP}")
    a("buffer_store_dwordx2 v[34:35], v7, s[52:55], s6 offen sc1")
    a("v_and_b32 v8, 127, v0")
    a("v_cmp_eq_u32 vcc, 0, v8")
    a("s_lshl_b32 s6, s98, 4")
    a(f"s_add_u32 s6, s6, {WS_ML}")
    a("s_and_b64 exec, exec, vcc")
    a("buffer_store_dwordx2 v[32:33], v6, s[52:55], s6 offen sc1")
    a("s_mov_b64 exec, s[58:59]")
    a("s_branch L_tail")

    a.label("L_helpers")
    a("s_memrealtime s[16:17]")
    a("v_lshlrev_b32 v5, 4, v2")
    a("v_mov_b32 v6, 0x7fff0000")
    a("v_cndmask_b32 v5, v6, v5, s[56:57]")
    a("s_sub_u32 s6, s3, 4")
    a("s_mul_i32 s15, s6, 1792")
    a("buffer_load_dwordx4 v[8:11], v5, s[60:63], s15 offen")
    a("buffer_load_dwordx4 v[12:15], v5, s[60:63], s15 offen offset:896")
    a("s_cmp_ge_u32 s5, 14")
    a("s_cselect_b32 s99, 1, 0")
    a("s_mul_i32 s6, s99, 14")
    a("s_sub_u32 s100, s5, s6")
    a("s_lshl_b32 s101, s4, 1")
    a("s_add_u32 s101, s101, s99")
    a("s_cmp_lg_u32 s3, 4")
    a("s_cbranch_scc1 L_h_not4")
    a("v_lshrrev_b32 v5, 1, v2")
    a("v_lshlrev_b32 v5, 13, v5")
    a("v_and_b32 v6, 1, v2")
    a("v_lshl_add_u32 v5, v6, 4, v5")
    a("s_lshl_b32 s6, s98, 5")
    a(f"s_mov_b32 s7, {L_WQ}")
    for p in range(14):
        a("s_mov_b32 m0, s7")
        a("s_add_u32 s7, s7, 1024")
        a("buffer_load_dwordx4 v5, s[64:67], s6 offen lds")
        a("s_add_u32 s6, s6, 0x40000")
    a(f"v_mov_b32 v5, {L_F}")
    for i in range(4):
        a(f"v_mov_b32 v{16+i}, 0")
    a("ds_write_b128 v5, v[16:19]")
    a(f"s_mul_i32 s6, s97, {NSTAT}")
    a("v_add_u32 v16, s6, v2")
    a(f"v_cmp_gt_u32 vcc, {NSTAT}, v2")
    a("v_lshlrev_b32 v5, 2, v2")
    a(f"v_add_u32 v5, {L_NEXT}, v5")
    a("v_cndmask_b32 v16, -1, v16, vcc")
    if VX: a("v_add_u32 v16, s6, v2")
    if VX: a("v_max_u32 v16, v16, v16")
    if VX: a(f"v_mov_b32 v17, 0x1000")
    if VX: a("v_cndmask_b32 v16, v17, v16, vcc")
    a("v_mov_b32 v17, -1")
    a("ds_write_b32 v5, v16")
    a("ds_write_b32 v5, v17 offset:256")
    a("s_branch L_h_bar0")
    a.label("L_h_not4")
    a("s_cmp_lg_u32 s3, 6")
    a("s_cbranch_scc1 L_h_bar0")
    a("s_cmp_lg_u32 s97, 0")
    a("s_cbranch_scc1 L_nocinit")
    a("s_lshl_b32 s6, s4, 3")
    a("s_add_u32 s6, s6, s96")
    a("s_lshl_b32 s6, s6, 8")
    a(f"s_add_u32 s6, s6, {WS_CNT}")
    a("s_waitcnt lgkmcnt(0)")
    a("s_lshr_b64 s[18:19], s[16:17], 2")
    a("s_and_b32 s7, s18, 0xffffff00")
    a("v_mov_b32 v16, s7")
    a("v_mov_b32 v17, 0")
    a("s_mov_b64 exec, 1")
    a("buffer_store_dword v16, v17, s[52:55], s6 offen sc1")
    a("s_mov_b64 exec, s[58:59]")
    a.label("L_nocinit")
    a.label("L_h_bar0")
    a("s_waitcnt lgkmcnt(0)")
    if not LATE0: a("s_barrier")
    a("s_lshr_b64 s[16:17], s[16:17], 10")
    a("s_cmp_eq_u32 s3, 4")
    a("s_cbranch_scc1 L_h_w14")
    a("s_cmp_eq_u32 s3, 6")
    a("s_cbranch_scc1 L_h_w3")
    a("s_waitcnt vmcnt(0)")
    a("s_branch L_h_ln")
    a.label("L_h_w14")
    a(f"s_waitcnt vmcnt({0 if LATE0 else 14})")
    a("s_branch L_h_ln")
    a.label("L_h_w3")
    a("s_waitcnt vmcnt(1)")
    a("s_cmp_eq_u32 s97, 0")
    a("s_cbranch_scc1 L_h_ln")
    a("s_waitcnt vmcnt(0)")
    a.label("L_h_ln")
    if LATE0: a("s_barrier")
    unpack8(a, 8, 16)
    unpack8(a, 12, 24)
    layernorm8x2(a, 16, 24, (32, 33, 34), (35, 36, 37), 56)
    pack8(a, 16, 8)
    pack8(a, 24, 12)
    a("v_lshlrev_b32 v5, 4, v2")
    a(f"s_add_u32 s6, s15, {L_XN}")
    a("v_add_u32 v5, s6, v5")
    a("s_mov_b64 exec, s[56:57]")
    a("ds_write_b128 v5, v[8:11]")
    a("ds_write_b128 v5, v[12:15] offset:896")
    a("s_mov_b64 exec, 1")
    a(f"v_mov_b32 v5, {L_F}")
    a("v_mov_b32 v6, 1")
    a("s_waitcnt lgkmcnt(0)")
    a("ds_add_u32 v5, v6")
    a("s_mov_b64 exec, s[58:59]")
    a("s_lshl_b32 s7, s4, 5")
    a("v_mov_b32 v9, s7")
    a("v_mov_b32 v8, 1")
    a("s_cmp_eq_u32 s3, 4")
    a("s_cbranch_scc1 L_service")
    a("s_cmp_eq_u32 s3, 5")
    a("s_cbranch_scc1 L_w5")
    a("s_cmp_lg_u32 s3, 6")
    a("s_cbranch_scc1 L_h_bar3")
    if VX == 4: a("s_branch L_h_bar3")
    for i in range(4):
        a(f"v_mov_b32 v{16+i}, -1")
    a("v_lshlrev_b32 v6, 4, v2")
    a("s_lshl_b32 s6, s98, 11")
    a(f"s_add_u32 s6, s6, {WS_OP}")
    a("buffer_store_dwordx4 v[16:19], v6, s[52:55], s6 offen sc1")
    a("buffer_store_dwordx4 v[16:19], v6, s[52:55], s6 offen offset:1024 sc1")
    a("s_lshl_b32 s6, s98, 4")
    a(f"s_add_u32 s6, s6, {WS_ML}")
    a("s_mov_b64 exec, 1")
    a("buffer_store_dwordx4 v[16:19], v6, s[52:55], s6 offen sc1")
    a("s_mov_b64 exec, s[58:59]")
    a("s_cmp_ge_u32 s5, 28")
    a("s_cbranch_scc1 L_clr_done")
    a("v_lshrrev_b32 v6, 3, v2")
    a("v_mul_u32_u24 v6, 1792, v6")
    a("v_and_b32 v7, 7, v2")
    a("v_lshl_add_u32 v6, v7, 4, v6")
    a("s_mul_i32 s6, s101, 14336")
    a("s_lshl_b32 s7, s100, 7")
    a("s_add_u32 s6, s6, s7")
    a(f"s_add_u32 s6, s6, {WS_P2}")
    a("buffer_store_dwordx4 v[16:19], v6, s[52:55], s6 offen sc1")
    a("s_lshl_b32 s6, s98, 2")
    a(f"s_add_u32 s6, s6, {WS_FL}")
    a("v_mov_b32 v6, 0")
    a("s_mov_b64 exec, 1")
    a("buffer_store_dword v16, v6, s[52:55], s6 offen sc1")
    a("s_mov_b64 exec, s[58:59]")
    a.label("L_clr_done")
    a("s_mov_b64 exec, 1")
    a("s_waitcnt vmcnt(0)")
    a("buffer_atomic_add v8, v9, s[72:75], 0 offen sc1")
    a("s_mov_b64 exec, s[58:59]")
    a("s_branch L_h_bar3")
    a.label("L_w5")
    a(f"v_mov_b32 v5, {L_F+12}")
    a.label("L_w5s")
    a("s_sleep 32")
    a("ds_read_b32 v6, v5")
    a("s_waitcnt lgkmcnt(0)")
    a("v_readfirstlane_b32 s6, v6")
    a("s_cmp_lt_u32 s6, 20")
    a("s_cbranch_scc1 L_w5s")
    a("v_lshlrev_b32 v9, 5, v2")
    a("v_cmp_gt_u32 vcc, 8, v2")
    a("s_mov_b32 s13, 0")
    a("s_and_b64 exec, exec, vcc")
    a.label("L_pollall")
    a("buffer_load_dword v10, v9, s[72:75], 0 offen sc1")
    a("s_add_u32 s13, s13, 1")
    a("s_waitcnt vmcnt(0)")
    a("v_cmp_gt_u32 vcc, 64, v10")
    a(f"s_cmp_ge_u32 s13, {SPIN_MAX}")
    a("s_cbranch_scc1 L_pollall_done")
    a("s_cbranch_vccz L_pollall_done")
    a("s_sleep 64")
    a("s_branch L_pollall")
    a.label("L_pollall_done")
    a("s_mov_b64 exec, s[58:59]")
    stamp(a, 12, 236, 237)
    a.label("L_h_bar3")
    a("s_barrier")
    a("s_branch L_tail")

    a.label("L_service")
    a("v_bfe_u32 v6, v2, 2, 2")
    a("v_lshl_add_u32 v6, v4, 3, v6")
    a("v_lshlrev_b32 v6, 5, v6")
    a("v_and_b32 v7, 3, v2")
    a("v_lshl_add_u32 v6, v7, 3, v6")
    a(f"v_add_u32 v10, {L_WQ}, v6")
    a("v_and_b32 v7, 7, v2")
    a("v_mul_u32_u24 v7, 896, v7")
    a("v_lshl_add_u32 v7, v4, 4, v7")
    a(f"v_add_u32 v7, {L_XN}, v7")
    a("s_waitcnt vmcnt(0)")
    stamp(a, 1, 236, 237)
    for j in range(14):
        a(f"ds_read_b64_tr_b16 v[{40+4*j}:{41+4*j}], v10 offset:{j*1024}")
        a(f"ds_read_b64_tr_b16 v[{42+4*j}:{43+4*j}], v10 offset:{j*1024+128}")
    ldsspin(0, 4, "L_spin0")
    stamp(a, 2, 236, 237)
    for j in range(14):
        a(f"ds_read_b128 v[{100+4*j}:{103+4*j}], v7 offset:{j*64}")
    for j in range(14):
        a(f"s_waitcnt lgkmcnt({13-j})")
        c = "0" if j == 0 else "v[32:35]"
        a(f"v_mfma_f32_16x16x32_bf16 v[32:35], v[{40+4*j}:{43+4*j}], v[{100+4*j}:{103+4*j}], {c}")
    a("v_cmp_gt_u32 vcc, 8, v3")
    a("v_lshlrev_b32 v5, 14, v3")
    a("v_lshl_add_u32 v5, v4, 4, v5")
    a("s_lshl_b32 s6, s98, 6")
    a("v_mov_b32 v37, s16")
    a("v_mov_b32 v39, s16")
    a(f"v_mov_b32 v6, {L_F+4}")
    a("s_sub_u32 s17, s16, 2")
    a("s_nop 1")
    a("v_cvt_pk_bf16_f32 v36, v32, v33")
    a("v_cvt_pk_bf16_f32 v38, v34, v35")
    a("s_and_b64 exec, exec, vcc")
    a(f"buffer_store_dwordx4 v[36:39], v5, s[52:55], s6 offen offset:{WS_Q} sc1")
    a("s_mov_b64 exec, 1")
    a("ds_write_b32 v6, v8")
    a("s_mov_b64 exec, s[58:59]")
    stamp(a, 3, 236, 237)
    a("v_lshlrev_b32 v5, 5, v2")
    a("s_lshl_b32 s6, s96, 14")
    a("s_lshl_b32 s7, s4, 11")
    a("s_add_u32 s15, s6, s7")
    a("s_mov_b32 s13, 0")
    a.label("L_pollq")
    a(f"buffer_load_dwordx4 v[12:15], v5, s[52:55], s15 offen offset:{WS_Q} sc1")
    a(f"buffer_load_dwordx4 v[16:19], v5, s[52:55], s15 offen offset:{WS_Q+16} sc1")
    a("s_waitcnt vmcnt(0)")
    a("s_cmp_lg_u32 s13, 2047")
    a("s_cbranch_scc1 L_pq_noat")
    a("s_mov_b64 exec, 1")
    a("buffer_atomic_add v8, v9, s[72:75], 0 offen sc1")
    a("s_mov_b64 exec, s[58:59]")
    a.label("L_pq_noat")
    a("s_add_u32 s13, s13, 1")
    a("v_subrev_u32 v20, s17, v13")
    a("v_subrev_u32 v21, s17, v15")
    a("v_subrev_u32 v22, s17, v17")
    a("v_subrev_u32 v23, s17, v19")
    a("v_max_u32 v20, v20, v21")
    a("v_max3_u32 v20, v20, v22, v23")
    a("v_cmp_lt_u32 vcc, 4, v20")
    a("s_cbranch_vccz L_pollq_done")
    a("s_cmp_lt_u32 s13, 2048")
    a("s_cbranch_scc1 L_pollq")
    a("buffer_load_dword v10, v9, s[72:75], 0 offen sc1")
    a("s_waitcnt vmcnt(0)")
    a("v_readfirstlane_b32 s6, v10")
    a(f"s_cmp_ge_u32 s13, {SPIN_MAX}")
    a("s_cbranch_scc1 L_pollq_done")
    a("s_cmp_ge_u32 s6, 64")
    a("s_cbranch_scc0 L_pollq")
    a(f"buffer_load_dwordx4 v[12:15], v5, s[52:55], s15 offen offset:{WS_Q} sc1")
    a(f"buffer_load_dwordx4 v[16:19], v5, s[52:55], s15 offen offset:{WS_Q+16} sc1")
    a("s_waitcnt vmcnt(0)")
    a.label("L_pollq_done")
    stamp(a, 4, 236, 237)
    a("v_mov_b32 v13, v14")
    a("v_mov_b32 v14, v16")
    a("v_mov_b32 v15, v18")
    a("v_lshlrev_b32 v5, 4, v2")
    a(f"v_add_u32 v5, {L_QL}, v5")
    a(f"v_mov_b32 v6, {L_F+8}")
    a("ds_write_b128 v5, v[12:15]")
    a("s_waitcnt lgkmcnt(0)")
    a("s_mov_b64 exec, 1")
    a("ds_write_b32 v6, v8")
    a("s_cmp_ge_u32 s13, 2048")
    a("s_cbranch_scc1 L_pq_noat2")
    a("buffer_atomic_add v8, v9, s[72:75], 0 offen sc1")
    a.label("L_pq_noat2")
    a("s_mov_b64 exec, s[58:59]")
    stamp(a, 5, 236, 237)
    a("s_cmp_ge_u32 s5, 28")
    a("s_cbranch_scc1 L_nowo")
    a("v_lshrrev_b32 v5, 2, v2")
    a("v_mul_u32_u24 v5, 896, v5")
    a("v_and_b32 v6, 3, v2")
    a("v_lshl_add_u32 v5, v6, 4, v5")
    a("s_mul_i32 s6, s101, 229376")
    a("s_lshl_b32 s7, s100, 6")
    a("s_add_u32 s6, s6, s7")
    a(f"s_mov_b32 s7, {L_WO}")
    for p in range(16):
        a("s_mov_b32 m0, s7")
        a("s_add_u32 s7, s7, 1024")
        a("buffer_load_dwordx4 v5, s[68:71], s6 offen lds")
        a("s_add_u32 s6, s6, 14336")
    a.label("L_nowo")
    if VX: a("s_branch L_skipdyn")
    a("s_lshl_b32 s6, s4, 3")
    a("s_add_u32 s6, s6, s96")
    a("s_lshl_b32 s6, s6, 8")
    a(f"s_add_u32 s25, s6, {WS_CNT}")
    a("v_mov_b32 v14, 0")
    a("s_mov_b32 s13, 0")
    a.label("L_pcnt")
    a("buffer_load_dword v10, v14, s[52:55], s25 offen sc1")
    a("s_add_u32 s13, s13, 1")
    a("s_waitcnt vmcnt(0)")
    a("v_readfirstlane_b32 s6, v10")
    a("s_lshr_b32 s6, s6, 8")
    a("s_sub_u32 s6, s6, s17")
    a("s_and_b32 s6, s6, 0xffffff")
    a("s_cmp_le_u32 s6, 4")
    a("s_cbranch_scc1 L_pcnt_done")
    a("s_sleep 16")
    a("s_cmp_lt_u32 s13, 1024")
    a("s_cbranch_scc1 L_pcnt")
    a("buffer_load_dword v10, v9, s[72:75], 0 offen sc1")
    a("s_waitcnt vmcnt(0)")
    a("v_readfirstlane_b32 s6, v10")
    a(f"s_cmp_ge_u32 s13, {SPIN_MAX}")
    a("s_cbranch_scc1 L_pcnt_done")
    a("s_cmp_ge_u32 s6, 64")
    a("s_cbranch_scc0 L_pcnt")
    a.label("L_pcnt_done")
    a("s_mov_b32 s22, 1")
    a(f"s_mov_b32 s23, {NSTAT}")
    a(f"s_mov_b32 s24, {NSTAT}")
    a(f"v_mov_b32 v11, {L_F+12}")
    a("v_mov_b32 v10, s22")
    a("s_waitcnt vmcnt(0)")
    a.label("L_dyn")
    a("ds_read_b32 v6, v11")
    a("s_waitcnt lgkmcnt(0)")
    a("v_readfirstlane_b32 s6, v6")
    a(f"s_add_u32 s6, s6, {LOOK}")
    a("s_cmp_ge_u32 s6, s23")
    a("s_cbranch_scc1 L_dyn_go")
    a("s_sleep 4")
    a("s_branch L_dyn")
    a.label("L_dyn_go")
    if STAMP:
        a(f"s_cmp_lg_u32 s23, {NSTAT}")
        a("s_cbranch_scc1 L_sq1")
        a("s_memrealtime s[26:27]")
        a("s_waitcnt lgkmcnt(0)")
        a.label("L_sq1")
    a(f"s_sub_u32 s6, s23, {NSTAT}")
    a("s_lshl_b64 exec, 1, s6")
    a("buffer_atomic_add v10, v14, s[52:55], s25 offen sc0 sc1")
    a("s_mov_b64 exec, s[58:59]")
    a("s_add_u32 s23, s23, 1")
    a("s_sub_u32 s6, s23, s24")
    a(f"s_cmp_le_u32 s6, {DEPTH}")
    a("s_cbranch_scc1 L_dyn")
    a(f"s_waitcnt vmcnt({DEPTH})")
    if STAMP:
        a(f"s_cmp_lg_u32 s24, {NSTAT}")
        a("s_cbranch_scc1 L_sq2")
        a("s_memrealtime s[28:29]")
        a("s_waitcnt lgkmcnt(0)")
        a.label("L_sq2")
    a(f"s_sub_u32 s6, s24, {NSTAT}")
    a("v_readlane_b32 s6, v10, s6")
    a("s_and_b32 s6, s6, 0xff")
    a(f"s_add_u32 s7, s6, {4*NSTAT}")
    a(f"s_cmp_lt_u32 s6, {128-4*NSTAT}")
    a("s_cselect_b32 s7, s7, 0x1000")
    a("s_lshl_b32 s6, s24, 2")
    a(f"s_add_u32 s6, s6, {L_NEXT}")
    a("v_mov_b32 v12, s6")
    a("v_mov_b32 v13, s7")
    a("ds_write_b32 v12, v13")
    a("s_add_u32 s24, s24, 1")
    a("s_cmp_lt_u32 s7, 128")
    a("s_cbranch_scc1 L_dyn")
    a("v_add_u32 v12, 4, v12")
    a("ds_write_b32 v12, v13")
    a("s_waitcnt vmcnt(0) lgkmcnt(0)")
    if STAMP:
        stamp(a, 16, 236, 237)
        for (sr, idx) in ((26, 14), (28, 15)):
            a(f"v_mov_b32 v236, s{sr}")
            a("s_lshl_b32 s42, s2, 7")
            a(f"s_add_u32 s42, s42, {0x200000 + idx*4}")
            a("v_mov_b32 v237, 0")
            a("s_mov_b64 exec, 1")
            a("buffer_store_dword v236, v237, s[52:55], s42 offen")
            a("s_mov_b64 exec, s[58:59]")
    a.label("L_skipdyn")
    a("s_waitcnt vmcnt(0)")
    a("s_barrier")
    stamp(a, 7, 236, 237)

    a.label("L_tail")
    a("s_cmp_ge_u32 s5, 14")
    a("s_cselect_b32 s99, 1, 0")
    a("s_mul_i32 s6, s99, 14")
    a("s_sub_u32 s100, s5, s6")
    a("s_lshl_b32 s101, s4, 1")
    a("s_add_u32 s101, s101, s99")
    a("s_cmp_eq_u32 s3, 7")
    a("s_cbranch_scc1 L_now")
    a("v_mul_u32_u24 v5, 56, v2")
    for (base, sr) in ((128, 80), (144, 84), (160, 88)):
        for i in range(3):
            a(f"buffer_load_dwordx4 v[{base+4*i}:{base+4*i+3}], v5, s[{sr}:{sr+3}], 0 offen offset:{16*i}")
        a(f"buffer_load_dwordx2 v[{base+12}:{base+13}], v5, s[{sr}:{sr+3}], 0 offen offset:48")
    a("v_mov_b32 v6, 0")
    a("buffer_load_ushort v174, v6, s[92:95], 0 offen")
    a.label("L_now")
    a("s_cmp_ge_u32 s5, 28")
    a("s_cbranch_scc1 L_stageD")
    a("s_cmp_ge_u32 s3, 4")
    a("s_cbranch_scc1 L_bar4")
    a("v_lshrrev_b32 v5, 5, v0")
    a("v_and_b32 v6, 31, v0")
    a("v_lshlrev_b32 v7, 13, v5")
    a("v_lshl_add_u32 v7, v6, 5, v7")
    a("v_lshlrev_b32 v8, 6, v5")
    a("s_lshl_b32 s10, s4, 16")
    a("s_lshl_b32 s11, s99, 10")
    a("s_add_u32 s10, s10, s11")
    a(f"s_add_u32 s10, s10, {WS_OP}")
    a("s_add_u32 s11, s10, 4096")
    a("s_lshl_b32 s12, s4, 9")
    a("s_lshl_b32 s6, s99, 3")
    a("s_add_u32 s12, s12, s6")
    a(f"s_add_u32 s12, s12, {WS_ML}")
    a("v_and_b32 v9, 31, v2")
    a("v_lshlrev_b32 v9, 4, v9")
    a("s_lshl_b32 s15, s4, 9")
    a(f"s_add_u32 s15, s15, {WS_ML}")
    a("s_mov_b32 s13, 0")
    if BULK & 1: a("s_branch L_pollC")
    a.label("L_pollC0")
    a("buffer_load_dwordx4 v[16:19], v9, s[52:55], s15 offen sc1")
    a("s_add_u32 s13, s13, 1")
    a("s_waitcnt vmcnt(0)")
    anysent(a, range(16, 20), 56)
    a("v_cmp_eq_u32 vcc, -1, v56")
    a(f"s_cmp_ge_u32 s13, {SPIN_MAX}")
    a("s_cbranch_scc1 L_pollC")
    a("s_cbranch_vccz L_pollC")
    a("s_sleep 8")
    a("s_branch L_pollC0")
    a.label("L_pollC")
    for s in range(4):
        a(f"buffer_load_dwordx2 v[{48+2*s}:{49+2*s}], v8, s[52:55], s12 offen offset:{s*16} sc1")
    for s in range(4):
        a(f"buffer_load_dwordx4 v[{16+8*s}:{19+8*s}], v7, s[52:55], s{10+(s>>1)} offen offset:{(s&1)*2048} sc1")
        a(f"buffer_load_dwordx4 v[{20+8*s}:{23+8*s}], v7, s[52:55], s{10+(s>>1)} offen offset:{(s&1)*2048+16} sc1")
    a("s_add_u32 s13, s13, 1")
    a("s_waitcnt vmcnt(0)")
    anysent(a, range(16, 56), 56)
    a("v_cmp_eq_u32 vcc, -1, v56")
    a(f"s_cmp_ge_u32 s13, {SPIN_MAX}")
    a("s_cbranch_scc1 L_pollC_done")
    a("s_cbranch_vccz L_pollC_done")
    a("s_sleep 4")
    a("s_branch L_pollC")
    a.label("L_pollC_done")
    if STAMP:
        a("s_cmp_lg_u32 s3, 0")
        a("s_cbranch_scc1 L_st8")
        stamp(a, 8)
        a.label("L_st8")
    a("v_max_f32 v56, v48, v50")
    a("v_max3_f32 v56, v56, v52, v54")
    for s in range(4):
        a(f"v_sub_f32 v{48+2*s}, v{48+2*s}, v56")
        a(f"v_exp_f32 v{48+2*s}, v{48+2*s}")
    a("s_nop 0")
    a("v_mul_f32 v57, v48, v49")
    for s in range(1, 4):
        a(f"v_fmac_f32 v57, v{48+2*s}, v{49+2*s}")
    a("v_rcp_f32 v57, v57")
    a("s_nop 0")
    for s in range(4):
        a(f"v_mul_f32 v{48+2*s}, v{48+2*s}, v57")
    for i in range(8):
        a(f"v_mul_f32 v{60+i}, v48, v{16+i}")
        for s in range(1, 4):
            a(f"v_fmac_f32 v{60+i}, v{48+2*s}, v{16+8*s+i}")
    pack8(a, 60, 68)
    a("v_lshlrev_b32 v6, 4, v0")
    a(f"v_add_u32 v6, {L_O}, v6")
    a("ds_write_b128 v6, v[68:71]")
    a("s_waitcnt lgkmcnt(0)")
    a.label("L_bar4")
    a("s_barrier")
    a("s_cmp_ge_u32 s3, 2")
    a("s_cbranch_scc1 L_stageD")
    a("v_bfe_u32 v5, v2, 2, 2")
    a("v_lshl_add_u32 v5, v4, 3, v5")
    a("v_lshlrev_b32 v5, 6, v5")
    a("v_and_b32 v6, 3, v2")
    a("v_lshl_add_u32 v5, v6, 3, v5")
    a("s_lshl_b32 s6, s3, 5")
    a(f"s_add_u32 s6, s6, {L_WO}")
    a("v_add_u32 v5, s6, v5")
    a("v_and_b32 v6, 7, v2")
    a("v_lshlrev_b32 v6, 9, v6")
    a("v_lshl_add_u32 v6, v4, 4, v6")
    a(f"v_add_u32 v6, {L_O}, v6")
    for j in range(8):
        a(f"ds_read_b64_tr_b16 v[{16+4*j}:{17+4*j}], v5 offset:{j*2048}")
        a(f"ds_read_b64_tr_b16 v[{18+4*j}:{19+4*j}], v5 offset:{j*2048+256}")
        a(f"ds_read_b128 v[{48+4*j}:{51+4*j}], v6 offset:{j*64}")
    a("s_waitcnt lgkmcnt(0)")
    for j in range(8):
        c = "0" if j == 0 else "v[80:83]"
        a(f"v_mfma_f32_16x16x32_bf16 v[80:83], v[{16+4*j}:{19+4*j}], v[{48+4*j}:{51+4*j}], {c}")
    a("v_cmp_gt_u32 vcc, 8, v3")
    a("v_mul_u32_u24 v5, 1792, v3")
    a("v_lshl_add_u32 v5, v4, 4, v5")
    a("s_mul_i32 s6, s101, 14336")
    a("s_lshl_b32 s7, s100, 7")
    a("s_add_u32 s6, s6, s7")
    a("s_lshl_b32 s7, s3, 6")
    a("s_add_u32 s6, s6, s7")
    a(f"s_add_u32 s6, s6, {WS_P2}")
    a("s_nop 3")
    a("s_and_b64 exec, exec, vcc")
    a("buffer_store_dwordx4 v[80:83], v5, s[52:55], s6 offen sc1")
    a("s_lshl_b32 s6, s98, 2")
    a(f"s_add_u32 s6, s6, {WS_FL}")
    a("v_mov_b32 v6, 0")
    a("s_mov_b64 exec, 1")
    a("s_cmp_eq_u32 s3, 1")
    a("s_cbranch_scc0 L_noflag")
    a("buffer_store_dword v6, v6, s[52:55], s6 offen sc1")
    a.label("L_noflag")
    a("s_mov_b64 exec, s[58:59]")
    if STAMP:
        a("s_cmp_lg_u32 s3, 0")
        a("s_cbranch_scc1 L_st9")
        stamp(a, 9)
        a.label("L_st9")

    a.label("L_stageD")
    a("s_lshr_b32 s96, s2, 5")
    a("s_and_b32 s97, s2, 31")
    a("s_cmp_lg_u32 s3, 7")
    a("s_cbranch_scc1 L_bar5")
    a("v_lshlrev_b32 v5, 5, v2")
    a("v_mov_b32 v6, 0x7fff0000")
    a("v_cndmask_b32 v5, v6, v5, s[56:57]")
    a("v_lshlrev_b32 v7, 4, v2")
    a("v_cndmask_b32 v7, v6, v7, s[56:57]")
    a("s_mul_i32 s6, s96, 896")
    a("buffer_load_dwordx4 v[8:11], v7, s[60:63], s6 offen")
    a("v_lshlrev_b32 v13, 4, v2")
    a("v_and_b32 v12, 7, v2")
    a("v_cmp_ne_u32 s[18:19], 7, v12")
    a("s_mov_b32 s13, 0")
    if BULK & 2: a("s_branch L_pollD")
    a.label("L_pollD0")
    a(f"s_mov_b32 s6, {WS_FL}")
    a("buffer_load_dwordx4 v[16:19], v13, s[52:55], s6 offen sc1")
    a("s_add_u32 s13, s13, 1")
    a("s_waitcnt vmcnt(0)")
    anysent(a, range(16, 20), 12)
    a("v_cmp_eq_u32 vcc, -1, v12")
    a("s_and_b64 vcc, vcc, s[18:19]")
    a(f"s_cmp_ge_u32 s13, {SPIN_MAX}")
    a("s_cbranch_scc1 L_pollD")
    a("s_cmp_eq_u64 vcc, 0")
    a("s_cbranch_scc1 L_pollD")
    a("s_sleep 8")
    a("s_branch L_pollD0")
    a.label("L_pollD")
    a("s_mul_i32 s6, s96, 1792")
    a(f"s_add_u32 s6, s6, {WS_P2}")
    for h in range(16):
        a(f"buffer_load_dwordx4 v[{128+8*h}:{131+8*h}], v5, s[52:55], s6 offen sc1")
        a(f"buffer_load_dwordx4 v[{132+8*h}:{135+8*h}], v5, s[52:55], s6 offen offset:16 sc1")
        a("s_add_u32 s6, s6, 14336")
    a("s_add_u32 s13, s13, 1")
    a("s_waitcnt vmcnt(0)")
    anysent(a, range(128, 256), 12)
    a("v_cmp_eq_u32 vcc, -1, v12")
    a(f"s_cmp_ge_u32 s13, {SPIN_MAX}")
    a("s_cbranch_scc1 L_pollD_done")
    a("s_cbranch_vccz L_pollD_done")
    a("s_sleep 4")
    a("s_branch L_pollD")
    a.label("L_pollD_done")
    stamp(a, 10, 13, 14)
    for h in range(1, 16):
        for i in range(8):
            a(f"v_add_f32 v{128+i}, v{128+i}, v{128+8*h+i}")
    unpack8(a, 8, 16)
    for i in range(0, 8, 2):
        bf16r2(a, 128+i, 129+i, 12)
        a(f"v_add_f32 v{16+i}, v{16+i}, v{128+i}")
        a(f"v_add_f32 v{17+i}, v{17+i}, v{129+i}")
        bf16r2(a, 16+i, 17+i, 12)
    a("v_lshlrev_b32 v5, 5, v2")
    a(f"v_add_u32 v5, {L_H}, v5")
    a("s_mov_b64 exec, s[56:57]")
    a("ds_write_b128 v5, v[16:19]")
    a("ds_write_b128 v5, v[20:23] offset:16")
    a("s_mov_b64 exec, s[58:59]")
    layernorm8(a, 16, 32, 33, 34, 56)
    for i in range(8):
        a(f"v_cndmask_b32 v{16+i}, 0, v{16+i}, s[56:57]")
    layernorm8(a, 16, 32, 33, 34, 56)
    a("s_mov_b64 exec, s[56:57]")
    a(f"ds_write_b128 v5, v[16:19] offset:{L_T-L_H}")
    a(f"ds_write_b128 v5, v[20:23] offset:{L_T-L_H+16}")
    a("s_mov_b64 exec, s[58:59]")
    a("s_waitcnt lgkmcnt(0)")
    stamp(a, 11, 13, 14)
    a("s_barrier")
    a("s_branch L_done")
    a.label("L_bar5")
    a("s_waitcnt vmcnt(0)")
    for i in range(14):
        a(f"v_lshlrev_b32 v{16+2*i}, 16, v{128+i}")
        a(f"v_and_b32 v{17+2*i}, 0xffff0000, v{128+i}")
        a(f"v_lshlrev_b32 v{44+2*i}, 16, v{144+i}")
        a(f"v_and_b32 v{45+2*i}, 0xffff0000, v{144+i}")
    a("v_lshlrev_b32 v174, 16, v174")
    C1 = -2.0 * LOG2E * math.sqrt(2.0/math.pi)
    C2 = C1 * 0.044715
    a(f"v_mov_b32 v72, {hex(f2u(C1))}")
    a(f"v_mov_b32 v73, {hex(f2u(C1))}")
    a(f"v_mov_b32 v74, {hex(f2u(C2))}")
    a(f"v_mov_b32 v75, {hex(f2u(C2))}")
    a("v_mov_b32 v76, 1.0")
    a("v_mov_b32 v77, 1.0")
    a("v_mov_b32 v78, 0")
    a("v_mov_b32 v79, 0")
    a("s_mul_i32 s6, s97, 56")
    a("s_lshl_b32 s7, s3, 3")
    a("s_add_u32 s6, s6, s7")
    a(f"s_add_u32 s6, s6, {L_H}")
    a("v_mov_b32 v5, s6")
    a("s_barrier")
    a(f"ds_read_b64 v[80:81], v5 offset:{L_T-L_H}")
    a("ds_read_b64 v[82:83], v5")
    a("s_waitcnt lgkmcnt(0)")
    for i in range(14):
        U = [84, 92]; Tt = [86, 94]; C = [88, 96]
        for d in range(2):
            osel = "op_sel_hi:[0,1]" if d == 0 else "op_sel:[1,0] op_sel_hi:[1,1]"
            a(f"v_pk_mul_f32 v[{U[d]}:{U[d]+1}], v[80:81], v[{16+2*i}:{17+2*i}] {osel}")
        for d in range(2):
            bf16r2(a, U[d], U[d]+1, C[d])
        for d in range(2):
            a(f"v_pk_add_f32 v[{U[d]}:{U[d]+1}], v[{U[d]}:{U[d]+1}], v[{44+2*i}:{45+2*i}]")
        for d in range(2):
            bf16r2(a, U[d], U[d]+1, C[d])
        for d in range(2):
            a(f"v_pk_mul_f32 v[{Tt[d]}:{Tt[d]+1}], v[{U[d]}:{U[d]+1}], v[{U[d]}:{U[d]+1}]")
        for d in range(2):
            a(f"v_pk_fma_f32 v[{Tt[d]}:{Tt[d]+1}], v[{Tt[d]}:{Tt[d]+1}], v[74:75], v[72:73]")
        for d in range(2):
            a(f"v_pk_mul_f32 v[{Tt[d]}:{Tt[d]+1}], v[{Tt[d]}:{Tt[d]+1}], v[{U[d]}:{U[d]+1}]")
        for d in range(2):
            a(f"v_exp_f32 v{Tt[d]}, v{Tt[d]}")
            a(f"v_exp_f32 v{Tt[d]+1}, v{Tt[d]+1}")
        for d in range(2):
            a(f"v_pk_add_f32 v[{Tt[d]}:{Tt[d]+1}], v[{Tt[d]}:{Tt[d]+1}], v[76:77]")
        for d in range(2):
            a(f"v_rcp_f32 v{Tt[d]}, v{Tt[d]}")
            a(f"v_rcp_f32 v{Tt[d]+1}, v{Tt[d]+1}")
        for d in range(2):
            a(f"v_pk_mul_f32 v[{Tt[d]}:{Tt[d]+1}], v[{Tt[d]}:{Tt[d]+1}], v[{U[d]}:{U[d]+1}]")
        for d in range(2):
            a(f"v_cvt_pk_bf16_f32 v{C[d]}, v{Tt[d]}, v{Tt[d]+1}")
        for d in range(2):
            a(f"v_dot2_f32_bf16 v{78+d}, v{C[d]}, v{160+i}, v{78+d}")
    a("s_nop 3")
    wave_reduce2(a, "v_add_f32", 78, 84, 79, 85)
    bf16r2(a, 78, 79, 84)
    a("v_add_f32 v78, v78, v174")
    a("v_add_f32 v79, v79, v174")
    bf16r2(a, 78, 79, 84)
    a("v_add_f32 v78, v78, v82")
    a("v_add_f32 v79, v79, v83")
    a("v_cvt_pk_bf16_f32 v78, v78, v79")
    a("s_mul_i32 s6, s96, 896")
    a("s_mul_i32 s7, s97, 28")
    a("s_add_u32 s6, s6, s7")
    a("s_lshl_b32 s7, s3, 2")
    a("s_add_u32 s6, s6, s7")
    a("v_mov_b32 v5, 0")
    a("s_mov_b64 exec, 1")
    a("buffer_store_dword v78, v5, s[76:79], s6 offen")
    if STAMP:
        a("s_cmp_lg_u32 s3, 0")
        a("s_cbranch_scc1 L_done")
        stamp(a, 13)
    a.label("L_done")
    a("s_endpgm")
    a.raw(".section .rodata,\"a\"")
    a.raw(".p2align 6")
    a.raw(f".amdhsa_kernel {n}")
    a.raw("  .amdhsa_next_free_vgpr 256")
    a.raw("  .amdhsa_next_free_sgpr 102")
    a.raw("  .amdhsa_accum_offset 256")
    a.raw("  .amdhsa_group_segment_fixed_size 0")
    a.raw("  .amdhsa_kernarg_size 104")
    a.raw("  .amdhsa_user_sgpr_count 2")
    a.raw("  .amdhsa_user_sgpr_kernarg_segment_ptr 1")
    a.raw("  .amdhsa_system_sgpr_workgroup_id_x 1")
    a.raw(".end_amdhsa_kernel")

def main():
    a = Asm()
    hdr = open("cdna_kernels/%s.s.ref" % NAME).read().split("\n")
    for l in hdr:
        if l.startswith("; @launch"):
            break
        a.raw(l)
    a.raw(f"; @launch grid=(256,1,1) block=(512,1,1) lds={LDS_BYTES}")
    a.raw('.amdgcn_target "amdgcn-amd-amdhsa--gfx950"')
    gen(a)
    out = sys.argv[1] if len(sys.argv) > 1 else OUT
    open(out, "w").write(a.text())

if __name__ == "__main__":
    main()
```

```python
import sys, math, struct, os, re

NAME = "sequential_preLN__gqa_block_cached__mixer_token_mlp__decode"
KNAME = NAME + "_kernel"
OUT = "cdna_kernels/%s.s" % NAME

def f2u(x):
    return struct.unpack("<I", struct.pack("<f", x))[0]

class Asm:
    def __init__(self):
        self.lines = []
    def __call__(self, s):
        for l in s.strip("\n").split("\n"):
            l = l.strip()
            m = re.search(r"offset:(\d+)", l)
            if m and l.startswith("buffer_"):
                assert int(m.group(1)) < 4096, l
            if m and l.startswith("ds_"):
                assert int(m.group(1)) < 65536, l
            self.lines.append("    " + l)
    def label(self, l):
        self.lines.append(l + ":")
    def raw(self, s):
        self.lines.append(s)
    def text(self):
        return "\n".join(self.lines) + "\n"

WS_Q = 0
WS_OP = 0x20000
WS_ML = 0xA0000
WS_P2 = 0xB0000
WS_FL = 0xA2000
WS_CNT = 0xA4000
WS_BYTES = 0x400000

LOG2E = 1.4426950408889634
SCALE_C = 0.0625 * LOG2E
NT = os.environ.get("NT", " nt")

MB = 131072
L_WQ = MB
L_XN = MB + 14336
L_QL = MB + 21504
L_WO = MB
L_O = MB + 22528
L_H = MB + 26624
L_T = MB + 28672
L_F = MB + 31744
L_NEXT = MB + 31808
NSTAT = int(os.environ.get("NSTAT", "24"))
LOOK = int(os.environ.get("LOOK", "6"))
DEPTH = int(os.environ.get("DEPTH", "3"))
VX = int(os.environ.get("VX", "0"))
BULK = int(os.environ.get("BULK", "0"))
IPF = int(os.environ.get("IPF", "0"))
LDS_BYTES = 163840

SPIN_MAX = 1 << 18

def srd(a, d, base, nbytes):
    a(f"s_mov_b32 s{d}, s{base}")
    a(f"s_and_b32 s{d+1}, s{base+1}, 0xffff")
    a(f"s_mov_b32 s{d+2}, {nbytes}")
    a(f"s_mov_b32 s{d+3}, 0x00020000")

def wave_reduce(a, op, v, t):
    for ctl in ["quad_perm:[1,0,3,2]", "quad_perm:[2,3,0,1]", "row_half_mirror", "row_mirror"]:
        a("s_nop 1")
        a(f"{op}_dpp v{v}, v{v}, v{v} {ctl} row_mask:0xf bank_mask:0xf")
    group_reduce(a, op, v, t)

def group_reduce(a, op, v, t):
    a(f"v_mov_b32 v{t}, v{v}")
    a("s_nop 1")
    a(f"v_permlane16_swap_b32 v{v}, v{t}")
    a("s_nop 1")
    a(f"{op} v{v}, v{v}, v{t}")
    a(f"v_mov_b32 v{t}, v{v}")
    a("s_nop 1")
    a(f"v_permlane32_swap_b32 v{v}, v{t}")
    a("s_nop 1")
    a(f"{op} v{v}, v{v}, v{t}")

def wave_reduce2(a, op, v, t, w, u):
    for ctl in ["quad_perm:[1,0,3,2]", "quad_perm:[2,3,0,1]", "row_half_mirror", "row_mirror"]:
        a("s_nop 0")
        a(f"{op}_dpp v{v}, v{v}, v{v} {ctl} row_mask:0xf bank_mask:0xf")
        a(f"{op}_dpp v{w}, v{w}, v{w} {ctl} row_mask:0xf bank_mask:0xf")
    for sw in ["v_permlane16_swap_b32", "v_permlane32_swap_b32"]:
        a(f"v_mov_b32 v{t}, v{v}")
        a(f"v_mov_b32 v{u}, v{w}")
        a("s_nop 1")
        a(f"{sw} v{v}, v{t}")
        a(f"{sw} v{w}, v{u}")
        a("s_nop 1")
        a(f"{op} v{v}, v{v}, v{t}")
        a(f"{op} v{w}, v{w}, v{u}")

def bf16r(a, v):
    a(f"v_cvt_pk_bf16_f32 v{v}, v{v}, v{v}")
    a(f"v_and_b32 v{v}, 0xffff0000, v{v}")

def bf16r2(a, v, w, t):
    a(f"v_cvt_pk_bf16_f32 v{t}, v{v}, v{w}")
    a(f"v_lshlrev_b32 v{v}, 16, v{t}")
    a(f"v_and_b32 v{w}, 0xffff0000, v{t}")

def unpack8(a, src, dst):
    for i in range(4):
        a(f"v_lshlrev_b32 v{dst+2*i}, 16, v{src+i}")
        a(f"v_and_b32 v{dst+2*i+1}, 0xffff0000, v{src+i}")

def layernorm8(a, x, t0, t1, t2, smask):
    a(f"v_add_f32 v{t0}, v{x}, v{x+1}")
    for i in range(2, 8):
        a(f"v_add_f32 v{t0}, v{t0}, v{x+i}")
    wave_reduce(a, "v_add_f32", t0, t1)
    a(f"v_mul_f32 v{t0}, {hex(f2u(1.0/448))}, v{t0}")
    a(f"v_sub_f32 v{t2}, v{x}, v{t0}")
    a(f"v_mul_f32 v{t1}, v{t2}, v{t2}")
    for i in range(1, 8):
        a(f"v_sub_f32 v{t2}, v{x+i}, v{t0}")
        a(f"v_fmac_f32 v{t1}, v{t2}, v{t2}")
    a(f"v_cndmask_b32 v{t1}, 0, v{t1}, s[{smask}:{smask+1}]")
    wave_reduce(a, "v_add_f32", t1, t2)
    a(f"v_mul_f32 v{t1}, {hex(f2u(1.0/448))}, v{t1}")
    bf16r(a, t1)
    a(f"v_add_f32 v{t1}, {hex(f2u(1e-5))}, v{t1}")
    bf16r(a, t1)
    a(f"v_sqrt_f32 v{t1}, v{t1}")
    a("s_nop 0")
    bf16r(a, t1)
    a(f"v_rcp_f32 v{t1}, v{t1}")
    bf16r(a, t0)
    for i in range(0, 8, 2):
        a(f"v_sub_f32 v{x+i}, v{x+i}, v{t0}")
        a(f"v_sub_f32 v{x+i+1}, v{x+i+1}, v{t0}")
        bf16r2(a, x+i, x+i+1, t2)
        a(f"v_mul_f32 v{x+i}, v{x+i}, v{t1}")
        a(f"v_mul_f32 v{x+i+1}, v{x+i+1}, v{t1}")
        bf16r2(a, x+i, x+i+1, t2)

def layernorm8x2(a, x, y, tx, ty, smask):
    t0, t1, t2 = tx; u0, u1, u2 = ty
    a(f"v_add_f32 v{t0}, v{x}, v{x+1}")
    a(f"v_add_f32 v{u0}, v{y}, v{y+1}")
    for i in range(2, 8):
        a(f"v_add_f32 v{t0}, v{t0}, v{x+i}")
        a(f"v_add_f32 v{u0}, v{u0}, v{y+i}")
    wave_reduce2(a, "v_add_f32", t0, t1, u0, u1)
    a(f"v_mul_f32 v{t0}, {hex(f2u(1.0/448))}, v{t0}")
    a(f"v_mul_f32 v{u0}, {hex(f2u(1.0/448))}, v{u0}")
    for i in range(8):
        a(f"v_sub_f32 v{t2}, v{x+i}, v{t0}")
        a(f"v_sub_f32 v{u2}, v{y+i}, v{u0}")
        if i == 0:
            a(f"v_mul_f32 v{t1}, v{t2}, v{t2}")
            a(f"v_mul_f32 v{u1}, v{u2}, v{u2}")
        else:
            a(f"v_fmac_f32 v{t1}, v{t2}, v{t2}")
            a(f"v_fmac_f32 v{u1}, v{u2}, v{u2}")
    a(f"v_cndmask_b32 v{t1}, 0, v{t1}, s[{smask}:{smask+1}]")
    a(f"v_cndmask_b32 v{u1}, 0, v{u1}, s[{smask}:{smask+1}]")
    wave_reduce2(a, "v_add_f32", t1, t2, u1, u2)
    a(f"v_mul_f32 v{t1}, {hex(f2u(1.0/448))}, v{t1}")
    a(f"v_mul_f32 v{u1}, {hex(f2u(1.0/448))}, v{u1}")
    bf16r2(a, t1, u1, t2)
    a(f"v_add_f32 v{t1}, {hex(f2u(1e-5))}, v{t1}")
    a(f"v_add_f32 v{u1}, {hex(f2u(1e-5))}, v{u1}")
    bf16r2(a, t1, u1, t2)
    a(f"v_sqrt_f32 v{t1}, v{t1}")
    a(f"v_sqrt_f32 v{u1}, v{u1}")
    a("s_nop 0")
    bf16r2(a, t1, u1, t2)
    a(f"v_rcp_f32 v{t1}, v{t1}")
    a(f"v_rcp_f32 v{u1}, v{u1}")
    bf16r2(a, t0, u0, t2)
    for (z, m, r_) in ((x, t0, t1), (y, u0, u1)):
        for i in range(0, 8, 2):
            a(f"v_sub_f32 v{z+i}, v{z+i}, v{m}")
            a(f"v_sub_f32 v{z+i+1}, v{z+i+1}, v{m}")
            bf16r2(a, z+i, z+i+1, t2)
            a(f"v_mul_f32 v{z+i}, v{z+i}, v{r_}")
            a(f"v_mul_f32 v{z+i+1}, v{z+i+1}, v{r_}")

def pack8(a, x, dst):
    for i in range(4):
        a(f"v_cvt_pk_bf16_f32 v{dst+i}, v{x+2*i}, v{x+2*i+1}")

def anysent(a, regs, t):
    regs = list(regs)
    a(f"v_max_u32 v{t}, v{regs[0]}, v{regs[1]}")
    i = 2
    while i < len(regs):
        if i + 1 < len(regs):
            a(f"v_max3_u32 v{t}, v{t}, v{regs[i]}, v{regs[i+1]}")
            i += 2
        else:
            a(f"v_max_u32 v{t}, v{t}, v{regs[i]}")
            i += 1

QF = 16; OA = 64; KF = 128; VF = 160; KOFF = 192; VOFF = 200; KRA = 208; VRA = 212
SA = 220; PB = 224; M = 226; L = 227; AL = 228; T0 = 229; T1 = 230; T2 = 231

STAMP = int(os.environ.get("STAMP", "0"))
PRE = int(os.environ.get("PRE", "2"))
LATE0 = int(os.environ.get("LATE0", "0"))
MAP = int(os.environ.get("MAP", "1"))
def stamp(a, idx, va=233, vb=234):
    if not STAMP: return
    a("s_memrealtime s[42:43]")
    a("s_waitcnt lgkmcnt(0)")
    a(f"v_mov_b32 v{va}, s42")
    a("s_lshl_b32 s42, s2, 7")
    a(f"s_add_u32 s42, s42, {0x200000 + idx*4}")
    a(f"v_mov_b32 v{vb}, 0")
    a("s_mov_b64 exec, 1")
    a(f"buffer_store_dword v{va}, v{vb}, s[52:55], s42 offen")
    a("s_mov_b64 exec, s[58:59]")

def gen(a):
    n = KNAME
    a.raw(".text")
    a.raw(f".globl {n}")
    a.raw(".p2align 8")
    a.raw(f".type {n},@function")
    a.label(n)
    a("s_cmp_ge_u32 s2, 256")
    a("s_cbranch_scc1 L_done")
    a("s_load_dwordx16 s[16:31], s[0:1], 0")
    a("s_load_dwordx8 s[32:39], s[0:1], 64")
    a("s_load_dwordx2 s[40:41], s[0:1], 96")
    a("v_lshrrev_b32 v1, 6, v0")
    a("v_and_b32 v2, 63, v0")
    a("v_and_b32 v3, 15, v2")
    a("v_readfirstlane_b32 s3, v1")
    a("v_lshrrev_b32 v4, 4, v2")
    if MAP == 0:
        a("s_and_b32 s4, s2, 7")
        a("s_lshr_b32 s5, s2, 3")
    else:
        a("s_lshr_b32 s4, s2, 5")
        a("s_and_b32 s5, s2, 31")
    a("s_lshr_b32 s96, s5, 2")
    a("s_and_b32 s97, s5, 3")
    a("s_lshl_b32 s98, s4, 5")
    a("s_add_u32 s98, s98, s5")
    a("v_cmp_gt_u32 s[56:57], 56, v2")
    a("s_mov_b64 s[58:59], exec")
    a("s_waitcnt lgkmcnt(0)")
    srd(a, 44, 18, 0x10000000)
    srd(a, 48, 20, 0x10000000)
    srd(a, 52, 40, WS_BYTES)
    srd(a, 60, 16, 7168)
    srd(a, 64, 22, 448*4096*2)
    srd(a, 68, 24, 4096*448*2)
    srd(a, 72, 38, 256)
    srd(a, 76, 36, 7168)
    srd(a, 80, 28, 3584)
    srd(a, 84, 30, 3584)
    srd(a, 88, 32, 3584)
    srd(a, 92, 34, 4)
    a("s_cmp_ge_u32 s3, 4")
    a("s_cbranch_scc1 L_helpers")

    if STAMP:
        a("s_cmp_lg_u32 s3, 0")
        a("s_cbranch_scc1 L_st0")
        stamp(a, 0)
        a.label("L_st0")
    a("v_lshrrev_b32 v7, 5, v2")
    a("v_and_b32 v8, 31, v2")
    for p in range(8):
        a(f"v_add_u32 v5, {2*p}, v7")
        a("v_xor_b32 v6, v8, v5")
        a("v_lshlrev_b32 v6, 4, v6")
        a(f"v_lshl_add_u32 v{KOFF+p}, v7, 9, v6")
        a(f"v_add_u32 v{KOFF+p}, {p*4096-(p&3)*1024}, v{KOFF+p}")
        a("v_and_b32 v5, 7, v5")
        a("v_lshlrev_b32 v5, 1, v5")
        a("v_xor_b32 v6, v8, v5")
        a("v_lshlrev_b32 v6, 4, v6")
        a(f"v_lshl_add_u32 v{VOFF+p}, v7, 9, v6")
        a(f"v_add_u32 v{VOFF+p}, {p*4096-(p&3)*1024}, v{VOFF+p}")
    a("s_lshl_b32 s8, s3, 15")
    a("s_lshl_b32 s20, s96, 3")
    a("s_add_u32 s20, s20, s4")
    a("s_lshl_b32 s20, s20, 22")
    a("s_lshl_b32 s6, s3, 10")
    a("s_add_u32 s20, s20, s6")
    a(f"s_mul_i32 s6, s97, {NSTAT*32768}")
    a("s_add_u32 s9, s20, s6")

    def issue(kind, slot):
        srd_ = "s[44:47]" if kind == "K" else "s[48:51]"
        so = "s9"
        off = KOFF if kind == "K" else VOFF
        a(f"s_add_u32 s11, s8, {slot*8192}")
        a("s_mov_b32 m0, s11")
        a(f"s_add_u32 s12, s8, {slot*8192+4096}")
        for p in range(4):
            a(f"buffer_load_dwordx4 v{off+p}, {srd_}, {so} offen offset:{p*1024}{NT} lds")
        a("s_mov_b32 m0, s12")
        a("s_nop 0")
        for p in range(4):
            a(f"buffer_load_dwordx4 v{off+4+p}, {srd_}, {so} offen offset:{p*1024}{NT} lds")

    def ldsspin(word, target, lab):
        a(f"v_mov_b32 v5, {L_F + word*4}")
        a.label(lab)
        a("ds_read_b32 v6, v5")
        a("s_waitcnt lgkmcnt(0)")
        a("v_readfirstlane_b32 s6, v6")
        a(f"s_cmp_ge_u32 s6, {target}")
        a(f"s_cbranch_scc1 {lab}_d")
        a("s_sleep 1")
        a(f"s_branch {lab}")
        a.label(lab + "_d")

    units = [("K", 0), ("V", 1), ("K", 2), ("V", 3)]
    a("s_barrier")
    assert PRE == 2
    for u in units[:2]: issue(*u)
    a("s_add_u32 s9, s9, 32768")
    for jj in range(4):
        a(f"v_add_u32 v5, {4*jj}, v4")
        a("v_xor_b32 v5, v5, v3")
        a("v_lshlrev_b32 v5, 4, v5")
        a(f"v_lshl_add_u32 v5, v3, 9, v5")
        a(f"v_add_u32 v{KRA+jj}, s8, v5")
    a("v_bfe_u32 v5, v2, 2, 2")
    a("v_lshl_add_u32 v5, v4, 2, v5")
    a("v_and_b32 v6, 7, v5")
    a("v_and_b32 v7, 3, v2")
    a("v_lshlrev_b32 v7, 3, v7")
    a("v_lshl_add_u32 v7, v5, 9, v7")
    a("v_add_u32 v7, s8, v7")
    for nn in range(8):
        a(f"v_xor_b32 v5, {nn}, v6")
        a(f"v_lshl_add_u32 v{VRA+nn}, v5, 5, v7")
    for i in range(64):
        a(f"v_mov_b32 v{OA+i}, 0")
    a(f"v_mov_b32 v{M}, 0xf149f2ca")
    a(f"v_mov_b32 v{L}, 0")
    a(f"s_mov_b32 s14, {hex(f2u(SCALE_C))}")
    if PRE < 4:
        ldsspin(1, 1, "L_spin1")
        for u in units[PRE:]: issue(*u)
    ldsspin(2, 1, "L_spin2")
    a("v_and_b32 v5, 1, v2")
    a("v_lshlrev_b32 v5, 9, v5")
    a("v_lshl_add_u32 v5, v4, 4, v5")
    a(f"v_add_u32 v5, {L_QL}, v5")
    for j in range(8):
        a(f"ds_read_b128 v[{QF+4*j}:{QF+4*j+3}], v5 offset:{j*64}")
    a("s_waitcnt lgkmcnt(0)")
    a(f"v_mov_b32 v235, {L_NEXT+8}")
    a(f"v_mov_b32 v238, {L_F+12}")

    def step(kslot, vslot, do_issue, wk, wv, tag):
        a("s_cmp_eq_u32 s15, 1000")
        a(f"s_cbranch_scc1 L_wk_{tag}")
        a("s_waitcnt vmcnt(0)")
        a.label(f"L_wk_{tag}")
        a(f"s_waitcnt vmcnt({wk})")
        a("v_mov_b32 v237, s13")
        a("ds_read_b32 v236, v235")
        if VX != 2: a("ds_write_b32 v238, v237")
        for j in range(8):
            a(f"ds_read_b128 v[{KF+4*j}:{KF+4*j+3}], v{KRA+(j&3)} offset:{kslot*8192 + (j>>2)*256}")
        for j in range(8):
            a(f"s_waitcnt lgkmcnt({7-j})")
            c = "0" if j == 0 else f"v[{SA}:{SA+3}]"
            a(f"v_mfma_f32_16x16x32_bf16 v[{SA}:{SA+3}], v[{KF+4*j}:{KF+4*j+3}], v[{QF+4*j}:{QF+4*j+3}], {c}")
        a("v_readfirstlane_b32 s6, v236")
        a("s_cmp_lg_u32 s6, -1")
        a(f"s_cbranch_scc1 L_nx_{tag}")
        a.label(f"L_nxs_{tag}")
        a("s_sleep 1")
        a("ds_read_b32 v236, v235")
        a("s_waitcnt lgkmcnt(0)")
        a("v_readfirstlane_b32 s6, v236")
        a("s_cmp_eq_u32 s6, -1")
        a(f"s_cbranch_scc1 L_nxs_{tag}")
        a.label(f"L_nx_{tag}")
        a("v_add_u32 v235, 4, v235")
        a("s_lshl_b32 s7, s6, 15")
        a("s_add_u32 s9, s20, s7")
        a("s_add_u32 s7, s13, 2")
        a("s_min_u32 s7, s7, s15")
        a("s_cmp_ge_u32 s6, 128")
        a("s_cselect_b32 s15, s7, s15")
        a(f"s_cbranch_scc1 L_noik_{tag}")
        issue("K", kslot)
        a.label(f"L_noik_{tag}")
        a("s_nop 3")
        a(f"v_cvt_pk_bf16_f32 v{T0}, v{SA}, v{SA+1}")
        a(f"v_cvt_pk_bf16_f32 v{T1}, v{SA+2}, v{SA+3}")
        a(f"v_lshlrev_b32 v{SA}, 16, v{T0}")
        a(f"v_and_b32 v{SA+1}, 0xffff0000, v{T0}")
        a(f"v_lshlrev_b32 v{SA+2}, 16, v{T1}")
        a(f"v_and_b32 v{SA+3}, 0xffff0000, v{T1}")
        a(f"v_max3_f32 v{T0}, v{SA}, v{SA+1}, v{SA+2}")
        a(f"v_max_f32 v{T0}, v{T0}, v{SA+3}")
        group_reduce(a, "v_max_f32", T0, T1)
        a(f"v_mul_f32 v{T0}, s14, v{T0}")
        a(f"v_max_f32 v{T0}, v{T0}, v{M}")
        a(f"v_sub_f32 v{AL}, v{M}, v{T0}")
        a(f"v_exp_f32 v{AL}, v{AL}")
        a(f"v_mov_b32 v{M}, v{T0}")
        for r in range(4):
            a(f"v_fma_f32 v{SA+r}, v{SA+r}, s14, -v{T0}")
        for r in range(4):
            a(f"v_exp_f32 v{SA+r}, v{SA+r}")
        a(f"v_cmp_neq_f32 vcc, 1.0, v{AL}")
        a(f"v_cvt_pk_bf16_f32 v{PB}, v{SA}, v{SA+1}")
        a(f"v_cvt_pk_bf16_f32 v{PB+1}, v{SA+2}, v{SA+3}")
        a(f"v_add_f32 v{T1}, v{SA}, v{SA+1}")
        a(f"v_add_f32 v{T2}, v{SA+2}, v{SA+3}")
        a(f"v_add_f32 v{T1}, v{T1}, v{T2}")
        a(f"v_fma_f32 v{L}, v{L}, v{AL}, v{T1}")
        a(f"s_cbranch_vccz L_nors_{tag}")
        for i in range(64):
            a(f"v_mul_f32 v{OA+i}, v{OA+i}, v{AL}")
        a.label(f"L_nors_{tag}")
        a("s_cmp_eq_u32 s15, 1000")
        a(f"s_cbranch_scc1 L_wv_{tag}")
        a("s_waitcnt vmcnt(0)")
        a.label(f"L_wv_{tag}")
        a(f"s_waitcnt vmcnt({wv})")
        for nn in range(16):
            a(f"ds_read_b64_tr_b16 v[{VF+2*nn}:{VF+2*nn+1}], v{VRA+(nn&7)} offset:{vslot*8192 + (nn>>3)*256}")
        for nn in range(16):
            a(f"s_waitcnt lgkmcnt({15-nn})")
            a(f"v_mfma_f32_16x16x16_bf16 v[{OA+4*nn}:{OA+4*nn+3}], v[{VF+2*nn}:{VF+2*nn+1}], v[{PB}:{PB+1}], v[{OA+4*nn}:{OA+4*nn+3}]")
        a("s_cmp_lg_u32 s15, 1000")
        a(f"s_cbranch_scc1 L_noiv_{tag}")
        issue("V", vslot)
        a.label(f"L_noiv_{tag}")

    a("s_mov_b32 s13, 0")
    a("s_mov_b32 s15, 1000")
    a.label("L_loop")
    step(0, 1, True, 24, 24, "a")
    a("s_add_u32 s13, s13, 1")
    a("s_cmp_ge_u32 s13, s15")
    a("s_cbranch_scc1 L_loop_done")
    step(2, 3, True, 24, 24, "b")
    a("s_add_u32 s13, s13, 1")
    a("s_cmp_lt_u32 s13, s15")
    a("s_cbranch_scc1 L_loop")
    a.label("L_loop_done")
    a("s_waitcnt vmcnt(0)")
    if STAMP:
        a("s_cmp_lg_u32 s3, 0")
        a("s_cbranch_scc1 L_st6")
        stamp(a, 6)
        a.label("L_st6")
    group_reduce(a, "v_add_f32", L, T1)
    a("s_nop 7")
    a("v_cmp_gt_u32 vcc, 2, v3")
    a("v_lshlrev_b32 v5, 10, v3")
    a("v_lshl_add_u32 v5, v4, 4, v5")
    a("v_add_u32 v5, s8, v5")
    a("s_and_b64 exec, exec, vcc")
    for nn in range(16):
        a(f"ds_write_b128 v5, v[{OA+4*nn}:{OA+4*nn+3}] offset:{nn*64}")
    a("v_cmp_gt_u32 vcc, 2, v2")
    a("v_lshlrev_b32 v5, 3, v2")
    a("v_add_u32 v5, s8, v5")
    a("s_and_b64 exec, exec, vcc")
    a(f"ds_write_b64 v5, v[{M}:{M+1}] offset:2048")
    a("s_mov_b64 exec, s[58:59]")
    a("s_waitcnt lgkmcnt(0)")
    a("s_barrier")
    a("v_lshrrev_b32 v5, 7, v0")
    a("v_lshlrev_b32 v6, 3, v5")
    a("v_lshlrev_b32 v7, 3, v0")
    a("v_add_u32 v9, 0x10000, v6")
    a("v_add_u32 v10, 0x10000, v7")
    for w in range(4):
        a(f"ds_read_b64 v[{16+2*w}:{17+2*w}], v{6 if w<2 else 9} offset:{(w&1)*32768+2048}")
        a(f"ds_read_b64 v[{24+2*w}:{25+2*w}], v{7 if w<2 else 10} offset:{(w&1)*32768}")
    a("s_waitcnt lgkmcnt(0)")
    a("v_max_f32 v32, v16, v18")
    a("v_max3_f32 v32, v32, v20, v22")
    for w in range(4):
        a(f"v_sub_f32 v{16+2*w}, v{16+2*w}, v32")
        a(f"v_exp_f32 v{16+2*w}, v{16+2*w}")
    a("s_nop 0")
    a("v_mul_f32 v33, v16, v17")
    a("v_mul_f32 v34, v16, v24")
    a("v_mul_f32 v35, v16, v25")
    for w in range(1, 4):
        a(f"v_fmac_f32 v33, v{16+2*w}, v{17+2*w}")
        a(f"v_fmac_f32 v34, v{16+2*w}, v{24+2*w}")
        a(f"v_fmac_f32 v35, v{16+2*w}, v{25+2*w}")
    a("s_lshl_b32 s6, s98, 11")
    a(f"s_add_u32 s6, s6, {WS_OP}")
    a("buffer_store_dwordx2 v[34:35], v7, s[52:55], s6 offen sc1")
    a("v_and_b32 v8, 127, v0")
    a("v_cmp_eq_u32 vcc, 0, v8")
    a("s_lshl_b32 s6, s98, 4")
    a(f"s_add_u32 s6, s6, {WS_ML}")
    a("s_and_b64 exec, exec, vcc")
    a("buffer_store_dwordx2 v[32:33], v6, s[52:55], s6 offen sc1")
    a("s_mov_b64 exec, s[58:59]")
    a("s_branch L_tail")

    a.label("L_helpers")
    a("s_memrealtime s[16:17]")
    a("v_lshlrev_b32 v5, 4, v2")
    a("v_mov_b32 v6, 0x7fff0000")
    a("v_cndmask_b32 v5, v6, v5, s[56:57]")
    a("s_sub_u32 s6, s3, 4")
    a("s_mul_i32 s15, s6, 1792")
    a("buffer_load_dwordx4 v[8:11], v5, s[60:63], s15 offen")
    a("buffer_load_dwordx4 v[12:15], v5, s[60:63], s15 offen offset:896")
    a("s_cmp_ge_u32 s5, 14")
    a("s_cselect_b32 s99, 1, 0")
    a("s_mul_i32 s6, s99, 14")
    a("s_sub_u32 s100, s5, s6")
    a("s_lshl_b32 s101, s4, 1")
    a("s_add_u32 s101, s101, s99")
    a("s_cmp_lg_u32 s3, 4")
    a("s_cbranch_scc1 L_h_not4")
    a("v_lshrrev_b32 v5, 1, v2")
    a("v_lshlrev_b32 v5, 13, v5")
    a("v_and_b32 v6, 1, v2")
    a("v_lshl_add_u32 v5, v6, 4, v5")
    a("s_lshl_b32 s6, s98, 5")
    a(f"s_mov_b32 s7, {L_WQ}")
    for p in range(14):
        a("s_mov_b32 m0, s7")
        a("s_add_u32 s7, s7, 1024")
        a("buffer_load_dwordx4 v5, s[64:67], s6 offen lds")
        a("s_add_u32 s6, s6, 0x40000")
    a(f"v_mov_b32 v5, {L_F}")
    for i in range(4):
        a(f"v_mov_b32 v{16+i}, 0")
    a("ds_write_b128 v5, v[16:19]")
    a(f"s_mul_i32 s6, s97, {NSTAT}")
    a("v_add_u32 v16, s6, v2")
    a(f"v_cmp_gt_u32 vcc, {NSTAT}, v2")
    a("v_lshlrev_b32 v5, 2, v2")
    a(f"v_add_u32 v5, {L_NEXT}, v5")
    a("v_cndmask_b32 v16, -1, v16, vcc")
    if VX: a("v_add_u32 v16, s6, v2")
    if VX: a("v_max_u32 v16, v16, v16")
    if VX: a(f"v_mov_b32 v17, 0x1000")
    if VX: a("v_cndmask_b32 v16, v17, v16, vcc")
    a("v_mov_b32 v17, -1")
    a("ds_write_b32 v5, v16")
    a("ds_write_b32 v5, v17 offset:256")
    a("s_branch L_h_bar0")
    a.label("L_h_not4")
    a("s_cmp_lg_u32 s3, 6")
    a("s_cbranch_scc1 L_h_bar0")
    a("s_cmp_lg_u32 s97, 0")
    a("s_cbranch_scc1 L_nocinit")
    a("s_lshl_b32 s6, s4, 3")
    a("s_add_u32 s6, s6, s96")
    a("s_lshl_b32 s6, s6, 8")
    a(f"s_add_u32 s6, s6, {WS_CNT}")
    a("s_waitcnt lgkmcnt(0)")
    a("s_lshr_b64 s[18:19], s[16:17], 2")
    a("s_and_b32 s7, s18, 0xffffff00")
    a("v_mov_b32 v16, s7")
    a("v_mov_b32 v17, 0")
    a("s_mov_b64 exec, 1")
    a("buffer_store_dword v16, v17, s[52:55], s6 offen sc1")
    a("s_mov_b64 exec, s[58:59]")
    a.label("L_nocinit")
    a.label("L_h_bar0")
    a("s_waitcnt lgkmcnt(0)")
    if not LATE0: a("s_barrier")
    a("s_lshr_b64 s[16:17], s[16:17], 10")
    a("s_cmp_eq_u32 s3, 4")
    a("s_cbranch_scc1 L_h_w14")
    a("s_cmp_eq_u32 s3, 6")
    a("s_cbranch_scc1 L_h_w3")
    a("s_waitcnt vmcnt(0)")
    a("s_branch L_h_ln")
    a.label("L_h_w14")
    a(f"s_waitcnt vmcnt({0 if LATE0 else 14})")
    a("s_branch L_h_ln")
    a.label("L_h_w3")
    a("s_waitcnt vmcnt(1)")
    a("s_cmp_eq_u32 s97, 0")
    a("s_cbranch_scc1 L_h_ln")
    a("s_waitcnt vmcnt(0)")
    a.label("L_h_ln")
    if LATE0: a("s_barrier")
    unpack8(a, 8, 16)
    unpack8(a, 12, 24)
    layernorm8x2(a, 16, 24, (32, 33, 34), (35, 36, 37), 56)
    pack8(a, 16, 8)
    pack8(a, 24, 12)
    a("v_lshlrev_b32 v5, 4, v2")
    a(f"s_add_u32 s6, s15, {L_XN}")
    a("v_add_u32 v5, s6, v5")
    a("s_mov_b64 exec, s[56:57]")
    a("ds_write_b128 v5, v[8:11]")
    a("ds_write_b128 v5, v[12:15] offset:896")
    a("s_mov_b64 exec, 1")
    a(f"v_mov_b32 v5, {L_F}")
    a("v_mov_b32 v6, 1")
    a("s_waitcnt lgkmcnt(0)")
    a("ds_add_u32 v5, v6")
    a("s_mov_b64 exec, s[58:59]")
    a("s_lshl_b32 s7, s4, 5")
    a("v_mov_b32 v9, s7")
    a("v_mov_b32 v8, 1")
    a("s_cmp_eq_u32 s3, 4")
    a("s_cbranch_scc1 L_service")
    a("s_cmp_eq_u32 s3, 5")
    a("s_cbranch_scc1 L_w5")
    if IPF:
        a("s_cmp_lg_u32 s3, 7")
        a("s_cbranch_scc1 L_not7")
        assert IPF < NSTAT
        a(f"v_mov_b32 v5, {L_F+12}")
        a("s_mov_b32 s13, 0")
        a.label("L_w7s")
        a("s_sleep 32")
        a("ds_read_b32 v6, v5")
        a("s_add_u32 s13, s13, 1")
        a("s_waitcnt lgkmcnt(0)")
        a("v_readfirstlane_b32 s6, v6")
        a("s_cmp_ge_u32 s13, 0x10000")
        a("s_cbranch_scc1 L_w7s_d")
        a(f"s_cmp_lt_u32 s6, {IPF}")
        a("s_cbranch_scc1 L_w7s")
        a.label("L_w7s_d")
        a("s_getpc_b64 s[36:37]")
        a.label("L_pc0")
        a("s_add_u32 s36, s36, L_loop_done-L_pc0")
        a("s_addc_u32 s37, s37, -1")
        a("s_mov_b32 s6, 0")
        a.label("L_pf1")
        a("s_load_dwordx16 s[20:35], s[36:37], s6")
        a("s_add_u32 s6, s6, 64")
        a("s_cmp_lt_u32 s6, L_helpers-L_loop_done")
        a("s_cbranch_scc1 L_pf1")
        a("s_waitcnt lgkmcnt(0)")
        a("s_getpc_b64 s[36:37]")
        a.label("L_pc1")
        a("s_add_u32 s36, s36, L_tail-L_pc1")
        a("s_addc_u32 s37, s37, 0")
        a("s_mov_b32 s6, 0")
        a.label("L_pf2")
        a("s_load_dwordx16 s[20:35], s[36:37], s6")
        a("s_add_u32 s6, s6, 64")
        a("s_cmp_lt_u32 s6, L_done-L_tail")
        a("s_cbranch_scc1 L_pf2")
        a("s_waitcnt lgkmcnt(0)")
        a("s_branch L_h_bar3")
        a.label("L_not7")
    a("s_cmp_lg_u32 s3, 6")
    a("s_cbranch_scc1 L_h_bar3")
    if VX == 4: a("s_branch L_h_bar3")
    for i in range(4):
        a(f"v_mov_b32 v{16+i}, -1")
    a("v_lshlrev_b32 v6, 4, v2")
    a("s_lshl_b32 s6, s98, 11")
    a(f"s_add_u32 s6, s6, {WS_OP}")
    a("buffer_store_dwordx4 v[16:19], v6, s[52:55], s6 offen sc1")
    a("buffer_store_dwordx4 v[16:19], v6, s[52:55], s6 offen offset:1024 sc1")
    a("s_lshl_b32 s6, s98, 4")
    a(f"s_add_u32 s6, s6, {WS_ML}")
    a("s_mov_b64 exec, 1")
    a("buffer_store_dwordx4 v[16:19], v6, s[52:55], s6 offen sc1")
    a("s_mov_b64 exec, s[58:59]")
    a("s_cmp_ge_u32 s5, 28")
    a("s_cbranch_scc1 L_clr_done")
    a("v_lshrrev_b32 v6, 3, v2")
    a("v_mul_u32_u24 v6, 1792, v6")
    a("v_and_b32 v7, 7, v2")
    a("v_lshl_add_u32 v6, v7, 4, v6")
    a("s_mul_i32 s6, s101, 14336")
    a("s_lshl_b32 s7, s100, 7")
    a("s_add_u32 s6, s6, s7")
    a(f"s_add_u32 s6, s6, {WS_P2}")
    a("buffer_store_dwordx4 v[16:19], v6, s[52:55], s6 offen sc1")
    a("s_lshl_b32 s6, s98, 2")
    a(f"s_add_u32 s6, s6, {WS_FL}")
    a("v_mov_b32 v6, 0")
    a("s_mov_b64 exec, 1")
    a("buffer_store_dword v16, v6, s[52:55], s6 offen sc1")
    a("s_mov_b64 exec, s[58:59]")
    a.label("L_clr_done")
    a("s_mov_b64 exec, 1")
    a("s_waitcnt vmcnt(0)")
    a("buffer_atomic_add v8, v9, s[72:75], 0 offen sc1")
    a("s_mov_b64 exec, s[58:59]")
    a("s_branch L_h_bar3")
    a.label("L_w5")
    a(f"v_mov_b32 v5, {L_F+12}")
    a("s_mov_b32 s13, 0")
    a.label("L_w5s")
    a("s_sleep 32")
    a("ds_read_b32 v6, v5")
    a("s_add_u32 s13, s13, 1")
    a("s_waitcnt lgkmcnt(0)")
    a("v_readfirstlane_b32 s6, v6")
    a("s_cmp_ge_u32 s13, 0x10000")
    a("s_cbranch_scc1 L_w5s_d")
    a(f"s_cmp_lt_u32 s6, {min(20, NSTAT-2)}")
    a("s_cbranch_scc1 L_w5s")
    a.label("L_w5s_d")
    a("v_lshlrev_b32 v9, 5, v2")
    a("v_cmp_gt_u32 vcc, 8, v2")
    a("s_mov_b32 s13, 0")
    a("s_and_b64 exec, exec, vcc")
    a.label("L_pollall")
    a("buffer_load_dword v10, v9, s[72:75], 0 offen sc1")
    a("s_add_u32 s13, s13, 1")
    a("s_waitcnt vmcnt(0)")
    a("v_cmp_gt_u32 vcc, 64, v10")
    a(f"s_cmp_ge_u32 s13, {SPIN_MAX}")
    a("s_cbranch_scc1 L_pollall_done")
    a("s_cbranch_vccz L_pollall_done")
    a("s_sleep 64")
    a("s_branch L_pollall")
    a.label("L_pollall_done")
    a("s_mov_b64 exec, s[58:59]")
    stamp(a, 12, 236, 237)
    a.label("L_h_bar3")
    a("s_barrier")
    a("s_branch L_tail")

    a.label("L_service")
    a("v_bfe_u32 v6, v2, 2, 2")
    a("v_lshl_add_u32 v6, v4, 3, v6")
    a("v_lshlrev_b32 v6, 5, v6")
    a("v_and_b32 v7, 3, v2")
    a("v_lshl_add_u32 v6, v7, 3, v6")
    a(f"v_add_u32 v10, {L_WQ}, v6")
    a("v_and_b32 v7, 7, v2")
    a("v_mul_u32_u24 v7, 896, v7")
    a("v_lshl_add_u32 v7, v4, 4, v7")
    a(f"v_add_u32 v7, {L_XN}, v7")
    a("s_waitcnt vmcnt(0)")
    stamp(a, 1, 236, 237)
    for j in range(14):
        a(f"ds_read_b64_tr_b16 v[{40+4*j}:{41+4*j}], v10 offset:{j*1024}")
        a(f"ds_read_b64_tr_b16 v[{42+4*j}:{43+4*j}], v10 offset:{j*1024+128}")
    ldsspin(0, 4, "L_spin0")
    stamp(a, 2, 236, 237)
    for j in range(14):
        a(f"ds_read_b128 v[{100+4*j}:{103+4*j}], v7 offset:{j*64}")
    for j in range(14):
        a(f"s_waitcnt lgkmcnt({13-j})")
        c = "0" if j == 0 else "v[32:35]"
        a(f"v_mfma_f32_16x16x32_bf16 v[32:35], v[{40+4*j}:{43+4*j}], v[{100+4*j}:{103+4*j}], {c}")
    a("v_cmp_gt_u32 vcc, 8, v3")
    a("v_lshlrev_b32 v5, 14, v3")
    a("v_lshl_add_u32 v5, v4, 4, v5")
    a("s_lshl_b32 s6, s98, 6")
    a("v_mov_b32 v37, s16")
    a("v_mov_b32 v39, s16")
    a(f"v_mov_b32 v6, {L_F+4}")
    a("s_sub_u32 s17, s16, 2")
    a("s_nop 1")
    a("v_cvt_pk_bf16_f32 v36, v32, v33")
    a("v_cvt_pk_bf16_f32 v38, v34, v35")
    a("s_and_b64 exec, exec, vcc")
    a(f"buffer_store_dwordx4 v[36:39], v5, s[52:55], s6 offen offset:{WS_Q} sc1")
    a("s_mov_b64 exec, 1")
    a("ds_write_b32 v6, v8")
    a("s_mov_b64 exec, s[58:59]")
    stamp(a, 3, 236, 237)
    a("v_lshlrev_b32 v5, 5, v2")
    a("s_lshl_b32 s6, s96, 14")
    a("s_lshl_b32 s7, s4, 11")
    a("s_add_u32 s15, s6, s7")
    a("s_mov_b32 s13, 0")
    a.label("L_pollq")
    a(f"buffer_load_dwordx4 v[12:15], v5, s[52:55], s15 offen offset:{WS_Q} sc1")
    a(f"buffer_load_dwordx4 v[16:19], v5, s[52:55], s15 offen offset:{WS_Q+16} sc1")
    a("s_waitcnt vmcnt(0)")
    a("s_cmp_lg_u32 s13, 2047")
    a("s_cbranch_scc1 L_pq_noat")
    a("s_mov_b64 exec, 1")
    a("buffer_atomic_add v8, v9, s[72:75], 0 offen sc1")
    a("s_mov_b64 exec, s[58:59]")
    a.label("L_pq_noat")
    a("s_add_u32 s13, s13, 1")
    a("v_subrev_u32 v20, s17, v13")
    a("v_subrev_u32 v21, s17, v15")
    a("v_subrev_u32 v22, s17, v17")
    a("v_subrev_u32 v23, s17, v19")
    a("v_max_u32 v20, v20, v21")
    a("v_max3_u32 v20, v20, v22, v23")
    a("v_cmp_lt_u32 vcc, 4, v20")
    a("s_cbranch_vccz L_pollq_done")
    a("s_cmp_lt_u32 s13, 2048")
    a("s_cbranch_scc1 L_pollq")
    a("buffer_load_dword v10, v9, s[72:75], 0 offen sc1")
    a("s_waitcnt vmcnt(0)")
    a("v_readfirstlane_b32 s6, v10")
    a(f"s_cmp_ge_u32 s13, {SPIN_MAX}")
    a("s_cbranch_scc1 L_pollq_done")
    a("s_cmp_ge_u32 s6, 64")
    a("s_cbranch_scc0 L_pollq")
    a(f"buffer_load_dwordx4 v[12:15], v5, s[52:55], s15 offen offset:{WS_Q} sc1")
    a(f"buffer_load_dwordx4 v[16:19], v5, s[52:55], s15 offen offset:{WS_Q+16} sc1")
    a("s_waitcnt vmcnt(0)")
    a.label("L_pollq_done")
    stamp(a, 4, 236, 237)
    a("v_mov_b32 v13, v14")
    a("v_mov_b32 v14, v16")
    a("v_mov_b32 v15, v18")
    a("v_lshlrev_b32 v5, 4, v2")
    a(f"v_add_u32 v5, {L_QL}, v5")
    a(f"v_mov_b32 v6, {L_F+8}")
    a("ds_write_b128 v5, v[12:15]")
    a("s_waitcnt lgkmcnt(0)")
    a("s_mov_b64 exec, 1")
    a("ds_write_b32 v6, v8")
    a("s_cmp_ge_u32 s13, 2048")
    a("s_cbranch_scc1 L_pq_noat2")
    a("buffer_atomic_add v8, v9, s[72:75], 0 offen sc1")
    a.label("L_pq_noat2")
    a("s_mov_b64 exec, s[58:59]")
    stamp(a, 5, 236, 237)
    a("s_cmp_ge_u32 s5, 28")
    a("s_cbranch_scc1 L_nowo")
    a("v_lshrrev_b32 v5, 2, v2")
    a("v_mul_u32_u24 v5, 896, v5")
    a("v_and_b32 v6, 3, v2")
    a("v_lshl_add_u32 v5, v6, 4, v5")
    a("s_mul_i32 s6, s101, 229376")
    a("s_lshl_b32 s7, s100, 6")
    a("s_add_u32 s6, s6, s7")
    a(f"s_mov_b32 s7, {L_WO}")
    for p in range(16):
        a("s_mov_b32 m0, s7")
        a("s_add_u32 s7, s7, 1024")
        a("buffer_load_dwordx4 v5, s[68:71], s6 offen lds")
        a("s_add_u32 s6, s6, 14336")
    a.label("L_nowo")
    if VX: a("s_branch L_skipdyn")
    a("s_lshl_b32 s6, s4, 3")
    a("s_add_u32 s6, s6, s96")
    a("s_lshl_b32 s6, s6, 8")
    a(f"s_add_u32 s25, s6, {WS_CNT}")
    a("v_mov_b32 v14, 0")
    a("s_mov_b32 s13, 0")
    a.label("L_pcnt")
    a("buffer_load_dword v10, v14, s[52:55], s25 offen sc1")
    a("s_add_u32 s13, s13, 1")
    a("s_waitcnt vmcnt(0)")
    a("v_readfirstlane_b32 s6, v10")
    a("s_lshr_b32 s6, s6, 8")
    a("s_sub_u32 s6, s6, s17")
    a("s_and_b32 s6, s6, 0xffffff")
    a("s_cmp_le_u32 s6, 4")
    a("s_cbranch_scc1 L_pcnt_done")
    a("s_sleep 16")
    a("s_cmp_lt_u32 s13, 1024")
    a("s_cbranch_scc1 L_pcnt")
    a("buffer_load_dword v10, v9, s[72:75], 0 offen sc1")
    a("s_waitcnt vmcnt(0)")
    a("v_readfirstlane_b32 s6, v10")
    a(f"s_cmp_ge_u32 s13, {SPIN_MAX}")
    a("s_cbranch_scc1 L_pcnt_done")
    a("s_cmp_ge_u32 s6, 64")
    a("s_cbranch_scc0 L_pcnt")
    a.label("L_pcnt_done")
    a("s_mov_b32 s22, 1")
    a(f"s_mov_b32 s23, {NSTAT}")
    a(f"s_mov_b32 s24, {NSTAT}")
    a(f"v_mov_b32 v11, {L_F+12}")
    a("v_mov_b32 v10, s22")
    a("s_waitcnt vmcnt(0)")
    a.label("L_dyn")
    a("ds_read_b32 v6, v11")
    a("s_waitcnt lgkmcnt(0)")
    a("v_readfirstlane_b32 s6, v6")
    a(f"s_add_u32 s6, s6, {LOOK}")
    a("s_cmp_ge_u32 s6, s23")
    a("s_cbranch_scc1 L_dyn_go")
    a("s_sleep 4")
    a("s_branch L_dyn")
    a.label("L_dyn_go")
    if STAMP:
        a(f"s_cmp_lg_u32 s23, {NSTAT}")
        a("s_cbranch_scc1 L_sq1")
        a("s_memrealtime s[26:27]")
        a("s_waitcnt lgkmcnt(0)")
        a.label("L_sq1")
    a(f"s_sub_u32 s6, s23, {NSTAT}")
    a("s_lshl_b64 exec, 1, s6")
    a("buffer_atomic_add v10, v14, s[52:55], s25 offen sc0 sc1")
    a("s_mov_b64 exec, s[58:59]")
    a("s_add_u32 s23, s23, 1")
    a("s_sub_u32 s6, s23, s24")
    a(f"s_cmp_le_u32 s6, {DEPTH}")
    a("s_cbranch_scc1 L_dyn")
    a(f"s_waitcnt vmcnt({DEPTH})")
    if STAMP:
        a(f"s_cmp_lg_u32 s24, {NSTAT}")
        a("s_cbranch_scc1 L_sq2")
        a("s_memrealtime s[28:29]")
        a("s_waitcnt lgkmcnt(0)")
        a.label("L_sq2")
    a(f"s_sub_u32 s6, s24, {NSTAT}")
    a("v_readlane_b32 s6, v10, s6")
    a("s_and_b32 s6, s6, 0xff")
    a(f"s_add_u32 s7, s6, {4*NSTAT}")
    a(f"s_cmp_lt_u32 s6, {128-4*NSTAT}")
    a("s_cselect_b32 s7, s7, 0x1000")
    a("s_lshl_b32 s6, s24, 2")
    a(f"s_add_u32 s6, s6, {L_NEXT}")
    a("v_mov_b32 v12, s6")
    a("v_mov_b32 v13, s7")
    a("ds_write_b32 v12, v13")
    a("s_add_u32 s24, s24, 1")
    a("s_cmp_lt_u32 s7, 128")
    a("s_cbranch_scc1 L_dyn")
    a("v_add_u32 v12, 4, v12")
    a("ds_write_b32 v12, v13")
    a("s_waitcnt vmcnt(0) lgkmcnt(0)")
    if STAMP:
        stamp(a, 16, 236, 237)
        for (sr, idx) in ((26, 14), (28, 15)):
            a(f"v_mov_b32 v236, s{sr}")
            a("s_lshl_b32 s42, s2, 7")
            a(f"s_add_u32 s42, s42, {0x200000 + idx*4}")
            a("v_mov_b32 v237, 0")
            a("s_mov_b64 exec, 1")
            a("buffer_store_dword v236, v237, s[52:55], s42 offen")
            a("s_mov_b64 exec, s[58:59]")
    a.label("L_skipdyn")
    a("s_waitcnt vmcnt(0)")
    a("s_barrier")
    stamp(a, 7, 236, 237)

    a.label("L_tail")
    a("s_cmp_ge_u32 s5, 14")
    a("s_cselect_b32 s99, 1, 0")
    a("s_mul_i32 s6, s99, 14")
    a("s_sub_u32 s100, s5, s6")
    a("s_lshl_b32 s101, s4, 1")
    a("s_add_u32 s101, s101, s99")
    a("s_cmp_eq_u32 s3, 7")
    a("s_cbranch_scc1 L_now")
    a("v_mul_u32_u24 v5, 56, v2")
    for (base, sr) in ((128, 80), (144, 84), (160, 88)):
        for i in range(3):
            a(f"buffer_load_dwordx4 v[{base+4*i}:{base+4*i+3}], v5, s[{sr}:{sr+3}], 0 offen offset:{16*i}")
        a(f"buffer_load_dwordx2 v[{base+12}:{base+13}], v5, s[{sr}:{sr+3}], 0 offen offset:48")
    a("v_mov_b32 v6, 0")
    a("buffer_load_ushort v174, v6, s[92:95], 0 offen")
    a.label("L_now")
    a("s_cmp_ge_u32 s5, 28")
    a("s_cbranch_scc1 L_stageD")
    a("s_cmp_ge_u32 s3, 4")
    a("s_cbranch_scc1 L_bar4")
    a("v_lshrrev_b32 v5, 5, v0")
    a("v_and_b32 v6, 31, v0")
    a("v_lshlrev_b32 v7, 13, v5")
    a("v_lshl_add_u32 v7, v6, 5, v7")
    a("v_lshlrev_b32 v8, 6, v5")
    a("s_lshl_b32 s10, s4, 16")
    a("s_lshl_b32 s11, s99, 10")
    a("s_add_u32 s10, s10, s11")
    a(f"s_add_u32 s10, s10, {WS_OP}")
    a("s_add_u32 s11, s10, 4096")
    a("s_lshl_b32 s12, s4, 9")
    a("s_lshl_b32 s6, s99, 3")
    a("s_add_u32 s12, s12, s6")
    a(f"s_add_u32 s12, s12, {WS_ML}")
    a("v_and_b32 v9, 31, v2")
    a("v_lshlrev_b32 v9, 4, v9")
    a("s_lshl_b32 s15, s4, 9")
    a(f"s_add_u32 s15, s15, {WS_ML}")
    a("s_mov_b32 s13, 0")
    if BULK & 1: a("s_branch L_pollC")
    a.label("L_pollC0")
    a("buffer_load_dwordx4 v[16:19], v9, s[52:55], s15 offen sc1")
    a("s_add_u32 s13, s13, 1")
    a("s_waitcnt vmcnt(0)")
    anysent(a, range(16, 20), 56)
    a("v_cmp_eq_u32 vcc, -1, v56")
    a(f"s_cmp_ge_u32 s13, {SPIN_MAX}")
    a("s_cbranch_scc1 L_pollC")
    a("s_cbranch_vccz L_pollC")
    a("s_sleep 8")
    a("s_branch L_pollC0")
    a.label("L_pollC")
    for s in range(4):
        a(f"buffer_load_dwordx2 v[{48+2*s}:{49+2*s}], v8, s[52:55], s12 offen offset:{s*16} sc1")
    for s in range(4):
        a(f"buffer_load_dwordx4 v[{16+8*s}:{19+8*s}], v7, s[52:55], s{10+(s>>1)} offen offset:{(s&1)*2048} sc1")
        a(f"buffer_load_dwordx4 v[{20+8*s}:{23+8*s}], v7, s[52:55], s{10+(s>>1)} offen offset:{(s&1)*2048+16} sc1")
    a("s_add_u32 s13, s13, 1")
    a("s_waitcnt vmcnt(0)")
    anysent(a, range(16, 56), 56)
    a("v_cmp_eq_u32 vcc, -1, v56")
    a(f"s_cmp_ge_u32 s13, {SPIN_MAX}")
    a("s_cbranch_scc1 L_pollC_done")
    a("s_cbranch_vccz L_pollC_done")
    a("s_sleep 4")
    a("s_branch L_pollC")
    a.label("L_pollC_done")
    if STAMP:
        a("s_cmp_lg_u32 s3, 0")
        a("s_cbranch_scc1 L_st8")
        stamp(a, 8)
        a.label("L_st8")
    a("v_max_f32 v56, v48, v50")
    a("v_max3_f32 v56, v56, v52, v54")
    for s in range(4):
        a(f"v_sub_f32 v{48+2*s}, v{48+2*s}, v56")
        a(f"v_exp_f32 v{48+2*s}, v{48+2*s}")
    a("s_nop 0")
    a("v_mul_f32 v57, v48, v49")
    for s in range(1, 4):
        a(f"v_fmac_f32 v57, v{48+2*s}, v{49+2*s}")
    a("v_rcp_f32 v57, v57")
    a("s_nop 0")
    for s in range(4):
        a(f"v_mul_f32 v{48+2*s}, v{48+2*s}, v57")
    for i in range(8):
        a(f"v_mul_f32 v{60+i}, v48, v{16+i}")
        for s in range(1, 4):
            a(f"v_fmac_f32 v{60+i}, v{48+2*s}, v{16+8*s+i}")
    pack8(a, 60, 68)
    a("v_lshlrev_b32 v6, 4, v0")
    a(f"v_add_u32 v6, {L_O}, v6")
    a("ds_write_b128 v6, v[68:71]")
    a("s_waitcnt lgkmcnt(0)")
    a.label("L_bar4")
    a("s_barrier")
    a("s_cmp_ge_u32 s3, 2")
    a("s_cbranch_scc1 L_stageD")
    a("v_bfe_u32 v5, v2, 2, 2")
    a("v_lshl_add_u32 v5, v4, 3, v5")
    a("v_lshlrev_b32 v5, 6, v5")
    a("v_and_b32 v6, 3, v2")
    a("v_lshl_add_u32 v5, v6, 3, v5")
    a("s_lshl_b32 s6, s3, 5")
    a(f"s_add_u32 s6, s6, {L_WO}")
    a("v_add_u32 v5, s6, v5")
    a("v_and_b32 v6, 7, v2")
    a("v_lshlrev_b32 v6, 9, v6")
    a("v_lshl_add_u32 v6, v4, 4, v6")
    a(f"v_add_u32 v6, {L_O}, v6")
    for j in range(8):
        a(f"ds_read_b64_tr_b16 v[{16+4*j}:{17+4*j}], v5 offset:{j*2048}")
        a(f"ds_read_b64_tr_b16 v[{18+4*j}:{19+4*j}], v5 offset:{j*2048+256}")
        a(f"ds_read_b128 v[{48+4*j}:{51+4*j}], v6 offset:{j*64}")
    a("s_waitcnt lgkmcnt(0)")
    for j in range(8):
        c = "0" if j == 0 else "v[80:83]"
        a(f"v_mfma_f32_16x16x32_bf16 v[80:83], v[{16+4*j}:{19+4*j}], v[{48+4*j}:{51+4*j}], {c}")
    a("v_cmp_gt_u32 vcc, 8, v3")
    a("v_mul_u32_u24 v5, 1792, v3")
    a("v_lshl_add_u32 v5, v4, 4, v5")
    a("s_mul_i32 s6, s101, 14336")
    a("s_lshl_b32 s7, s100, 7")
    a("s_add_u32 s6, s6, s7")
    a("s_lshl_b32 s7, s3, 6")
    a("s_add_u32 s6, s6, s7")
    a(f"s_add_u32 s6, s6, {WS_P2}")
    a("s_nop 3")
    a("s_and_b64 exec, exec, vcc")
    a("buffer_store_dwordx4 v[80:83], v5, s[52:55], s6 offen sc1")
    a("s_lshl_b32 s6, s98, 2")
    a(f"s_add_u32 s6, s6, {WS_FL}")
    a("v_mov_b32 v6, 0")
    a("s_mov_b64 exec, 1")
    a("s_cmp_eq_u32 s3, 1")
    a("s_cbranch_scc0 L_noflag")
    a("buffer_store_dword v6, v6, s[52:55], s6 offen sc1")
    a.label("L_noflag")
    a("s_mov_b64 exec, s[58:59]")
    if STAMP:
        a("s_cmp_lg_u32 s3, 0")
        a("s_cbranch_scc1 L_st9")
        stamp(a, 9)
        a.label("L_st9")

    a.label("L_stageD")
    a("s_lshr_b32 s96, s2, 5")
    a("s_and_b32 s97, s2, 31")
    a("s_cmp_lg_u32 s3, 7")
    a("s_cbranch_scc1 L_bar5")
    a("v_lshlrev_b32 v5, 5, v2")
    a("v_mov_b32 v6, 0x7fff0000")
    a("v_cndmask_b32 v5, v6, v5, s[56:57]")
    a("v_lshlrev_b32 v7, 4, v2")
    a("v_cndmask_b32 v7, v6, v7, s[56:57]")
    a("s_mul_i32 s6, s96, 896")
    a("buffer_load_dwordx4 v[8:11], v7, s[60:63], s6 offen")
    a("v_lshlrev_b32 v13, 4, v2")
    a("v_and_b32 v12, 7, v2")
    a("v_cmp_ne_u32 s[18:19], 7, v12")
    a("s_mov_b32 s13, 0")
    if BULK & 2: a("s_branch L_pollD")
    a.label("L_pollD0")
    a(f"s_mov_b32 s6, {WS_FL}")
    a("buffer_load_dwordx4 v[16:19], v13, s[52:55], s6 offen sc1")
    a("s_add_u32 s13, s13, 1")
    a("s_waitcnt vmcnt(0)")
    anysent(a, range(16, 20), 12)
    a("v_cmp_eq_u32 vcc, -1, v12")
    a("s_and_b64 vcc, vcc, s[18:19]")
    a(f"s_cmp_ge_u32 s13, {SPIN_MAX}")
    a("s_cbranch_scc1 L_pollD")
    a("s_cmp_eq_u64 vcc, 0")
    a("s_cbranch_scc1 L_pollD")
    a("s_sleep 8")
    a("s_branch L_pollD0")
    a.label("L_pollD")
    a("s_mul_i32 s6, s96, 1792")
    a(f"s_add_u32 s6, s6, {WS_P2}")
    for h in range(16):
        a(f"buffer_load_dwordx4 v[{128+8*h}:{131+8*h}], v5, s[52:55], s6 offen sc1")
        a(f"buffer_load_dwordx4 v[{132+8*h}:{135+8*h}], v5, s[52:55], s6 offen offset:16 sc1")
        a("s_add_u32 s6, s6, 14336")
    a("s_add_u32 s13, s13, 1")
    a("s_waitcnt vmcnt(0)")
    anysent(a, range(128, 256), 12)
    a("v_cmp_eq_u32 vcc, -1, v12")
    a(f"s_cmp_ge_u32 s13, {SPIN_MAX}")
    a("s_cbranch_scc1 L_pollD_done")
    a("s_cbranch_vccz L_pollD_done")
    a("s_sleep 4")
    a("s_branch L_pollD")
    a.label("L_pollD_done")
    stamp(a, 10, 13, 14)
    for h in range(1, 16):
        for i in range(8):
            a(f"v_add_f32 v{128+i}, v{128+i}, v{128+8*h+i}")
    unpack8(a, 8, 16)
    for i in range(0, 8, 2):
        bf16r2(a, 128+i, 129+i, 12)
        a(f"v_add_f32 v{16+i}, v{16+i}, v{128+i}")
        a(f"v_add_f32 v{17+i}, v{17+i}, v{129+i}")
        bf16r2(a, 16+i, 17+i, 12)
    a("v_lshlrev_b32 v5, 5, v2")
    a(f"v_add_u32 v5, {L_H}, v5")
    a("s_mov_b64 exec, s[56:57]")
    a("ds_write_b128 v5, v[16:19]")
    a("ds_write_b128 v5, v[20:23] offset:16")
    a("s_mov_b64 exec, s[58:59]")
    layernorm8(a, 16, 32, 33, 34, 56)
    for i in range(8):
        a(f"v_cndmask_b32 v{16+i}, 0, v{16+i}, s[56:57]")
    layernorm8(a, 16, 32, 33, 34, 56)
    a("s_mov_b64 exec, s[56:57]")
    a(f"ds_write_b128 v5, v[16:19] offset:{L_T-L_H}")
    a(f"ds_write_b128 v5, v[20:23] offset:{L_T-L_H+16}")
    a("s_mov_b64 exec, s[58:59]")
    a("s_waitcnt lgkmcnt(0)")
    stamp(a, 11, 13, 14)
    a("s_barrier")
    a("s_branch L_done")
    a.label("L_bar5")
    a("s_waitcnt vmcnt(0)")
    for i in range(14):
        a(f"v_lshlrev_b32 v{16+2*i}, 16, v{128+i}")
        a(f"v_and_b32 v{17+2*i}, 0xffff0000, v{128+i}")
        a(f"v_lshlrev_b32 v{44+2*i}, 16, v{144+i}")
        a(f"v_and_b32 v{45+2*i}, 0xffff0000, v{144+i}")
    a("v_lshlrev_b32 v174, 16, v174")
    C1 = -2.0 * LOG2E * math.sqrt(2.0/math.pi)
    C2 = C1 * 0.044715
    a(f"v_mov_b32 v72, {hex(f2u(C1))}")
    a(f"v_mov_b32 v73, {hex(f2u(C1))}")
    a(f"v_mov_b32 v74, {hex(f2u(C2))}")
    a(f"v_mov_b32 v75, {hex(f2u(C2))}")
    a("v_mov_b32 v76, 1.0")
    a("v_mov_b32 v77, 1.0")
    a("v_mov_b32 v78, 0")
    a("v_mov_b32 v79, 0")
    a("s_mul_i32 s6, s97, 56")
    a("s_lshl_b32 s7, s3, 3")
    a("s_add_u32 s6, s6, s7")
    a(f"s_add_u32 s6, s6, {L_H}")
    a("v_mov_b32 v5, s6")
    a("s_barrier")
    a(f"ds_read_b64 v[80:81], v5 offset:{L_T-L_H}")
    a("ds_read_b64 v[82:83], v5")
    a("s_waitcnt lgkmcnt(0)")
    for i in range(14):
        U = [84, 92]; Tt = [86, 94]; C = [88, 96]
        for d in range(2):
            osel = "op_sel_hi:[0,1]" if d == 0 else "op_sel:[1,0] op_sel_hi:[1,1]"
            a(f"v_pk_mul_f32 v[{U[d]}:{U[d]+1}], v[80:81], v[{16+2*i}:{17+2*i}] {osel}")
        for d in range(2):
            bf16r2(a, U[d], U[d]+1, C[d])
        for d in range(2):
            a(f"v_pk_add_f32 v[{U[d]}:{U[d]+1}], v[{U[d]}:{U[d]+1}], v[{44+2*i}:{45+2*i}]")
        for d in range(2):
            bf16r2(a, U[d], U[d]+1, C[d])
        for d in range(2):
            a(f"v_pk_mul_f32 v[{Tt[d]}:{Tt[d]+1}], v[{U[d]}:{U[d]+1}], v[{U[d]}:{U[d]+1}]")
        for d in range(2):
            a(f"v_pk_fma_f32 v[{Tt[d]}:{Tt[d]+1}], v[{Tt[d]}:{Tt[d]+1}], v[74:75], v[72:73]")
        for d in range(2):
            a(f"v_pk_mul_f32 v[{Tt[d]}:{Tt[d]+1}], v[{Tt[d]}:{Tt[d]+1}], v[{U[d]}:{U[d]+1}]")
        for d in range(2):
            a(f"v_exp_f32 v{Tt[d]}, v{Tt[d]}")
            a(f"v_exp_f32 v{Tt[d]+1}, v{Tt[d]+1}")
        for d in range(2):
            a(f"v_pk_add_f32 v[{Tt[d]}:{Tt[d]+1}], v[{Tt[d]}:{Tt[d]+1}], v[76:77]")
        for d in range(2):
            a(f"v_rcp_f32 v{Tt[d]}, v{Tt[d]}")
            a(f"v_rcp_f32 v{Tt[d]+1}, v{Tt[d]+1}")
        for d in range(2):
            a(f"v_pk_mul_f32 v[{Tt[d]}:{Tt[d]+1}], v[{Tt[d]}:{Tt[d]+1}], v[{U[d]}:{U[d]+1}]")
        for d in range(2):
            a(f"v_cvt_pk_bf16_f32 v{C[d]}, v{Tt[d]}, v{Tt[d]+1}")
        for d in range(2):
            a(f"v_dot2_f32_bf16 v{78+d}, v{C[d]}, v{160+i}, v{78+d}")
    a("s_nop 3")
    wave_reduce2(a, "v_add_f32", 78, 84, 79, 85)
    bf16r2(a, 78, 79, 84)
    a("v_add_f32 v78, v78, v174")
    a("v_add_f32 v79, v79, v174")
    bf16r2(a, 78, 79, 84)
    a("v_add_f32 v78, v78, v82")
    a("v_add_f32 v79, v79, v83")
    a("v_cvt_pk_bf16_f32 v78, v78, v79")
    a("s_mul_i32 s6, s96, 896")
    a("s_mul_i32 s7, s97, 28")
    a("s_add_u32 s6, s6, s7")
    a("s_lshl_b32 s7, s3, 2")
    a("s_add_u32 s6, s6, s7")
    a("v_mov_b32 v5, 0")
    a("s_mov_b64 exec, 1")
    a("buffer_store_dword v78, v5, s[76:79], s6 offen")
    if STAMP:
        a("s_cmp_lg_u32 s3, 0")
        a("s_cbranch_scc1 L_done")
        stamp(a, 13)
    a.label("L_done")
    a("s_endpgm")
    a.raw(".section .rodata,\"a\"")
    a.raw(".p2align 6")
    a.raw(f".amdhsa_kernel {n}")
    a.raw("  .amdhsa_next_free_vgpr 256")
    a.raw("  .amdhsa_next_free_sgpr 102")
    a.raw("  .amdhsa_accum_offset 256")
    a.raw("  .amdhsa_group_segment_fixed_size 0")
    a.raw("  .amdhsa_kernarg_size 104")
    a.raw("  .amdhsa_user_sgpr_count 2")
    a.raw("  .amdhsa_user_sgpr_kernarg_segment_ptr 1")
    a.raw("  .amdhsa_system_sgpr_workgroup_id_x 1")
    a.raw(".end_amdhsa_kernel")

def main():
    a = Asm()
    hdr = open("cdna_kernels/%s.s.ref" % NAME).read().split("\n")
    for l in hdr:
        if l.startswith("; @launch"):
            break
        a.raw(l)
    a.raw(f"; @launch grid=(256,1,1) block=(512,1,1) lds={LDS_BYTES}")
    a.raw('.amdgcn_target "amdgcn-amd-amdhsa--gfx950"')
    gen(a)
    out = sys.argv[1] if len(sys.argv) > 1 else OUT
    open(out, "w").write(a.text())

if __name__ == "__main__":
    main()
```

```python
import sys, math, struct, os, re

NAME = "sequential_preLN__gqa_block_cached__mixer_token_mlp__decode"
KNAME = NAME + "_kernel"
OUT = "cdna_kernels/%s.s" % NAME

def f2u(x):
    return struct.unpack("<I", struct.pack("<f", x))[0]

class Asm:
    def __init__(self):
        self.lines = []
    def __call__(self, s):
        for l in s.strip("\n").split("\n"):
            l = l.strip()
            m = re.search(r"offset:(\d+)", l)
            if m and l.startswith("buffer_"):
                assert int(m.group(1)) < 4096, l
            if m and l.startswith("ds_"):
                assert int(m.group(1)) < 65536, l
            self.lines.append("    " + l)
    def label(self, l):
        self.lines.append(l + ":")
    def raw(self, s):
        self.lines.append(s)
    def text(self):
        return "\n".join(self.lines) + "\n"

WS_Q = 0
WS_OP = 0x20000
WS_ML = 0xA0000
WS_P2 = 0xB0000
WS_FL = 0xA2000
WS_CNT = 0xA4000
WS_BYTES = 0x400000

LOG2E = 1.4426950408889634
SCALE_C = 0.0625 * LOG2E
NT = os.environ.get("NT", " nt")

MB = 131072
L_WQ = MB
L_XN = MB + 14336
L_QL = MB + 21504
L_WO = MB
L_O = MB + 22528
L_H = MB + 26624
L_T = MB + 28672
L_F = MB + 31744
L_NEXT = MB + 31808
NSTAT = int(os.environ.get("NSTAT", "24"))
LOOK = int(os.environ.get("LOOK", "6"))
DEPTH = int(os.environ.get("DEPTH", "3"))
VX = int(os.environ.get("VX", "0"))
BULK = int(os.environ.get("BULK", "0"))
IPF = int(os.environ.get("IPF", "0"))
LDS_BYTES = 163840

SPIN_MAX = 1 << 18

def srd(a, d, base, nbytes):
    a(f"s_mov_b32 s{d}, s{base}")
    a(f"s_and_b32 s{d+1}, s{base+1}, 0xffff")
    a(f"s_mov_b32 s{d+2}, {nbytes}")
    a(f"s_mov_b32 s{d+3}, 0x00020000")

def wave_reduce(a, op, v, t):
    for ctl in ["quad_perm:[1,0,3,2]", "quad_perm:[2,3,0,1]", "row_half_mirror", "row_mirror"]:
        a("s_nop 1")
        a(f"{op}_dpp v{v}, v{v}, v{v} {ctl} row_mask:0xf bank_mask:0xf")
    group_reduce(a, op, v, t)

def group_reduce(a, op, v, t):
    a(f"v_mov_b32 v{t}, v{v}")
    a("s_nop 1")
    a(f"v_permlane16_swap_b32 v{v}, v{t}")
    a("s_nop 1")
    a(f"{op} v{v}, v{v}, v{t}")
    a(f"v_mov_b32 v{t}, v{v}")
    a("s_nop 1")
    a(f"v_permlane32_swap_b32 v{v}, v{t}")
    a("s_nop 1")
    a(f"{op} v{v}, v{v}, v{t}")

def wave_reduce2(a, op, v, t, w, u):
    for ctl in ["quad_perm:[1,0,3,2]", "quad_perm:[2,3,0,1]", "row_half_mirror", "row_mirror"]:
        a("s_nop 0")
        a(f"{op}_dpp v{v}, v{v}, v{v} {ctl} row_mask:0xf bank_mask:0xf")
        a(f"{op}_dpp v{w}, v{w}, v{w} {ctl} row_mask:0xf bank_mask:0xf")
    for sw in ["v_permlane16_swap_b32", "v_permlane32_swap_b32"]:
        a(f"v_mov_b32 v{t}, v{v}")
        a(f"v_mov_b32 v{u}, v{w}")
        a("s_nop 1")
        a(f"{sw} v{v}, v{t}")
        a(f"{sw} v{w}, v{u}")
        a("s_nop 1")
        a(f"{op} v{v}, v{v}, v{t}")
        a(f"{op} v{w}, v{w}, v{u}")

def bf16r(a, v):
    a(f"v_cvt_pk_bf16_f32 v{v}, v{v}, v{v}")
    a(f"v_and_b32 v{v}, 0xffff0000, v{v}")

def bf16r2(a, v, w, t):
    a(f"v_cvt_pk_bf16_f32 v{t}, v{v}, v{w}")
    a(f"v_lshlrev_b32 v{v}, 16, v{t}")
    a(f"v_and_b32 v{w}, 0xffff0000, v{t}")

def unpack8(a, src, dst):
    for i in range(4):
        a(f"v_lshlrev_b32 v{dst+2*i}, 16, v{src+i}")
        a(f"v_and_b32 v{dst+2*i+1}, 0xffff0000, v{src+i}")

def layernorm8(a, x, t0, t1, t2, smask):
    a(f"v_add_f32 v{t0}, v{x}, v{x+1}")
    for i in range(2, 8):
        a(f"v_add_f32 v{t0}, v{t0}, v{x+i}")
    wave_reduce(a, "v_add_f32", t0, t1)
    a(f"v_mul_f32 v{t0}, {hex(f2u(1.0/448))}, v{t0}")
    a(f"v_sub_f32 v{t2}, v{x}, v{t0}")
    a(f"v_mul_f32 v{t1}, v{t2}, v{t2}")
    for i in range(1, 8):
        a(f"v_sub_f32 v{t2}, v{x+i}, v{t0}")
        a(f"v_fmac_f32 v{t1}, v{t2}, v{t2}")
    a(f"v_cndmask_b32 v{t1}, 0, v{t1}, s[{smask}:{smask+1}]")
    wave_reduce(a, "v_add_f32", t1, t2)
    a(f"v_mul_f32 v{t1}, {hex(f2u(1.0/448))}, v{t1}")
    bf16r(a, t1)
    a(f"v_add_f32 v{t1}, {hex(f2u(1e-5))}, v{t1}")
    bf16r(a, t1)
    a(f"v_sqrt_f32 v{t1}, v{t1}")
    a("s_nop 0")
    bf16r(a, t1)
    a(f"v_rcp_f32 v{t1}, v{t1}")
    bf16r(a, t0)
    for i in range(0, 8, 2):
        a(f"v_sub_f32 v{x+i}, v{x+i}, v{t0}")
        a(f"v_sub_f32 v{x+i+1}, v{x+i+1}, v{t0}")
        bf16r2(a, x+i, x+i+1, t2)
        a(f"v_mul_f32 v{x+i}, v{x+i}, v{t1}")
        a(f"v_mul_f32 v{x+i+1}, v{x+i+1}, v{t1}")
        bf16r2(a, x+i, x+i+1, t2)

def layernorm8x2(a, x, y, tx, ty, smask):
    t0, t1, t2 = tx; u0, u1, u2 = ty
    a(f"v_add_f32 v{t0}, v{x}, v{x+1}")
    a(f"v_add_f32 v{u0}, v{y}, v{y+1}")
    for i in range(2, 8):
        a(f"v_add_f32 v{t0}, v{t0}, v{x+i}")
        a(f"v_add_f32 v{u0}, v{u0}, v{y+i}")
    wave_reduce2(a, "v_add_f32", t0, t1, u0, u1)
    a(f"v_mul_f32 v{t0}, {hex(f2u(1.0/448))}, v{t0}")
    a(f"v_mul_f32 v{u0}, {hex(f2u(1.0/448))}, v{u0}")
    for i in range(8):
        a(f"v_sub_f32 v{t2}, v{x+i}, v{t0}")
        a(f"v_sub_f32 v{u2}, v{y+i}, v{u0}")
        if i == 0:
            a(f"v_mul_f32 v{t1}, v{t2}, v{t2}")
            a(f"v_mul_f32 v{u1}, v{u2}, v{u2}")
        else:
            a(f"v_fmac_f32 v{t1}, v{t2}, v{t2}")
            a(f"v_fmac_f32 v{u1}, v{u2}, v{u2}")
    a(f"v_cndmask_b32 v{t1}, 0, v{t1}, s[{smask}:{smask+1}]")
    a(f"v_cndmask_b32 v{u1}, 0, v{u1}, s[{smask}:{smask+1}]")
    wave_reduce2(a, "v_add_f32", t1, t2, u1, u2)
    a(f"v_mul_f32 v{t1}, {hex(f2u(1.0/448))}, v{t1}")
    a(f"v_mul_f32 v{u1}, {hex(f2u(1.0/448))}, v{u1}")
    bf16r2(a, t1, u1, t2)
    a(f"v_add_f32 v{t1}, {hex(f2u(1e-5))}, v{t1}")
    a(f"v_add_f32 v{u1}, {hex(f2u(1e-5))}, v{u1}")
    bf16r2(a, t1, u1, t2)
    a(f"v_sqrt_f32 v{t1}, v{t1}")
    a(f"v_sqrt_f32 v{u1}, v{u1}")
    a("s_nop 0")
    bf16r2(a, t1, u1, t2)
    a(f"v_rcp_f32 v{t1}, v{t1}")
    a(f"v_rcp_f32 v{u1}, v{u1}")
    bf16r2(a, t0, u0, t2)
    for (z, m, r_) in ((x, t0, t1), (y, u0, u1)):
        for i in range(0, 8, 2):
            a(f"v_sub_f32 v{z+i}, v{z+i}, v{m}")
            a(f"v_sub_f32 v{z+i+1}, v{z+i+1}, v{m}")
            bf16r2(a, z+i, z+i+1, t2)
            a(f"v_mul_f32 v{z+i}, v{z+i}, v{r_}")
            a(f"v_mul_f32 v{z+i+1}, v{z+i+1}, v{r_}")

def pack8(a, x, dst):
    for i in range(4):
        a(f"v_cvt_pk_bf16_f32 v{dst+i}, v{x+2*i}, v{x+2*i+1}")

def anysent(a, regs, t):
    regs = list(regs)
    a(f"v_max_u32 v{t}, v{regs[0]}, v{regs[1]}")
    i = 2
    while i < len(regs):
        if i + 1 < len(regs):
            a(f"v_max3_u32 v{t}, v{t}, v{regs[i]}, v{regs[i+1]}")
            i += 2
        else:
            a(f"v_max_u32 v{t}, v{t}, v{regs[i]}")
            i += 1

QF = 16; OA = 64; KF = 128; VF = 160; KOFF = 192; VOFF = 200; KRA = 208; VRA = 212
SA = 220; PB = 224; M = 226; L = 227; AL = 228; T0 = 229; T1 = 230; T2 = 231

STAMP = int(os.environ.get("STAMP", "0"))
PRE = int(os.environ.get("PRE", "2"))
LATE0 = int(os.environ.get("LATE0", "0"))
MAP = int(os.environ.get("MAP", "1"))
def stamp(a, idx, va=233, vb=234):
    if not STAMP: return
    a("s_memrealtime s[42:43]")
    a("s_waitcnt lgkmcnt(0)")
    a(f"v_mov_b32 v{va}, s42")
    a("s_lshl_b32 s42, s2, 7")
    a(f"s_add_u32 s42, s42, {0x200000 + idx*4}")
    a(f"v_mov_b32 v{vb}, 0")
    a("s_mov_b64 exec, 1")
    a(f"buffer_store_dword v{va}, v{vb}, s[52:55], s42 offen")
    a("s_mov_b64 exec, s[58:59]")

def gen(a):
    n = KNAME
    a.raw(".text")
    a.raw(f".globl {n}")
    a.raw(".p2align 8")
    a.raw(f".type {n},@function")
    a.label(n)
    a("s_cmp_ge_u32 s2, 256")
    a("s_cbranch_scc1 L_done")
    a("s_load_dwordx16 s[16:31], s[0:1], 0")
    a("s_load_dwordx8 s[32:39], s[0:1], 64")
    a("s_load_dwordx2 s[40:41], s[0:1], 96")
    a("v_lshrrev_b32 v1, 6, v0")
    a("v_and_b32 v2, 63, v0")
    a("v_and_b32 v3, 15, v2")
    a("v_readfirstlane_b32 s3, v1")
    a("v_lshrrev_b32 v4, 4, v2")
    if MAP == 0:
        a("s_and_b32 s4, s2, 7")
        a("s_lshr_b32 s5, s2, 3")
    else:
        a("s_lshr_b32 s4, s2, 5")
        a("s_and_b32 s5, s2, 31")
    a("s_lshr_b32 s96, s5, 2")
    a("s_and_b32 s97, s5, 3")
    a("s_lshl_b32 s98, s4, 5")
    a("s_add_u32 s98, s98, s5")
    a("v_cmp_gt_u32 s[56:57], 56, v2")
    a("s_mov_b64 s[58:59], exec")
    a("s_waitcnt lgkmcnt(0)")
    srd(a, 44, 18, 0x10000000)
    srd(a, 48, 20, 0x10000000)
    srd(a, 52, 40, WS_BYTES)
    srd(a, 60, 16, 7168)
    srd(a, 64, 22, 448*4096*2)
    srd(a, 68, 24, 4096*448*2)
    srd(a, 72, 38, 256)
    srd(a, 76, 36, 7168)
    srd(a, 80, 28, 3584)
    srd(a, 84, 30, 3584)
    srd(a, 88, 32, 3584)
    srd(a, 92, 34, 4)
    a("s_and_b32 s38, s5, 7")
    a("s_lshl_b32 s38, s38, 2")
    a("s_lshr_b32 s39, s5, 3")
    a("s_add_u32 s38, s38, s39")
    a("s_lshl_b32 s39, s4, 5")
    a("s_add_u32 s39, s39, s38")
    a("s_cmp_ge_u32 s3, 4")
    a("s_cbranch_scc1 L_helpers")

    if STAMP:
        a("s_cmp_lg_u32 s3, 0")
        a("s_cbranch_scc1 L_st0")
        stamp(a, 0)
        a.label("L_st0")
    a("v_lshrrev_b32 v7, 5, v2")
    a("v_and_b32 v8, 31, v2")
    for p in range(8):
        a(f"v_add_u32 v5, {2*p}, v7")
        a("v_xor_b32 v6, v8, v5")
        a("v_lshlrev_b32 v6, 4, v6")
        a(f"v_lshl_add_u32 v{KOFF+p}, v7, 9, v6")
        a(f"v_add_u32 v{KOFF+p}, {p*4096-(p&3)*1024}, v{KOFF+p}")
        a("v_and_b32 v5, 7, v5")
        a("v_lshlrev_b32 v5, 1, v5")
        a("v_xor_b32 v6, v8, v5")
        a("v_lshlrev_b32 v6, 4, v6")
        a(f"v_lshl_add_u32 v{VOFF+p}, v7, 9, v6")
        a(f"v_add_u32 v{VOFF+p}, {p*4096-(p&3)*1024}, v{VOFF+p}")
    a("s_lshl_b32 s8, s3, 15")
    a("s_lshl_b32 s20, s96, 3")
    a("s_add_u32 s20, s20, s4")
    a("s_lshl_b32 s20, s20, 22")
    a("s_lshl_b32 s6, s3, 10")
    a("s_add_u32 s20, s20, s6")
    a(f"s_mul_i32 s6, s97, {NSTAT*32768}")
    a("s_add_u32 s9, s20, s6")

    def issue(kind, slot):
        srd_ = "s[44:47]" if kind == "K" else "s[48:51]"
        so = "s9"
        off = KOFF if kind == "K" else VOFF
        a(f"s_add_u32 s11, s8, {slot*8192}")
        a("s_mov_b32 m0, s11")
        a(f"s_add_u32 s12, s8, {slot*8192+4096}")
        for p in range(4):
            a(f"buffer_load_dwordx4 v{off+p}, {srd_}, {so} offen offset:{p*1024}{NT} lds")
        a("s_mov_b32 m0, s12")
        a("s_nop 0")
        for p in range(4):
            a(f"buffer_load_dwordx4 v{off+4+p}, {srd_}, {so} offen offset:{p*1024}{NT} lds")

    def ldsspin(word, target, lab):
        a(f"v_mov_b32 v5, {L_F + word*4}")
        a.label(lab)
        a("ds_read_b32 v6, v5")
        a("s_waitcnt lgkmcnt(0)")
        a("v_readfirstlane_b32 s6, v6")
        a(f"s_cmp_ge_u32 s6, {target}")
        a(f"s_cbranch_scc1 {lab}_d")
        a("s_sleep 1")
        a(f"s_branch {lab}")
        a.label(lab + "_d")

    units = [("K", 0), ("V", 1), ("K", 2), ("V", 3)]
    a("s_barrier")
    assert PRE == 2
    for u in units[:2]: issue(*u)
    a("s_add_u32 s9, s9, 32768")
    for jj in range(4):
        a(f"v_add_u32 v5, {4*jj}, v4")
        a("v_xor_b32 v5, v5, v3")
        a("v_lshlrev_b32 v5, 4, v5")
        a(f"v_lshl_add_u32 v5, v3, 9, v5")
        a(f"v_add_u32 v{KRA+jj}, s8, v5")
    a("v_bfe_u32 v5, v2, 2, 2")
    a("v_lshl_add_u32 v5, v4, 2, v5")
    a("v_and_b32 v6, 7, v5")
    a("v_and_b32 v7, 3, v2")
    a("v_lshlrev_b32 v7, 3, v7")
    a("v_lshl_add_u32 v7, v5, 9, v7")
    a("v_add_u32 v7, s8, v7")
    for nn in range(8):
        a(f"v_xor_b32 v5, {nn}, v6")
        a(f"v_lshl_add_u32 v{VRA+nn}, v5, 5, v7")
    for i in range(64):
        a(f"v_mov_b32 v{OA+i}, 0")
    a(f"v_mov_b32 v{M}, 0xf149f2ca")
    a(f"v_mov_b32 v{L}, 0")
    a(f"s_mov_b32 s14, {hex(f2u(SCALE_C))}")
    if PRE < 4:
        ldsspin(1, 1, "L_spin1")
        for u in units[PRE:]: issue(*u)
    ldsspin(2, 1, "L_spin2")
    a("v_and_b32 v5, 1, v2")
    a("v_lshlrev_b32 v5, 9, v5")
    a("v_lshl_add_u32 v5, v4, 4, v5")
    a(f"v_add_u32 v5, {L_QL}, v5")
    for j in range(8):
        a(f"ds_read_b128 v[{QF+4*j}:{QF+4*j+3}], v5 offset:{j*64}")
    a("s_waitcnt lgkmcnt(0)")
    a(f"v_mov_b32 v235, {L_NEXT+8}")
    a(f"v_mov_b32 v238, {L_F+12}")

    def step(kslot, vslot, do_issue, wk, wv, tag):
        a("s_cmp_eq_u32 s15, 1000")
        a(f"s_cbranch_scc1 L_wk_{tag}")
        a("s_waitcnt vmcnt(0)")
        a.label(f"L_wk_{tag}")
        a(f"s_waitcnt vmcnt({wk})")
        a("v_mov_b32 v237, s13")
        a("ds_read_b32 v236, v235")
        if VX != 2: a("ds_write_b32 v238, v237")
        for j in range(8):
            a(f"ds_read_b128 v[{KF+4*j}:{KF+4*j+3}], v{KRA+(j&3)} offset:{kslot*8192 + (j>>2)*256}")
        for j in range(8):
            a(f"s_waitcnt lgkmcnt({7-j})")
            c = "0" if j == 0 else f"v[{SA}:{SA+3}]"
            a(f"v_mfma_f32_16x16x32_bf16 v[{SA}:{SA+3}], v[{KF+4*j}:{KF+4*j+3}], v[{QF+4*j}:{QF+4*j+3}], {c}")
        a("v_readfirstlane_b32 s6, v236")
        a("s_cmp_lg_u32 s6, -1")
        a(f"s_cbranch_scc1 L_nx_{tag}")
        a.label(f"L_nxs_{tag}")
        a("s_sleep 1")
        a("ds_read_b32 v236, v235")
        a("s_waitcnt lgkmcnt(0)")
        a("v_readfirstlane_b32 s6, v236")
        a("s_cmp_eq_u32 s6, -1")
        a(f"s_cbranch_scc1 L_nxs_{tag}")
        a.label(f"L_nx_{tag}")
        a("v_add_u32 v235, 4, v235")
        a("s_lshl_b32 s7, s6, 15")
        a("s_add_u32 s9, s20, s7")
        a("s_add_u32 s7, s13, 2")
        a("s_min_u32 s7, s7, s15")
        a("s_cmp_ge_u32 s6, 128")
        a("s_cselect_b32 s15, s7, s15")
        a(f"s_cbranch_scc1 L_noik_{tag}")
        issue("K", kslot)
        a.label(f"L_noik_{tag}")
        a("s_nop 3")
        a(f"v_cvt_pk_bf16_f32 v{T0}, v{SA}, v{SA+1}")
        a(f"v_cvt_pk_bf16_f32 v{T1}, v{SA+2}, v{SA+3}")
        a(f"v_lshlrev_b32 v{SA}, 16, v{T0}")
        a(f"v_and_b32 v{SA+1}, 0xffff0000, v{T0}")
        a(f"v_lshlrev_b32 v{SA+2}, 16, v{T1}")
        a(f"v_and_b32 v{SA+3}, 0xffff0000, v{T1}")
        a(f"v_max3_f32 v{T0}, v{SA}, v{SA+1}, v{SA+2}")
        a(f"v_max_f32 v{T0}, v{T0}, v{SA+3}")
        group_reduce(a, "v_max_f32", T0, T1)
        a(f"v_mul_f32 v{T0}, s14, v{T0}")
        a(f"v_max_f32 v{T0}, v{T0}, v{M}")
        a(f"v_sub_f32 v{AL}, v{M}, v{T0}")
        a(f"v_exp_f32 v{AL}, v{AL}")
        a(f"v_mov_b32 v{M}, v{T0}")
        for r in range(4):
            a(f"v_fma_f32 v{SA+r}, v{SA+r}, s14, -v{T0}")
        for r in range(4):
            a(f"v_exp_f32 v{SA+r}, v{SA+r}")
        a(f"v_cmp_neq_f32 vcc, 1.0, v{AL}")
        a(f"v_cvt_pk_bf16_f32 v{PB}, v{SA}, v{SA+1}")
        a(f"v_cvt_pk_bf16_f32 v{PB+1}, v{SA+2}, v{SA+3}")
        a(f"v_add_f32 v{T1}, v{SA}, v{SA+1}")
        a(f"v_add_f32 v{T2}, v{SA+2}, v{SA+3}")
        a(f"v_add_f32 v{T1}, v{T1}, v{T2}")
        a(f"v_fma_f32 v{L}, v{L}, v{AL}, v{T1}")
        a(f"s_cbranch_vccz L_nors_{tag}")
        for i in range(64):
            a(f"v_mul_f32 v{OA+i}, v{OA+i}, v{AL}")
        a.label(f"L_nors_{tag}")
        a("s_cmp_eq_u32 s15, 1000")
        a(f"s_cbranch_scc1 L_wv_{tag}")
        a("s_waitcnt vmcnt(0)")
        a.label(f"L_wv_{tag}")
        a(f"s_waitcnt vmcnt({wv})")
        for nn in range(16):
            a(f"ds_read_b64_tr_b16 v[{VF+2*nn}:{VF+2*nn+1}], v{VRA+(nn&7)} offset:{vslot*8192 + (nn>>3)*256}")
        for nn in range(16):
            a(f"s_waitcnt lgkmcnt({15-nn})")
            a(f"v_mfma_f32_16x16x16_bf16 v[{OA+4*nn}:{OA+4*nn+3}], v[{VF+2*nn}:{VF+2*nn+1}], v[{PB}:{PB+1}], v[{OA+4*nn}:{OA+4*nn+3}]")
        a("s_cmp_lg_u32 s15, 1000")
        a(f"s_cbranch_scc1 L_noiv_{tag}")
        issue("V", vslot)
        a.label(f"L_noiv_{tag}")

    a("s_mov_b32 s13, 0")
    a("s_mov_b32 s15, 1000")
    a.label("L_loop")
    step(0, 1, True, 24, 24, "a")
    a("s_add_u32 s13, s13, 1")
    a("s_cmp_ge_u32 s13, s15")
    a("s_cbranch_scc1 L_loop_done")
    step(2, 3, True, 24, 24, "b")
    a("s_add_u32 s13, s13, 1")
    a("s_cmp_lt_u32 s13, s15")
    a("s_cbranch_scc1 L_loop")
    a.label("L_loop_done")
    a("s_waitcnt vmcnt(0)")
    if STAMP:
        a("s_cmp_lg_u32 s3, 0")
        a("s_cbranch_scc1 L_st6")
        stamp(a, 6)
        a.label("L_st6")
    group_reduce(a, "v_add_f32", L, T1)
    a("s_nop 7")
    a("v_cmp_gt_u32 vcc, 2, v3")
    a("v_lshlrev_b32 v5, 10, v3")
    a("v_lshl_add_u32 v5, v4, 4, v5")
    a("v_add_u32 v5, s8, v5")
    a("s_and_b64 exec, exec, vcc")
    for nn in range(16):
        a(f"ds_write_b128 v5, v[{OA+4*nn}:{OA+4*nn+3}] offset:{nn*64}")
    a("v_cmp_gt_u32 vcc, 2, v2")
    a("v_lshlrev_b32 v5, 3, v2")
    a("v_add_u32 v5, s8, v5")
    a("s_and_b64 exec, exec, vcc")
    a(f"ds_write_b64 v5, v[{M}:{M+1}] offset:2048")
    a("s_mov_b64 exec, s[58:59]")
    a("s_waitcnt lgkmcnt(0)")
    a("s_barrier")
    a("v_lshrrev_b32 v5, 7, v0")
    a("v_lshlrev_b32 v6, 3, v5")
    a("v_lshlrev_b32 v7, 3, v0")
    a("v_add_u32 v9, 0x10000, v6")
    a("v_add_u32 v10, 0x10000, v7")
    for w in range(4):
        a(f"ds_read_b64 v[{16+2*w}:{17+2*w}], v{6 if w<2 else 9} offset:{(w&1)*32768+2048}")
        a(f"ds_read_b64 v[{24+2*w}:{25+2*w}], v{7 if w<2 else 10} offset:{(w&1)*32768}")
    a("s_waitcnt lgkmcnt(0)")
    a("v_max_f32 v32, v16, v18")
    a("v_max3_f32 v32, v32, v20, v22")
    for w in range(4):
        a(f"v_sub_f32 v{16+2*w}, v{16+2*w}, v32")
        a(f"v_exp_f32 v{16+2*w}, v{16+2*w}")
    a("s_nop 0")
    a("v_mul_f32 v33, v16, v17")
    a("v_mul_f32 v34, v16, v24")
    a("v_mul_f32 v35, v16, v25")
    for w in range(1, 4):
        a(f"v_fmac_f32 v33, v{16+2*w}, v{17+2*w}")
        a(f"v_fmac_f32 v34, v{16+2*w}, v{24+2*w}")
        a(f"v_fmac_f32 v35, v{16+2*w}, v{25+2*w}")
    a("s_lshl_b32 s6, s98, 11")
    a(f"s_add_u32 s6, s6, {WS_OP}")
    a("buffer_store_dwordx2 v[34:35], v7, s[52:55], s6 offen sc1")
    a("v_and_b32 v8, 127, v0")
    a("v_cmp_eq_u32 vcc, 0, v8")
    a("s_lshl_b32 s6, s98, 4")
    a(f"s_add_u32 s6, s6, {WS_ML}")
    a("s_and_b64 exec, exec, vcc")
    a("buffer_store_dwordx2 v[32:33], v6, s[52:55], s6 offen sc1")
    a("s_mov_b64 exec, s[58:59]")
    a("s_branch L_tail")

    a.label("L_helpers")
    a("s_memrealtime s[16:17]")
    a("v_lshlrev_b32 v5, 4, v2")
    a("v_mov_b32 v6, 0x7fff0000")
    a("v_cndmask_b32 v5, v6, v5, s[56:57]")
    a("s_sub_u32 s6, s3, 4")
    a("s_mul_i32 s15, s6, 1792")
    a("buffer_load_dwordx4 v[8:11], v5, s[60:63], s15 offen")
    a("buffer_load_dwordx4 v[12:15], v5, s[60:63], s15 offen offset:896")
    a("s_cmp_ge_u32 s38, 14")
    a("s_cselect_b32 s99, 1, 0")
    a("s_mul_i32 s6, s99, 14")
    a("s_sub_u32 s100, s38, s6")
    a("s_lshl_b32 s101, s4, 1")
    a("s_add_u32 s101, s101, s99")
    a("s_cmp_lg_u32 s3, 4")
    a("s_cbranch_scc1 L_h_not4")
    a("v_lshrrev_b32 v5, 1, v2")
    a("v_lshlrev_b32 v5, 13, v5")
    a("v_and_b32 v6, 1, v2")
    a("v_lshl_add_u32 v5, v6, 4, v5")
    a("s_lshl_b32 s6, s39, 5")
    a(f"s_mov_b32 s7, {L_WQ}")
    for p in range(14):
        a("s_mov_b32 m0, s7")
        a("s_add_u32 s7, s7, 1024")
        a("buffer_load_dwordx4 v5, s[64:67], s6 offen lds")
        a("s_add_u32 s6, s6, 0x40000")
    a(f"v_mov_b32 v5, {L_F}")
    for i in range(4):
        a(f"v_mov_b32 v{16+i}, 0")
    a("ds_write_b128 v5, v[16:19]")
    a(f"s_mul_i32 s6, s97, {NSTAT}")
    a("v_add_u32 v16, s6, v2")
    a(f"v_cmp_gt_u32 vcc, {NSTAT}, v2")
    a("v_lshlrev_b32 v5, 2, v2")
    a(f"v_add_u32 v5, {L_NEXT}, v5")
    a("v_cndmask_b32 v16, -1, v16, vcc")
    if VX: a("v_add_u32 v16, s6, v2")
    if VX: a("v_max_u32 v16, v16, v16")
    if VX: a(f"v_mov_b32 v17, 0x1000")
    if VX: a("v_cndmask_b32 v16, v17, v16, vcc")
    a("v_mov_b32 v17, -1")
    a("ds_write_b32 v5, v16")
    a("ds_write_b32 v5, v17 offset:256")
    a("s_branch L_h_bar0")
    a.label("L_h_not4")
    a("s_cmp_lg_u32 s3, 6")
    a("s_cbranch_scc1 L_h_bar0")
    a("s_cmp_lg_u32 s97, 0")
    a("s_cbranch_scc1 L_nocinit")
    a("s_lshl_b32 s6, s4, 3")
    a("s_add_u32 s6, s6, s96")
    a("s_lshl_b32 s6, s6, 8")
    a(f"s_add_u32 s6, s6, {WS_CNT}")
    a("s_waitcnt lgkmcnt(0)")
    a("s_lshr_b64 s[18:19], s[16:17], 2")
    a("s_and_b32 s7, s18, 0xffffff00")
    a("v_mov_b32 v16, s7")
    a("v_mov_b32 v17, 0")
    a("s_mov_b64 exec, 1")
    a("buffer_store_dword v16, v17, s[52:55], s6 offen sc1")
    a("s_mov_b64 exec, s[58:59]")
    a.label("L_nocinit")
    a.label("L_h_bar0")
    a("s_waitcnt lgkmcnt(0)")
    if not LATE0: a("s_barrier")
    a("s_lshr_b64 s[16:17], s[16:17], 10")
    a("s_cmp_eq_u32 s3, 4")
    a("s_cbranch_scc1 L_h_w14")
    a("s_cmp_eq_u32 s3, 6")
    a("s_cbranch_scc1 L_h_w3")
    a("s_waitcnt vmcnt(0)")
    a("s_branch L_h_ln")
    a.label("L_h_w14")
    a(f"s_waitcnt vmcnt({0 if LATE0 else 14})")
    a("s_branch L_h_ln")
    a.label("L_h_w3")
    a("s_waitcnt vmcnt(1)")
    a("s_cmp_eq_u32 s97, 0")
    a("s_cbranch_scc1 L_h_ln")
    a("s_waitcnt vmcnt(0)")
    a.label("L_h_ln")
    if LATE0: a("s_barrier")
    unpack8(a, 8, 16)
    unpack8(a, 12, 24)
    layernorm8x2(a, 16, 24, (32, 33, 34), (35, 36, 37), 56)
    pack8(a, 16, 8)
    pack8(a, 24, 12)
    a("v_lshlrev_b32 v5, 4, v2")
    a(f"s_add_u32 s6, s15, {L_XN}")
    a("v_add_u32 v5, s6, v5")
    a("s_mov_b64 exec, s[56:57]")
    a("ds_write_b128 v5, v[8:11]")
    a("ds_write_b128 v5, v[12:15] offset:896")
    a("s_mov_b64 exec, 1")
    a(f"v_mov_b32 v5, {L_F}")
    a("v_mov_b32 v6, 1")
    a("s_waitcnt lgkmcnt(0)")
    a("ds_add_u32 v5, v6")
    a("s_mov_b64 exec, s[58:59]")
    a("s_lshl_b32 s7, s4, 5")
    a("v_mov_b32 v9, s7")
    a("v_mov_b32 v8, 1")
    a("s_cmp_eq_u32 s3, 4")
    a("s_cbranch_scc1 L_service")
    a("s_cmp_eq_u32 s3, 5")
    a("s_cbranch_scc1 L_w5")
    if IPF:
        a("s_cmp_lg_u32 s3, 7")
        a("s_cbranch_scc1 L_not7")
        assert IPF < NSTAT
        a(f"v_mov_b32 v5, {L_F+12}")
        a("s_mov_b32 s13, 0")
        a.label("L_w7s")
        a("s_sleep 32")
        a("ds_read_b32 v6, v5")
        a("s_add_u32 s13, s13, 1")
        a("s_waitcnt lgkmcnt(0)")
        a("v_readfirstlane_b32 s6, v6")
        a("s_cmp_ge_u32 s13, 0x10000")
        a("s_cbranch_scc1 L_w7s_d")
        a(f"s_cmp_lt_u32 s6, {IPF}")
        a("s_cbranch_scc1 L_w7s")
        a.label("L_w7s_d")
        a("s_getpc_b64 s[36:37]")
        a.label("L_pc0")
        a("s_add_u32 s36, s36, L_loop_done-L_pc0")
        a("s_addc_u32 s37, s37, -1")
        a("s_mov_b32 s6, 0")
        a.label("L_pf1")
        a("s_load_dwordx16 s[20:35], s[36:37], s6")
        a("s_add_u32 s6, s6, 64")
        a("s_cmp_lt_u32 s6, L_helpers-L_loop_done")
        a("s_cbranch_scc1 L_pf1")
        a("s_waitcnt lgkmcnt(0)")
        a("s_getpc_b64 s[36:37]")
        a.label("L_pc1")
        a("s_add_u32 s36, s36, L_tail-L_pc1")
        a("s_addc_u32 s37, s37, 0")
        a("s_mov_b32 s6, 0")
        a.label("L_pf2")
        a("s_load_dwordx16 s[20:35], s[36:37], s6")
        a("s_add_u32 s6, s6, 64")
        a("s_cmp_lt_u32 s6, L_done-L_tail")
        a("s_cbranch_scc1 L_pf2")
        a("s_waitcnt lgkmcnt(0)")
        a("s_branch L_h_bar3")
        a.label("L_not7")
    a("s_cmp_lg_u32 s3, 6")
    a("s_cbranch_scc1 L_h_bar3")
    if VX == 4: a("s_branch L_h_bar3")
    for i in range(4):
        a(f"v_mov_b32 v{16+i}, -1")
    a("v_lshlrev_b32 v6, 4, v2")
    a("s_lshl_b32 s6, s98, 11")
    a(f"s_add_u32 s6, s6, {WS_OP}")
    a("buffer_store_dwordx4 v[16:19], v6, s[52:55], s6 offen sc1")
    a("buffer_store_dwordx4 v[16:19], v6, s[52:55], s6 offen offset:1024 sc1")
    a("s_lshl_b32 s6, s98, 4")
    a(f"s_add_u32 s6, s6, {WS_ML}")
    a("s_mov_b64 exec, 1")
    a("buffer_store_dwordx4 v[16:19], v6, s[52:55], s6 offen sc1")
    a("s_mov_b64 exec, s[58:59]")
    a("s_cmp_ge_u32 s38, 28")
    a("s_cbranch_scc1 L_clr_done")
    a("v_lshrrev_b32 v6, 3, v2")
    a("v_mul_u32_u24 v6, 1792, v6")
    a("v_and_b32 v7, 7, v2")
    a("v_lshl_add_u32 v6, v7, 4, v6")
    a("s_mul_i32 s6, s101, 14336")
    a("s_lshl_b32 s7, s100, 7")
    a("s_add_u32 s6, s6, s7")
    a(f"s_add_u32 s6, s6, {WS_P2}")
    a("buffer_store_dwordx4 v[16:19], v6, s[52:55], s6 offen sc1")
    a("s_lshl_b32 s6, s39, 2")
    a(f"s_add_u32 s6, s6, {WS_FL}")
    a("v_mov_b32 v6, 0")
    a("s_mov_b64 exec, 1")
    a("buffer_store_dword v16, v6, s[52:55], s6 offen sc1")
    a("s_mov_b64 exec, s[58:59]")
    a.label("L_clr_done")
    a("s_mov_b64 exec, 1")
    a("s_waitcnt vmcnt(0)")
    a("buffer_atomic_add v8, v9, s[72:75], 0 offen sc1")
    a("s_mov_b64 exec, s[58:59]")
    a("s_branch L_h_bar3")
    a.label("L_w5")
    a(f"v_mov_b32 v5, {L_F+12}")
    a("s_mov_b32 s13, 0")
    a.label("L_w5s")
    a("s_sleep 32")
    a("ds_read_b32 v6, v5")
    a("s_add_u32 s13, s13, 1")
    a("s_waitcnt lgkmcnt(0)")
    a("v_readfirstlane_b32 s6, v6")
    a("s_cmp_ge_u32 s13, 0x10000")
    a("s_cbranch_scc1 L_w5s_d")
    a(f"s_cmp_lt_u32 s6, {min(20, NSTAT-2)}")
    a("s_cbranch_scc1 L_w5s")
    a.label("L_w5s_d")
    a("v_lshlrev_b32 v9, 5, v2")
    a("v_cmp_gt_u32 vcc, 8, v2")
    a("s_mov_b32 s13, 0")
    a("s_and_b64 exec, exec, vcc")
    a.label("L_pollall")
    a("buffer_load_dword v10, v9, s[72:75], 0 offen sc1")
    a("s_add_u32 s13, s13, 1")
    a("s_waitcnt vmcnt(0)")
    a("v_cmp_gt_u32 vcc, 64, v10")
    a(f"s_cmp_ge_u32 s13, {SPIN_MAX}")
    a("s_cbranch_scc1 L_pollall_done")
    a("s_cbranch_vccz L_pollall_done")
    a("s_sleep 64")
    a("s_branch L_pollall")
    a.label("L_pollall_done")
    a("s_mov_b64 exec, s[58:59]")
    stamp(a, 12, 236, 237)
    a.label("L_h_bar3")
    a("s_barrier")
    a("s_branch L_tail")

    a.label("L_service")
    a("v_bfe_u32 v6, v2, 2, 2")
    a("v_lshl_add_u32 v6, v4, 3, v6")
    a("v_lshlrev_b32 v6, 5, v6")
    a("v_and_b32 v7, 3, v2")
    a("v_lshl_add_u32 v6, v7, 3, v6")
    a(f"v_add_u32 v10, {L_WQ}, v6")
    a("v_and_b32 v7, 7, v2")
    a("v_mul_u32_u24 v7, 896, v7")
    a("v_lshl_add_u32 v7, v4, 4, v7")
    a(f"v_add_u32 v7, {L_XN}, v7")
    a("s_waitcnt vmcnt(0)")
    stamp(a, 1, 236, 237)
    for j in range(14):
        a(f"ds_read_b64_tr_b16 v[{40+4*j}:{41+4*j}], v10 offset:{j*1024}")
        a(f"ds_read_b64_tr_b16 v[{42+4*j}:{43+4*j}], v10 offset:{j*1024+128}")
    ldsspin(0, 4, "L_spin0")
    stamp(a, 2, 236, 237)
    for j in range(14):
        a(f"ds_read_b128 v[{100+4*j}:{103+4*j}], v7 offset:{j*64}")
    for j in range(14):
        a(f"s_waitcnt lgkmcnt({13-j})")
        c = "0" if j == 0 else "v[32:35]"
        a(f"v_mfma_f32_16x16x32_bf16 v[32:35], v[{40+4*j}:{43+4*j}], v[{100+4*j}:{103+4*j}], {c}")
    a("v_cmp_gt_u32 vcc, 8, v3")
    a("v_lshlrev_b32 v5, 14, v3")
    a("v_lshl_add_u32 v5, v4, 4, v5")
    a("s_lshl_b32 s6, s39, 6")
    a("v_mov_b32 v37, s16")
    a("v_mov_b32 v39, s16")
    a(f"v_mov_b32 v6, {L_F+4}")
    a("s_sub_u32 s17, s16, 2")
    a("s_nop 1")
    a("v_cvt_pk_bf16_f32 v36, v32, v33")
    a("v_cvt_pk_bf16_f32 v38, v34, v35")
    a("s_and_b64 exec, exec, vcc")
    a(f"buffer_store_dwordx4 v[36:39], v5, s[52:55], s6 offen offset:{WS_Q} sc1")
    a("s_mov_b64 exec, 1")
    a("ds_write_b32 v6, v8")
    a("s_mov_b64 exec, s[58:59]")
    stamp(a, 3, 236, 237)
    a("v_lshlrev_b32 v5, 5, v2")
    a("s_lshl_b32 s6, s96, 14")
    a("s_lshl_b32 s7, s4, 11")
    a("s_add_u32 s15, s6, s7")
    a("s_mov_b32 s13, 0")
    a.label("L_pollq")
    a(f"buffer_load_dwordx4 v[12:15], v5, s[52:55], s15 offen offset:{WS_Q} sc1")
    a(f"buffer_load_dwordx4 v[16:19], v5, s[52:55], s15 offen offset:{WS_Q+16} sc1")
    a("s_waitcnt vmcnt(0)")
    a("s_cmp_lg_u32 s13, 2047")
    a("s_cbranch_scc1 L_pq_noat")
    a("s_mov_b64 exec, 1")
    a("buffer_atomic_add v8, v9, s[72:75], 0 offen sc1")
    a("s_mov_b64 exec, s[58:59]")
    a.label("L_pq_noat")
    a("s_add_u32 s13, s13, 1")
    a("v_subrev_u32 v20, s17, v13")
    a("v_subrev_u32 v21, s17, v15")
    a("v_subrev_u32 v22, s17, v17")
    a("v_subrev_u32 v23, s17, v19")
    a("v_max_u32 v20, v20, v21")
    a("v_max3_u32 v20, v20, v22, v23")
    a("v_cmp_lt_u32 vcc, 4, v20")
    a("s_cbranch_vccz L_pollq_done")
    a("s_cmp_lt_u32 s13, 2048")
    a("s_cbranch_scc1 L_pollq")
    a("buffer_load_dword v10, v9, s[72:75], 0 offen sc1")
    a("s_waitcnt vmcnt(0)")
    a("v_readfirstlane_b32 s6, v10")
    a(f"s_cmp_ge_u32 s13, {SPIN_MAX}")
    a("s_cbranch_scc1 L_pollq_done")
    a("s_cmp_ge_u32 s6, 64")
    a("s_cbranch_scc0 L_pollq")
    a(f"buffer_load_dwordx4 v[12:15], v5, s[52:55], s15 offen offset:{WS_Q} sc1")
    a(f"buffer_load_dwordx4 v[16:19], v5, s[52:55], s15 offen offset:{WS_Q+16} sc1")
    a("s_waitcnt vmcnt(0)")
    a.label("L_pollq_done")
    stamp(a, 4, 236, 237)
    a("v_mov_b32 v13, v14")
    a("v_mov_b32 v14, v16")
    a("v_mov_b32 v15, v18")
    a("v_lshlrev_b32 v5, 4, v2")
    a(f"v_add_u32 v5, {L_QL}, v5")
    a(f"v_mov_b32 v6, {L_F+8}")
    a("ds_write_b128 v5, v[12:15]")
    a("s_waitcnt lgkmcnt(0)")
    a("s_mov_b64 exec, 1")
    a("ds_write_b32 v6, v8")
    a("s_cmp_ge_u32 s13, 2048")
    a("s_cbranch_scc1 L_pq_noat2")
    a("buffer_atomic_add v8, v9, s[72:75], 0 offen sc1")
    a.label("L_pq_noat2")
    a("s_mov_b64 exec, s[58:59]")
    stamp(a, 5, 236, 237)
    a("s_cmp_ge_u32 s38, 28")
    a("s_cbranch_scc1 L_nowo")
    a("v_lshrrev_b32 v5, 2, v2")
    a("v_mul_u32_u24 v5, 896, v5")
    a("v_and_b32 v6, 3, v2")
    a("v_lshl_add_u32 v5, v6, 4, v5")
    a("s_mul_i32 s6, s101, 229376")
    a("s_lshl_b32 s7, s100, 6")
    a("s_add_u32 s6, s6, s7")
    a(f"s_mov_b32 s7, {L_WO}")
    for p in range(16):
        a("s_mov_b32 m0, s7")
        a("s_add_u32 s7, s7, 1024")
        a("buffer_load_dwordx4 v5, s[68:71], s6 offen lds")
        a("s_add_u32 s6, s6, 14336")
    a.label("L_nowo")
    if VX: a("s_branch L_skipdyn")
    a("s_lshl_b32 s6, s4, 3")
    a("s_add_u32 s6, s6, s96")
    a("s_lshl_b32 s6, s6, 8")
    a(f"s_add_u32 s25, s6, {WS_CNT}")
    a("v_mov_b32 v14, 0")
    a("s_mov_b32 s13, 0")
    a.label("L_pcnt")
    a("buffer_load_dword v10, v14, s[52:55], s25 offen sc1")
    a("s_add_u32 s13, s13, 1")
    a("s_waitcnt vmcnt(0)")
    a("v_readfirstlane_b32 s6, v10")
    a("s_lshr_b32 s6, s6, 8")
    a("s_sub_u32 s6, s6, s17")
    a("s_and_b32 s6, s6, 0xffffff")
    a("s_cmp_le_u32 s6, 4")
    a("s_cbranch_scc1 L_pcnt_done")
    a("s_sleep 16")
    a("s_cmp_lt_u32 s13, 1024")
    a("s_cbranch_scc1 L_pcnt")
    a("buffer_load_dword v10, v9, s[72:75], 0 offen sc1")
    a("s_waitcnt vmcnt(0)")
    a("v_readfirstlane_b32 s6, v10")
    a(f"s_cmp_ge_u32 s13, {SPIN_MAX}")
    a("s_cbranch_scc1 L_pcnt_done")
    a("s_cmp_ge_u32 s6, 64")
    a("s_cbranch_scc0 L_pcnt")
    a.label("L_pcnt_done")
    a("s_mov_b32 s22, 1")
    a(f"s_mov_b32 s23, {NSTAT}")
    a(f"s_mov_b32 s24, {NSTAT}")
    a(f"v_mov_b32 v11, {L_F+12}")
    a("v_mov_b32 v10, s22")
    a("s_waitcnt vmcnt(0)")
    a.label("L_dyn")
    a("ds_read_b32 v6, v11")
    a("s_waitcnt lgkmcnt(0)")
    a("v_readfirstlane_b32 s6, v6")
    a(f"s_add_u32 s6, s6, {LOOK}")
    a("s_cmp_ge_u32 s6, s23")
    a("s_cbranch_scc1 L_dyn_go")
    a("s_sleep 4")
    a("s_branch L_dyn")
    a.label("L_dyn_go")
    if STAMP:
        a(f"s_cmp_lg_u32 s23, {NSTAT}")
        a("s_cbranch_scc1 L_sq1")
        a("s_memrealtime s[26:27]")
        a("s_waitcnt lgkmcnt(0)")
        a.label("L_sq1")
    a(f"s_sub_u32 s6, s23, {NSTAT}")
    a("s_lshl_b64 exec, 1, s6")
    a("buffer_atomic_add v10, v14, s[52:55], s25 offen sc0 sc1")
    a("s_mov_b64 exec, s[58:59]")
    a("s_add_u32 s23, s23, 1")
    a("s_sub_u32 s6, s23, s24")
    a(f"s_cmp_le_u32 s6, {DEPTH}")
    a("s_cbranch_scc1 L_dyn")
    a(f"s_waitcnt vmcnt({DEPTH})")
    if STAMP:
        a(f"s_cmp_lg_u32 s24, {NSTAT}")
        a("s_cbranch_scc1 L_sq2")
        a("s_memrealtime s[28:29]")
        a("s_waitcnt lgkmcnt(0)")
        a.label("L_sq2")
    a(f"s_sub_u32 s6, s24, {NSTAT}")
    a("v_readlane_b32 s6, v10, s6")
    a("s_and_b32 s6, s6, 0xff")
    a(f"s_add_u32 s7, s6, {4*NSTAT}")
    a(f"s_cmp_lt_u32 s6, {128-4*NSTAT}")
    a("s_cselect_b32 s7, s7, 0x1000")
    a("s_lshl_b32 s6, s24, 2")
    a(f"s_add_u32 s6, s6, {L_NEXT}")
    a("v_mov_b32 v12, s6")
    a("v_mov_b32 v13, s7")
    a("ds_write_b32 v12, v13")
    a("s_add_u32 s24, s24, 1")
    a("s_cmp_lt_u32 s7, 128")
    a("s_cbranch_scc1 L_dyn")
    a("v_add_u32 v12, 4, v12")
    a("ds_write_b32 v12, v13")
    a("s_waitcnt vmcnt(0) lgkmcnt(0)")
    if STAMP:
        stamp(a, 16, 236, 237)
        for (sr, idx) in ((26, 14), (28, 15)):
            a(f"v_mov_b32 v236, s{sr}")
            a("s_lshl_b32 s42, s2, 7")
            a(f"s_add_u32 s42, s42, {0x200000 + idx*4}")
            a("v_mov_b32 v237, 0")
            a("s_mov_b64 exec, 1")
            a("buffer_store_dword v236, v237, s[52:55], s42 offen")
            a("s_mov_b64 exec, s[58:59]")
    a.label("L_skipdyn")
    a("s_waitcnt vmcnt(0)")
    a("s_barrier")
    stamp(a, 7, 236, 237)

    a.label("L_tail")
    a("s_cmp_ge_u32 s38, 14")
    a("s_cselect_b32 s99, 1, 0")
    a("s_mul_i32 s6, s99, 14")
    a("s_sub_u32 s100, s38, s6")
    a("s_lshl_b32 s101, s4, 1")
    a("s_add_u32 s101, s101, s99")
    a("s_cmp_eq_u32 s3, 7")
    a("s_cbranch_scc1 L_now")
    a("v_mul_u32_u24 v5, 56, v2")
    for (base, sr) in ((128, 80), (144, 84), (160, 88)):
        for i in range(3):
            a(f"buffer_load_dwordx4 v[{base+4*i}:{base+4*i+3}], v5, s[{sr}:{sr+3}], 0 offen offset:{16*i}")
        a(f"buffer_load_dwordx2 v[{base+12}:{base+13}], v5, s[{sr}:{sr+3}], 0 offen offset:48")
    a("v_mov_b32 v6, 0")
    a("buffer_load_ushort v174, v6, s[92:95], 0 offen")
    a.label("L_now")
    a("s_cmp_ge_u32 s38, 28")
    a("s_cbranch_scc1 L_stageD")
    a("s_cmp_ge_u32 s3, 4")
    a("s_cbranch_scc1 L_bar4")
    a("v_lshrrev_b32 v5, 5, v0")
    a("v_and_b32 v6, 31, v0")
    a("v_lshlrev_b32 v7, 13, v5")
    a("v_lshl_add_u32 v7, v6, 5, v7")
    a("v_lshlrev_b32 v8, 6, v5")
    a("s_lshl_b32 s10, s4, 16")
    a("s_lshl_b32 s11, s99, 10")
    a("s_add_u32 s10, s10, s11")
    a(f"s_add_u32 s10, s10, {WS_OP}")
    a("s_add_u32 s11, s10, 4096")
    a("s_lshl_b32 s12, s4, 9")
    a("s_lshl_b32 s6, s99, 3")
    a("s_add_u32 s12, s12, s6")
    a(f"s_add_u32 s12, s12, {WS_ML}")
    a("v_and_b32 v9, 31, v2")
    a("v_lshlrev_b32 v9, 4, v9")
    a("s_lshl_b32 s15, s4, 9")
    a(f"s_add_u32 s15, s15, {WS_ML}")
    a("s_mov_b32 s13, 0")
    if BULK & 1: a("s_branch L_pollC")
    a.label("L_pollC0")
    a("buffer_load_dwordx4 v[16:19], v9, s[52:55], s15 offen sc1")
    a("s_add_u32 s13, s13, 1")
    a("s_waitcnt vmcnt(0)")
    anysent(a, range(16, 20), 56)
    a("v_cmp_eq_u32 vcc, -1, v56")
    a(f"s_cmp_ge_u32 s13, {SPIN_MAX}")
    a("s_cbranch_scc1 L_pollC")
    a("s_cbranch_vccz L_pollC")
    a("s_sleep 8")
    a("s_branch L_pollC0")
    a.label("L_pollC")
    for s in range(4):
        a(f"buffer_load_dwordx2 v[{48+2*s}:{49+2*s}], v8, s[52:55], s12 offen offset:{s*16} sc1")
    for s in range(4):
        a(f"buffer_load_dwordx4 v[{16+8*s}:{19+8*s}], v7, s[52:55], s{10+(s>>1)} offen offset:{(s&1)*2048} sc1")
        a(f"buffer_load_dwordx4 v[{20+8*s}:{23+8*s}], v7, s[52:55], s{10+(s>>1)} offen offset:{(s&1)*2048+16} sc1")
    a("s_add_u32 s13, s13, 1")
    a("s_waitcnt vmcnt(0)")
    anysent(a, range(16, 56), 56)
    a("v_cmp_eq_u32 vcc, -1, v56")
    a(f"s_cmp_ge_u32 s13, {SPIN_MAX}")
    a("s_cbranch_scc1 L_pollC_done")
    a("s_cbranch_vccz L_pollC_done")
    a("s_sleep 4")
    a("s_branch L_pollC")
    a.label("L_pollC_done")
    if STAMP:
        a("s_cmp_lg_u32 s3, 0")
        a("s_cbranch_scc1 L_st8")
        stamp(a, 8)
        a.label("L_st8")
    a("v_max_f32 v56, v48, v50")
    a("v_max3_f32 v56, v56, v52, v54")
    for s in range(4):
        a(f"v_sub_f32 v{48+2*s}, v{48+2*s}, v56")
        a(f"v_exp_f32 v{48+2*s}, v{48+2*s}")
    a("s_nop 0")
    a("v_mul_f32 v57, v48, v49")
    for s in range(1, 4):
        a(f"v_fmac_f32 v57, v{48+2*s}, v{49+2*s}")
    a("v_rcp_f32 v57, v57")
    a("s_nop 0")
    for s in range(4):
        a(f"v_mul_f32 v{48+2*s}, v{48+2*s}, v57")
    for i in range(8):
        a(f"v_mul_f32 v{60+i}, v48, v{16+i}")
        for s in range(1, 4):
            a(f"v_fmac_f32 v{60+i}, v{48+2*s}, v{16+8*s+i}")
    pack8(a, 60, 68)
    a("v_lshlrev_b32 v6, 4, v0")
    a(f"v_add_u32 v6, {L_O}, v6")
    a("ds_write_b128 v6, v[68:71]")
    a("s_waitcnt lgkmcnt(0)")
    a.label("L_bar4")
    a("s_barrier")
    a("s_cmp_ge_u32 s3, 2")
    a("s_cbranch_scc1 L_stageD")
    a("v_bfe_u32 v5, v2, 2, 2")
    a("v_lshl_add_u32 v5, v4, 3, v5")
    a("v_lshlrev_b32 v5, 6, v5")
    a("v_and_b32 v6, 3, v2")
    a("v_lshl_add_u32 v5, v6, 3, v5")
    a("s_lshl_b32 s6, s3, 5")
    a(f"s_add_u32 s6, s6, {L_WO}")
    a("v_add_u32 v5, s6, v5")
    a("v_and_b32 v6, 7, v2")
    a("v_lshlrev_b32 v6, 9, v6")
    a("v_lshl_add_u32 v6, v4, 4, v6")
    a(f"v_add_u32 v6, {L_O}, v6")
    for j in range(8):
        a(f"ds_read_b64_tr_b16 v[{16+4*j}:{17+4*j}], v5 offset:{j*2048}")
        a(f"ds_read_b64_tr_b16 v[{18+4*j}:{19+4*j}], v5 offset:{j*2048+256}")
        a(f"ds_read_b128 v[{48+4*j}:{51+4*j}], v6 offset:{j*64}")
    a("s_waitcnt lgkmcnt(0)")
    for j in range(8):
        c = "0" if j == 0 else "v[80:83]"
        a(f"v_mfma_f32_16x16x32_bf16 v[80:83], v[{16+4*j}:{19+4*j}], v[{48+4*j}:{51+4*j}], {c}")
    a("v_cmp_gt_u32 vcc, 8, v3")
    a("v_mul_u32_u24 v5, 1792, v3")
    a("v_lshl_add_u32 v5, v4, 4, v5")
    a("s_mul_i32 s6, s101, 14336")
    a("s_lshl_b32 s7, s100, 7")
    a("s_add_u32 s6, s6, s7")
    a("s_lshl_b32 s7, s3, 6")
    a("s_add_u32 s6, s6, s7")
    a(f"s_add_u32 s6, s6, {WS_P2}")
    a("s_nop 3")
    a("s_and_b64 exec, exec, vcc")
    a("buffer_store_dwordx4 v[80:83], v5, s[52:55], s6 offen sc1")
    a("s_lshl_b32 s6, s39, 2")
    a(f"s_add_u32 s6, s6, {WS_FL}")
    a("v_mov_b32 v6, 0")
    a("s_mov_b64 exec, 1")
    a("s_cmp_eq_u32 s3, 1")
    a("s_cbranch_scc0 L_noflag")
    a("buffer_store_dword v6, v6, s[52:55], s6 offen sc1")
    a.label("L_noflag")
    a("s_mov_b64 exec, s[58:59]")
    if STAMP:
        a("s_cmp_lg_u32 s3, 0")
        a("s_cbranch_scc1 L_st9")
        stamp(a, 9)
        a.label("L_st9")

    a.label("L_stageD")
    a("s_lshr_b32 s96, s2, 5")
    a("s_and_b32 s97, s2, 31")
    a("s_cmp_lg_u32 s3, 7")
    a("s_cbranch_scc1 L_bar5")
    a("v_lshlrev_b32 v5, 5, v2")
    a("v_mov_b32 v6, 0x7fff0000")
    a("v_cndmask_b32 v5, v6, v5, s[56:57]")
    a("v_lshlrev_b32 v7, 4, v2")
    a("v_cndmask_b32 v7, v6, v7, s[56:57]")
    a("s_mul_i32 s6, s96, 896")
    a("buffer_load_dwordx4 v[8:11], v7, s[60:63], s6 offen")
    a("v_lshlrev_b32 v13, 4, v2")
    a("v_and_b32 v12, 7, v2")
    a("v_cmp_ne_u32 s[18:19], 7, v12")
    a("s_mov_b32 s13, 0")
    if BULK & 2: a("s_branch L_pollD")
    a.label("L_pollD0")
    a(f"s_mov_b32 s6, {WS_FL}")
    a("buffer_load_dwordx4 v[16:19], v13, s[52:55], s6 offen sc1")
    a("s_add_u32 s13, s13, 1")
    a("s_waitcnt vmcnt(0)")
    anysent(a, range(16, 20), 12)
    a("v_cmp_eq_u32 vcc, -1, v12")
    a("s_and_b64 vcc, vcc, s[18:19]")
    a(f"s_cmp_ge_u32 s13, {SPIN_MAX}")
    a("s_cbranch_scc1 L_pollD")
    a("s_cmp_eq_u64 vcc, 0")
    a("s_cbranch_scc1 L_pollD")
    a("s_sleep 8")
    a("s_branch L_pollD0")
    a.label("L_pollD")
    a("s_mul_i32 s6, s96, 1792")
    a(f"s_add_u32 s6, s6, {WS_P2}")
    for h in range(16):
        a(f"buffer_load_dwordx4 v[{128+8*h}:{131+8*h}], v5, s[52:55], s6 offen sc1")
        a(f"buffer_load_dwordx4 v[{132+8*h}:{135+8*h}], v5, s[52:55], s6 offen offset:16 sc1")
        a("s_add_u32 s6, s6, 14336")
    a("s_add_u32 s13, s13, 1")
    a("s_waitcnt vmcnt(0)")
    anysent(a, range(128, 256), 12)
    a("v_cmp_eq_u32 vcc, -1, v12")
    a(f"s_cmp_ge_u32 s13, {SPIN_MAX}")
    a("s_cbranch_scc1 L_pollD_done")
    a("s_cbranch_vccz L_pollD_done")
    a("s_sleep 4")
    a("s_branch L_pollD")
    a.label("L_pollD_done")
    stamp(a, 10, 13, 14)
    for h in range(1, 16):
        for i in range(8):
            a(f"v_add_f32 v{128+i}, v{128+i}, v{128+8*h+i}")
    unpack8(a, 8, 16)
    for i in range(0, 8, 2):
        bf16r2(a, 128+i, 129+i, 12)
        a(f"v_add_f32 v{16+i}, v{16+i}, v{128+i}")
        a(f"v_add_f32 v{17+i}, v{17+i}, v{129+i}")
        bf16r2(a, 16+i, 17+i, 12)
    a("v_lshlrev_b32 v5, 5, v2")
    a(f"v_add_u32 v5, {L_H}, v5")
    a("s_mov_b64 exec, s[56:57]")
    a("ds_write_b128 v5, v[16:19]")
    a("ds_write_b128 v5, v[20:23] offset:16")
    a("s_mov_b64 exec, s[58:59]")
    layernorm8(a, 16, 32, 33, 34, 56)
    for i in range(8):
        a(f"v_cndmask_b32 v{16+i}, 0, v{16+i}, s[56:57]")
    layernorm8(a, 16, 32, 33, 34, 56)
    a("s_mov_b64 exec, s[56:57]")
    a(f"ds_write_b128 v5, v[16:19] offset:{L_T-L_H}")
    a(f"ds_write_b128 v5, v[20:23] offset:{L_T-L_H+16}")
    a("s_mov_b64 exec, s[58:59]")
    a("s_waitcnt lgkmcnt(0)")
    stamp(a, 11, 13, 14)
    a("s_barrier")
    a("s_branch L_done")
    a.label("L_bar5")
    a("s_waitcnt vmcnt(0)")
    for i in range(14):
        a(f"v_lshlrev_b32 v{16+2*i}, 16, v{128+i}")
        a(f"v_and_b32 v{17+2*i}, 0xffff0000, v{128+i}")
        a(f"v_lshlrev_b32 v{44+2*i}, 16, v{144+i}")
        a(f"v_and_b32 v{45+2*i}, 0xffff0000, v{144+i}")
    a("v_lshlrev_b32 v174, 16, v174")
    C1 = -2.0 * LOG2E * math.sqrt(2.0/math.pi)
    C2 = C1 * 0.044715
    a(f"v_mov_b32 v72, {hex(f2u(C1))}")
    a(f"v_mov_b32 v73, {hex(f2u(C1))}")
    a(f"v_mov_b32 v74, {hex(f2u(C2))}")
    a(f"v_mov_b32 v75, {hex(f2u(C2))}")
    a("v_mov_b32 v76, 1.0")
    a("v_mov_b32 v77, 1.0")
    a("v_mov_b32 v78, 0")
    a("v_mov_b32 v79, 0")
    a("s_mul_i32 s6, s97, 56")
    a("s_lshl_b32 s7, s3, 3")
    a("s_add_u32 s6, s6, s7")
    a(f"s_add_u32 s6, s6, {L_H}")
    a("v_mov_b32 v5, s6")
    a("s_barrier")
    a(f"ds_read_b64 v[80:81], v5 offset:{L_T-L_H}")
    a("ds_read_b64 v[82:83], v5")
    a("s_waitcnt lgkmcnt(0)")
    for i in range(14):
        U = [84, 92]; Tt = [86, 94]; C = [88, 96]
        for d in range(2):
            osel = "op_sel_hi:[0,1]" if d == 0 else "op_sel:[1,0] op_sel_hi:[1,1]"
            a(f"v_pk_mul_f32 v[{U[d]}:{U[d]+1}], v[80:81], v[{16+2*i}:{17+2*i}] {osel}")
        for d in range(2):
            bf16r2(a, U[d], U[d]+1, C[d])
        for d in range(2):
            a(f"v_pk_add_f32 v[{U[d]}:{U[d]+1}], v[{U[d]}:{U[d]+1}], v[{44+2*i}:{45+2*i}]")
        for d in range(2):
            bf16r2(a, U[d], U[d]+1, C[d])
        for d in range(2):
            a(f"v_pk_mul_f32 v[{Tt[d]}:{Tt[d]+1}], v[{U[d]}:{U[d]+1}], v[{U[d]}:{U[d]+1}]")
        for d in range(2):
            a(f"v_pk_fma_f32 v[{Tt[d]}:{Tt[d]+1}], v[{Tt[d]}:{Tt[d]+1}], v[74:75], v[72:73]")
        for d in range(2):
            a(f"v_pk_mul_f32 v[{Tt[d]}:{Tt[d]+1}], v[{Tt[d]}:{Tt[d]+1}], v[{U[d]}:{U[d]+1}]")
        for d in range(2):
            a(f"v_exp_f32 v{Tt[d]}, v{Tt[d]}")
            a(f"v_exp_f32 v{Tt[d]+1}, v{Tt[d]+1}")
        for d in range(2):
            a(f"v_pk_add_f32 v[{Tt[d]}:{Tt[d]+1}], v[{Tt[d]}:{Tt[d]+1}], v[76:77]")
        for d in range(2):
            a(f"v_rcp_f32 v{Tt[d]}, v{Tt[d]}")
            a(f"v_rcp_f32 v{Tt[d]+1}, v{Tt[d]+1}")
        for d in range(2):
            a(f"v_pk_mul_f32 v[{Tt[d]}:{Tt[d]+1}], v[{Tt[d]}:{Tt[d]+1}], v[{U[d]}:{U[d]+1}]")
        for d in range(2):
            a(f"v_cvt_pk_bf16_f32 v{C[d]}, v{Tt[d]}, v{Tt[d]+1}")
        for d in range(2):
            a(f"v_dot2_f32_bf16 v{78+d}, v{C[d]}, v{160+i}, v{78+d}")
    a("s_nop 3")
    wave_reduce2(a, "v_add_f32", 78, 84, 79, 85)
    bf16r2(a, 78, 79, 84)
    a("v_add_f32 v78, v78, v174")
    a("v_add_f32 v79, v79, v174")
    bf16r2(a, 78, 79, 84)
    a("v_add_f32 v78, v78, v82")
    a("v_add_f32 v79, v79, v83")
    a("v_cvt_pk_bf16_f32 v78, v78, v79")
    a("s_mul_i32 s6, s96, 896")
    a("s_mul_i32 s7, s97, 28")
    a("s_add_u32 s6, s6, s7")
    a("s_lshl_b32 s7, s3, 2")
    a("s_add_u32 s6, s6, s7")
    a("v_mov_b32 v5, 0")
    a("s_mov_b64 exec, 1")
    a("buffer_store_dword v78, v5, s[76:79], s6 offen")
    if STAMP:
        a("s_cmp_lg_u32 s3, 0")
        a("s_cbranch_scc1 L_done")
        stamp(a, 13)
    a.label("L_done")
    a("s_endpgm")
    a.raw(".section .rodata,\"a\"")
    a.raw(".p2align 6")
    a.raw(f".amdhsa_kernel {n}")
    a.raw("  .amdhsa_next_free_vgpr 256")
    a.raw("  .amdhsa_next_free_sgpr 102")
    a.raw("  .amdhsa_accum_offset 256")
    a.raw("  .amdhsa_group_segment_fixed_size 0")
    a.raw("  .amdhsa_kernarg_size 104")
    a.raw("  .amdhsa_user_sgpr_count 2")
    a.raw("  .amdhsa_user_sgpr_kernarg_segment_ptr 1")
    a.raw("  .amdhsa_system_sgpr_workgroup_id_x 1")
    a.raw(".end_amdhsa_kernel")

def main():
    a = Asm()
    hdr = open("cdna_kernels/%s.s.ref" % NAME).read().split("\n")
    for l in hdr:
        if l.startswith("; @launch"):
            break
        a.raw(l)
    a.raw(f"; @launch grid=(256,1,1) block=(512,1,1) lds={LDS_BYTES}")
    a.raw('.amdgcn_target "amdgcn-amd-amdhsa--gfx950"')
    gen(a)
    out = sys.argv[1] if len(sys.argv) > 1 else OUT
    open(out, "w").write(a.text())

if __name__ == "__main__":
    main()
```

```python
import sys, math, struct, os, re

NAME = "sequential_preLN__gqa_block_cached__mixer_token_mlp__decode"
KNAME = NAME + "_kernel"
OUT = "cdna_kernels/%s.s" % NAME

def f2u(x):
    return struct.unpack("<I", struct.pack("<f", x))[0]

class Asm:
    def __init__(self):
        self.lines = []
    def __call__(self, s):
        for l in s.strip("\n").split("\n"):
            l = l.strip()
            m = re.search(r"offset:(\d+)", l)
            if m and l.startswith("buffer_"):
                assert int(m.group(1)) < 4096, l
            if m and l.startswith("ds_"):
                assert int(m.group(1)) < 65536, l
            self.lines.append("    " + l)
    def label(self, l):
        self.lines.append(l + ":")
    def raw(self, s):
        self.lines.append(s)
    def text(self):
        return "\n".join(self.lines) + "\n"

WS_Q = 0
WS_OP = 0x20000
WS_ML = 0xA0000
WS_P2 = 0xB0000
WS_CNT = 0xE8000
WS_BYTES = 0x400000

LOG2E = 1.4426950408889634
SCALE_C = 0.0625 * LOG2E
NT = os.environ.get("NT", " nt")

MB = 131072
L_WQ = MB
L_XN = MB + 14336
L_QL = MB + 21504
L_WO = MB
L_O = MB + 22528
L_H = MB + 26624
L_T = MB + 28672
L_F = MB + 31744
L_NEXT = MB + 31808
NSTAT = int(os.environ.get("NSTAT", "24"))
LOOK = int(os.environ.get("LOOK", "6"))
DEPTH = int(os.environ.get("DEPTH", "3"))
VX = int(os.environ.get("VX", "0"))
BULK = int(os.environ.get("BULK", "0"))
IPF = int(os.environ.get("IPF", "0"))
LDS_BYTES = 163840

SPIN_MAX = 1 << 18

def srd(a, d, base, nbytes):
    a(f"s_mov_b32 s{d}, s{base}")
    a(f"s_and_b32 s{d+1}, s{base+1}, 0xffff")
    a(f"s_mov_b32 s{d+2}, {nbytes}")
    a(f"s_mov_b32 s{d+3}, 0x00020000")

def wave_reduce(a, op, v, t):
    for ctl in ["quad_perm:[1,0,3,2]", "quad_perm:[2,3,0,1]", "row_half_mirror", "row_mirror"]:
        a("s_nop 1")
        a(f"{op}_dpp v{v}, v{v}, v{v} {ctl} row_mask:0xf bank_mask:0xf")
    group_reduce(a, op, v, t)

def group_reduce(a, op, v, t):
    a(f"v_mov_b32 v{t}, v{v}")
    a("s_nop 1")
    a(f"v_permlane16_swap_b32 v{v}, v{t}")
    a("s_nop 1")
    a(f"{op} v{v}, v{v}, v{t}")
    a(f"v_mov_b32 v{t}, v{v}")
    a("s_nop 1")
    a(f"v_permlane32_swap_b32 v{v}, v{t}")
    a("s_nop 1")
    a(f"{op} v{v}, v{v}, v{t}")

def wave_reduce2(a, op, v, t, w, u):
    for ctl in ["quad_perm:[1,0,3,2]", "quad_perm:[2,3,0,1]", "row_half_mirror", "row_mirror"]:
        a("s_nop 0")
        a(f"{op}_dpp v{v}, v{v}, v{v} {ctl} row_mask:0xf bank_mask:0xf")
        a(f"{op}_dpp v{w}, v{w}, v{w} {ctl} row_mask:0xf bank_mask:0xf")
    for sw in ["v_permlane16_swap_b32", "v_permlane32_swap_b32"]:
        a(f"v_mov_b32 v{t}, v{v}")
        a(f"v_mov_b32 v{u}, v{w}")
        a("s_nop 1")
        a(f"{sw} v{v}, v{t}")
        a(f"{sw} v{w}, v{u}")
        a("s_nop 1")
        a(f"{op} v{v}, v{v}, v{t}")
        a(f"{op} v{w}, v{w}, v{u}")

def bf16r(a, v):
    a(f"v_cvt_pk_bf16_f32 v{v}, v{v}, v{v}")
    a(f"v_and_b32 v{v}, 0xffff0000, v{v}")

def bf16r2(a, v, w, t):
    a(f"v_cvt_pk_bf16_f32 v{t}, v{v}, v{w}")
    a(f"v_lshlrev_b32 v{v}, 16, v{t}")
    a(f"v_and_b32 v{w}, 0xffff0000, v{t}")

def unpack8(a, src, dst):
    for i in range(4):
        a(f"v_lshlrev_b32 v{dst+2*i}, 16, v{src+i}")
        a(f"v_and_b32 v{dst+2*i+1}, 0xffff0000, v{src+i}")

def layernorm8(a, x, t0, t1, t2, smask, t3=35):
    a(f"v_add_f32 v{t0}, v{x}, v{x+1}")
    a(f"v_add_f32 v{t1}, v{x+2}, v{x+3}")
    a(f"v_add_f32 v{t2}, v{x+4}, v{x+5}")
    a(f"v_add_f32 v{t3}, v{x+6}, v{x+7}")
    a(f"v_add_f32 v{t0}, v{t0}, v{t1}")
    a(f"v_add_f32 v{t2}, v{t2}, v{t3}")
    a(f"v_add_f32 v{t0}, v{t0}, v{t2}")
    wave_reduce(a, "v_add_f32", t0, t1)
    a(f"v_mul_f32 v{t0}, {hex(f2u(1.0/448))}, v{t0}")
    a(f"v_sub_f32 v{t2}, v{x}, v{t0}")
    a(f"v_sub_f32 v{t3}, v{x+1}, v{t0}")
    a(f"v_mul_f32 v{t1}, v{t2}, v{t2}")
    a(f"v_mul_f32 v{t3}, v{t3}, v{t3}")
    for i in range(2, 8, 2):
        a(f"v_sub_f32 v{t2}, v{x+i}, v{t0}")
        a(f"v_fmac_f32 v{t1}, v{t2}, v{t2}")
        a(f"v_sub_f32 v{t2}, v{x+i+1}, v{t0}")
        a(f"v_fmac_f32 v{t3}, v{t2}, v{t2}")
    a(f"v_add_f32 v{t1}, v{t1}, v{t3}")
    a(f"v_cndmask_b32 v{t1}, 0, v{t1}, s[{smask}:{smask+1}]")
    wave_reduce(a, "v_add_f32", t1, t2)
    a(f"v_mul_f32 v{t1}, {hex(f2u(1.0/448))}, v{t1}")
    bf16r(a, t1)
    a(f"v_add_f32 v{t1}, {hex(f2u(1e-5))}, v{t1}")
    bf16r(a, t1)
    a(f"v_sqrt_f32 v{t1}, v{t1}")
    bf16r(a, t0)
    bf16r(a, t1)
    a(f"v_rcp_f32 v{t1}, v{t1}")
    for i in range(0, 8, 2):
        a(f"v_sub_f32 v{x+i}, v{x+i}, v{t0}")
        a(f"v_sub_f32 v{x+i+1}, v{x+i+1}, v{t0}")
        bf16r2(a, x+i, x+i+1, t2)
    for i in range(0, 8, 2):
        a(f"v_mul_f32 v{x+i}, v{x+i}, v{t1}")
        a(f"v_mul_f32 v{x+i+1}, v{x+i+1}, v{t1}")
        bf16r2(a, x+i, x+i+1, t2)

def layernorm8x2(a, x, y, tx, ty, smask):
    t0, t1, t2 = tx; u0, u1, u2 = ty
    a(f"v_add_f32 v{t0}, v{x}, v{x+1}")
    a(f"v_add_f32 v{u0}, v{y}, v{y+1}")
    for i in range(2, 8):
        a(f"v_add_f32 v{t0}, v{t0}, v{x+i}")
        a(f"v_add_f32 v{u0}, v{u0}, v{y+i}")
    wave_reduce2(a, "v_add_f32", t0, t1, u0, u1)
    a(f"v_mul_f32 v{t0}, {hex(f2u(1.0/448))}, v{t0}")
    a(f"v_mul_f32 v{u0}, {hex(f2u(1.0/448))}, v{u0}")
    for i in range(8):
        a(f"v_sub_f32 v{t2}, v{x+i}, v{t0}")
        a(f"v_sub_f32 v{u2}, v{y+i}, v{u0}")
        if i == 0:
            a(f"v_mul_f32 v{t1}, v{t2}, v{t2}")
            a(f"v_mul_f32 v{u1}, v{u2}, v{u2}")
        else:
            a(f"v_fmac_f32 v{t1}, v{t2}, v{t2}")
            a(f"v_fmac_f32 v{u1}, v{u2}, v{u2}")
    a(f"v_cndmask_b32 v{t1}, 0, v{t1}, s[{smask}:{smask+1}]")
    a(f"v_cndmask_b32 v{u1}, 0, v{u1}, s[{smask}:{smask+1}]")
    wave_reduce2(a, "v_add_f32", t1, t2, u1, u2)
    a(f"v_mul_f32 v{t1}, {hex(f2u(1.0/448))}, v{t1}")
    a(f"v_mul_f32 v{u1}, {hex(f2u(1.0/448))}, v{u1}")
    bf16r2(a, t1, u1, t2)
    a(f"v_add_f32 v{t1}, {hex(f2u(1e-5))}, v{t1}")
    a(f"v_add_f32 v{u1}, {hex(f2u(1e-5))}, v{u1}")
    bf16r2(a, t1, u1, t2)
    a(f"v_sqrt_f32 v{t1}, v{t1}")
    a(f"v_sqrt_f32 v{u1}, v{u1}")
    a("s_nop 0")
    bf16r2(a, t1, u1, t2)
    a(f"v_rcp_f32 v{t1}, v{t1}")
    a(f"v_rcp_f32 v{u1}, v{u1}")
    bf16r2(a, t0, u0, t2)
    for (z, m, r_) in ((x, t0, t1), (y, u0, u1)):
        for i in range(0, 8, 2):
            a(f"v_sub_f32 v{z+i}, v{z+i}, v{m}")
            a(f"v_sub_f32 v{z+i+1}, v{z+i+1}, v{m}")
            bf16r2(a, z+i, z+i+1, t2)
            a(f"v_mul_f32 v{z+i}, v{z+i}, v{r_}")
            a(f"v_mul_f32 v{z+i+1}, v{z+i+1}, v{r_}")

def pack8(a, x, dst):
    for i in range(4):
        a(f"v_cvt_pk_bf16_f32 v{dst+i}, v{x+2*i}, v{x+2*i+1}")

def anysent(a, regs, t):
    regs = list(regs)
    a(f"v_max_u32 v{t}, v{regs[0]}, v{regs[1]}")
    i = 2
    while i < len(regs):
        if i + 1 < len(regs):
            a(f"v_max3_u32 v{t}, v{t}, v{regs[i]}, v{regs[i+1]}")
            i += 2
        else:
            a(f"v_max_u32 v{t}, v{t}, v{regs[i]}")
            i += 1

QF = 16; OA = 64; KF = 128; VF = 160; KOFF = 192; VOFF = 200; KRA = 208; VRA = 212
SA = 220; PB = 224; M = 226; L = 227; AL = 228; T0 = 229; T1 = 230; T2 = 231

STAMP = int(os.environ.get("STAMP", "0"))
PRE = int(os.environ.get("PRE", "2"))
LATE0 = int(os.environ.get("LATE0", "0"))
MAP = int(os.environ.get("MAP", "1"))
def stamp(a, idx, va=233, vb=234):
    if not STAMP: return
    a("s_memrealtime s[42:43]")
    a("s_waitcnt lgkmcnt(0)")
    a(f"v_mov_b32 v{va}, s42")
    a("s_lshl_b32 s42, s2, 7")
    a(f"s_add_u32 s42, s42, {0x200000 + idx*4}")
    a(f"v_mov_b32 v{vb}, 0")
    a("s_mov_b64 exec, 1")
    a(f"buffer_store_dword v{va}, v{vb}, s[52:55], s42 offen")
    a("s_mov_b64 exec, s[58:59]")

def gen(a):
    n = KNAME
    a.raw(".text")
    a.raw(f".globl {n}")
    a.raw(".p2align 8")
    a.raw(f".type {n},@function")
    a.label(n)
    a("s_cmp_ge_u32 s2, 256")
    a("s_cbranch_scc1 L_done")
    a("s_load_dwordx16 s[16:31], s[0:1], 0")
    a("s_load_dwordx8 s[32:39], s[0:1], 64")
    a("s_load_dwordx2 s[40:41], s[0:1], 96")
    a("v_lshrrev_b32 v1, 6, v0")
    a("v_and_b32 v2, 63, v0")
    a("v_and_b32 v3, 15, v2")
    a("v_readfirstlane_b32 s3, v1")
    a("v_lshrrev_b32 v4, 4, v2")
    if MAP == 0:
        a("s_and_b32 s4, s2, 7")
        a("s_lshr_b32 s5, s2, 3")
    else:
        a("s_lshr_b32 s4, s2, 5")
        a("s_and_b32 s5, s2, 31")
    a("s_lshr_b32 s96, s5, 2")
    a("s_and_b32 s97, s5, 3")
    a("s_lshl_b32 s98, s4, 5")
    a("s_add_u32 s98, s98, s5")
    a("v_cmp_gt_u32 s[56:57], 56, v2")
    a("s_mov_b64 s[58:59], exec")
    a("s_waitcnt lgkmcnt(0)")
    srd(a, 44, 18, 0x10000000)
    srd(a, 48, 20, 0x10000000)
    srd(a, 52, 40, WS_BYTES)
    srd(a, 60, 16, 7168)
    srd(a, 64, 22, 448*4096*2)
    srd(a, 68, 24, 4096*448*2)
    srd(a, 72, 38, 256)
    srd(a, 76, 36, 7168)
    srd(a, 80, 28, 3584)
    srd(a, 84, 30, 3584)
    srd(a, 88, 32, 3584)
    srd(a, 92, 34, 4)
    a("s_and_b32 s38, s5, 7")
    a("s_lshl_b32 s38, s38, 2")
    a("s_lshr_b32 s39, s5, 3")
    a("s_add_u32 s38, s38, s39")
    a("s_lshl_b32 s39, s4, 5")
    a("s_add_u32 s39, s39, s38")
    a("s_cmp_ge_u32 s3, 4")
    a("s_cbranch_scc1 L_helpers")

    if STAMP:
        a("s_cmp_lg_u32 s3, 0")
        a("s_cbranch_scc1 L_st0")
        stamp(a, 0)
        a.label("L_st0")
    a("v_lshrrev_b32 v7, 5, v2")
    a("v_and_b32 v8, 31, v2")
    for p in range(8):
        a(f"v_add_u32 v5, {2*p}, v7")
        a("v_xor_b32 v6, v8, v5")
        a("v_lshlrev_b32 v6, 4, v6")
        a(f"v_lshl_add_u32 v{KOFF+p}, v7, 9, v6")
        a(f"v_add_u32 v{KOFF+p}, {p*4096-(p&3)*1024}, v{KOFF+p}")
        a("v_and_b32 v5, 7, v5")
        a("v_lshlrev_b32 v5, 1, v5")
        a("v_xor_b32 v6, v8, v5")
        a("v_lshlrev_b32 v6, 4, v6")
        a(f"v_lshl_add_u32 v{VOFF+p}, v7, 9, v6")
        a(f"v_add_u32 v{VOFF+p}, {p*4096-(p&3)*1024}, v{VOFF+p}")
    a("s_lshl_b32 s8, s3, 15")
    a("s_lshl_b32 s20, s96, 3")
    a("s_add_u32 s20, s20, s4")
    a("s_lshl_b32 s20, s20, 22")
    a("s_lshl_b32 s6, s3, 10")
    a("s_add_u32 s20, s20, s6")
    a(f"s_mul_i32 s6, s97, {NSTAT*32768}")
    a("s_add_u32 s9, s20, s6")

    def issue(kind, slot):
        srd_ = "s[44:47]" if kind == "K" else "s[48:51]"
        so = "s9"
        off = KOFF if kind == "K" else VOFF
        a(f"s_add_u32 s11, s8, {slot*8192}")
        a("s_mov_b32 m0, s11")
        a(f"s_add_u32 s12, s8, {slot*8192+4096}")
        for p in range(4):
            a(f"buffer_load_dwordx4 v{off+p}, {srd_}, {so} offen offset:{p*1024}{NT} lds")
        a("s_mov_b32 m0, s12")
        a("s_nop 0")
        for p in range(4):
            a(f"buffer_load_dwordx4 v{off+4+p}, {srd_}, {so} offen offset:{p*1024}{NT} lds")

    def ldsspin(word, target, lab):
        a(f"v_mov_b32 v5, {L_F + word*4}")
        a.label(lab)
        a("ds_read_b32 v6, v5")
        a("s_waitcnt lgkmcnt(0)")
        a("v_readfirstlane_b32 s6, v6")
        a(f"s_cmp_ge_u32 s6, {target}")
        a(f"s_cbranch_scc1 {lab}_d")
        a("s_sleep 1")
        a(f"s_branch {lab}")
        a.label(lab + "_d")

    units = [("K", 0), ("V", 1), ("K", 2), ("V", 3)]
    a("s_barrier")
    assert PRE == 2
    for u in units[:2]: issue(*u)
    a("s_add_u32 s9, s9, 32768")
    for jj in range(4):
        a(f"v_add_u32 v5, {4*jj}, v4")
        a("v_xor_b32 v5, v5, v3")
        a("v_lshlrev_b32 v5, 4, v5")
        a(f"v_lshl_add_u32 v5, v3, 9, v5")
        a(f"v_add_u32 v{KRA+jj}, s8, v5")
    a("v_bfe_u32 v5, v2, 2, 2")
    a("v_lshl_add_u32 v5, v4, 2, v5")
    a("v_and_b32 v6, 7, v5")
    a("v_and_b32 v7, 3, v2")
    a("v_lshlrev_b32 v7, 3, v7")
    a("v_lshl_add_u32 v7, v5, 9, v7")
    a("v_add_u32 v7, s8, v7")
    for nn in range(8):
        a(f"v_xor_b32 v5, {nn}, v6")
        a(f"v_lshl_add_u32 v{VRA+nn}, v5, 5, v7")
    for i in range(64):
        a(f"v_mov_b32 v{OA+i}, 0")
    a(f"v_mov_b32 v{M}, 0xf149f2ca")
    a(f"v_mov_b32 v{L}, 0")
    a(f"s_mov_b32 s14, {hex(f2u(SCALE_C))}")
    if PRE < 4:
        ldsspin(1, 1, "L_spin1")
        for u in units[PRE:]: issue(*u)
    ldsspin(2, 1, "L_spin2")
    a("v_and_b32 v5, 1, v2")
    a("v_lshlrev_b32 v5, 9, v5")
    a("v_lshl_add_u32 v5, v4, 4, v5")
    a(f"v_add_u32 v5, {L_QL}, v5")
    for j in range(8):
        a(f"ds_read_b128 v[{QF+4*j}:{QF+4*j+3}], v5 offset:{j*64}")
    a("s_waitcnt lgkmcnt(0)")
    a(f"v_mov_b32 v235, {L_NEXT+8}")
    a(f"v_mov_b32 v238, {L_F+12}")

    def step(kslot, vslot, do_issue, wk, wv, tag):
        a("s_cmp_eq_u32 s15, 1000")
        a(f"s_cbranch_scc1 L_wk_{tag}")
        a("s_waitcnt vmcnt(0)")
        a.label(f"L_wk_{tag}")
        a(f"s_waitcnt vmcnt({wk})")
        a("v_mov_b32 v237, s13")
        a("ds_read_b32 v236, v235")
        if VX != 2: a("ds_write_b32 v238, v237")
        for j in range(8):
            a(f"ds_read_b128 v[{KF+4*j}:{KF+4*j+3}], v{KRA+(j&3)} offset:{kslot*8192 + (j>>2)*256}")
        for j in range(8):
            a(f"s_waitcnt lgkmcnt({7-j})")
            c = "0" if j == 0 else f"v[{SA}:{SA+3}]"
            a(f"v_mfma_f32_16x16x32_bf16 v[{SA}:{SA+3}], v[{KF+4*j}:{KF+4*j+3}], v[{QF+4*j}:{QF+4*j+3}], {c}")
        a("v_readfirstlane_b32 s6, v236")
        a("s_cmp_lg_u32 s6, -1")
        a(f"s_cbranch_scc1 L_nx_{tag}")
        a.label(f"L_nxs_{tag}")
        a("s_sleep 1")
        a("ds_read_b32 v236, v235")
        a("s_waitcnt lgkmcnt(0)")
        a("v_readfirstlane_b32 s6, v236")
        a("s_cmp_eq_u32 s6, -1")
        a(f"s_cbranch_scc1 L_nxs_{tag}")
        a.label(f"L_nx_{tag}")
        a("v_add_u32 v235, 4, v235")
        a("s_lshl_b32 s7, s6, 15")
        a("s_add_u32 s9, s20, s7")
        a("s_add_u32 s7, s13, 2")
        a("s_min_u32 s7, s7, s15")
        a("s_cmp_ge_u32 s6, 128")
        a("s_cselect_b32 s15, s7, s15")
        a(f"s_cbranch_scc1 L_noik_{tag}")
        issue("K", kslot)
        a.label(f"L_noik_{tag}")
        a("s_nop 3")
        a(f"v_cvt_pk_bf16_f32 v{T0}, v{SA}, v{SA+1}")
        a(f"v_cvt_pk_bf16_f32 v{T1}, v{SA+2}, v{SA+3}")
        a(f"v_lshlrev_b32 v{SA}, 16, v{T0}")
        a(f"v_and_b32 v{SA+1}, 0xffff0000, v{T0}")
        a(f"v_lshlrev_b32 v{SA+2}, 16, v{T1}")
        a(f"v_and_b32 v{SA+3}, 0xffff0000, v{T1}")
        a(f"v_max3_f32 v{T0}, v{SA}, v{SA+1}, v{SA+2}")
        a(f"v_max_f32 v{T0}, v{T0}, v{SA+3}")
        group_reduce(a, "v_max_f32", T0, T1)
        a(f"v_mul_f32 v{T0}, s14, v{T0}")
        a(f"v_max_f32 v{T0}, v{T0}, v{M}")
        a(f"v_sub_f32 v{AL}, v{M}, v{T0}")
        a(f"v_exp_f32 v{AL}, v{AL}")
        a(f"v_mov_b32 v{M}, v{T0}")
        for r in range(4):
            a(f"v_fma_f32 v{SA+r}, v{SA+r}, s14, -v{T0}")
        for r in range(4):
            a(f"v_exp_f32 v{SA+r}, v{SA+r}")
        a(f"v_cmp_neq_f32 vcc, 1.0, v{AL}")
        a(f"v_cvt_pk_bf16_f32 v{PB}, v{SA}, v{SA+1}")
        a(f"v_cvt_pk_bf16_f32 v{PB+1}, v{SA+2}, v{SA+3}")
        a(f"v_add_f32 v{T1}, v{SA}, v{SA+1}")
        a(f"v_add_f32 v{T2}, v{SA+2}, v{SA+3}")
        a(f"v_add_f32 v{T1}, v{T1}, v{T2}")
        a(f"v_fma_f32 v{L}, v{L}, v{AL}, v{T1}")
        a(f"s_cbranch_vccz L_nors_{tag}")
        for i in range(64):
            a(f"v_mul_f32 v{OA+i}, v{OA+i}, v{AL}")
        a.label(f"L_nors_{tag}")
        a("s_cmp_eq_u32 s15, 1000")
        a(f"s_cbranch_scc1 L_wv_{tag}")
        a("s_waitcnt vmcnt(0)")
        a.label(f"L_wv_{tag}")
        a(f"s_waitcnt vmcnt({wv})")
        for nn in range(16):
            a(f"ds_read_b64_tr_b16 v[{VF+2*nn}:{VF+2*nn+1}], v{VRA+(nn&7)} offset:{vslot*8192 + (nn>>3)*256}")
        for nn in range(16):
            a(f"s_waitcnt lgkmcnt({15-nn})")
            a(f"v_mfma_f32_16x16x16_bf16 v[{OA+4*nn}:{OA+4*nn+3}], v[{VF+2*nn}:{VF+2*nn+1}], v[{PB}:{PB+1}], v[{OA+4*nn}:{OA+4*nn+3}]")
        a("s_cmp_lg_u32 s15, 1000")
        a(f"s_cbranch_scc1 L_noiv_{tag}")
        issue("V", vslot)
        a.label(f"L_noiv_{tag}")

    a("s_mov_b32 s13, 0")
    a("s_mov_b32 s15, 1000")
    a.label("L_loop")
    step(0, 1, True, 24, 24, "a")
    a("s_add_u32 s13, s13, 1")
    a("s_cmp_ge_u32 s13, s15")
    a("s_cbranch_scc1 L_loop_done")
    step(2, 3, True, 24, 24, "b")
    a("s_add_u32 s13, s13, 1")
    a("s_cmp_lt_u32 s13, s15")
    a("s_cbranch_scc1 L_loop")
    a.label("L_loop_done")
    a("s_waitcnt vmcnt(0)")
    if STAMP:
        a("s_cmp_lg_u32 s3, 0")
        a("s_cbranch_scc1 L_st6")
        stamp(a, 6)
        a.label("L_st6")
    group_reduce(a, "v_add_f32", L, T1)
    a("s_nop 7")
    a("v_cmp_gt_u32 vcc, 2, v3")
    a("v_lshlrev_b32 v5, 10, v3")
    a("v_lshl_add_u32 v5, v4, 4, v5")
    a("v_add_u32 v5, s8, v5")
    a("s_and_b64 exec, exec, vcc")
    for nn in range(16):
        a(f"ds_write_b128 v5, v[{OA+4*nn}:{OA+4*nn+3}] offset:{nn*64}")
    a("v_cmp_gt_u32 vcc, 2, v2")
    a("v_lshlrev_b32 v5, 3, v2")
    a("v_add_u32 v5, s8, v5")
    a("s_and_b64 exec, exec, vcc")
    a(f"ds_write_b64 v5, v[{M}:{M+1}] offset:2048")
    a("s_mov_b64 exec, s[58:59]")
    a("s_waitcnt lgkmcnt(0)")
    a("s_barrier")
    a("v_lshrrev_b32 v5, 7, v0")
    a("v_lshlrev_b32 v6, 3, v5")
    a("v_lshlrev_b32 v7, 3, v0")
    a("v_add_u32 v9, 0x10000, v6")
    a("v_add_u32 v10, 0x10000, v7")
    for w in range(4):
        a(f"ds_read_b64 v[{16+2*w}:{17+2*w}], v{6 if w<2 else 9} offset:{(w&1)*32768+2048}")
        a(f"ds_read_b64 v[{24+2*w}:{25+2*w}], v{7 if w<2 else 10} offset:{(w&1)*32768}")
    a("s_waitcnt lgkmcnt(0)")
    a("v_max_f32 v32, v16, v18")
    a("v_max3_f32 v32, v32, v20, v22")
    for w in range(4):
        a(f"v_sub_f32 v{16+2*w}, v{16+2*w}, v32")
        a(f"v_exp_f32 v{16+2*w}, v{16+2*w}")
    a("s_nop 0")
    a("v_mul_f32 v33, v16, v17")
    a("v_mul_f32 v34, v16, v24")
    a("v_mul_f32 v35, v16, v25")
    for w in range(1, 4):
        a(f"v_fmac_f32 v33, v{16+2*w}, v{17+2*w}")
        a(f"v_fmac_f32 v34, v{16+2*w}, v{24+2*w}")
        a(f"v_fmac_f32 v35, v{16+2*w}, v{25+2*w}")
    a("s_lshl_b32 s6, s98, 11")
    a(f"s_add_u32 s6, s6, {WS_OP}")
    a("buffer_store_dwordx2 v[34:35], v7, s[52:55], s6 offen sc1")
    a("v_and_b32 v8, 127, v0")
    a("v_cmp_gt_u32 vcc, 16, v8")
    a("v_lshlrev_b32 v8, 3, v8")
    a("v_lshl_add_u32 v8, v5, 7, v8")
    a("s_lshl_b32 s6, s98, 8")
    a(f"s_add_u32 s6, s6, {WS_ML}")
    a("s_and_b64 exec, exec, vcc")
    a("s_cbranch_execz L_noml")
    a("buffer_store_dwordx2 v[32:33], v8, s[52:55], s6 offen sc1")
    a.label("L_noml")
    a("s_mov_b64 exec, s[58:59]")
    a("s_branch L_tail")

    a.label("L_helpers")
    a("s_memrealtime s[16:17]")
    a("v_lshlrev_b32 v5, 4, v2")
    a("v_mov_b32 v6, 0x7fff0000")
    a("v_cndmask_b32 v5, v6, v5, s[56:57]")
    a("s_sub_u32 s6, s3, 4")
    a("s_mul_i32 s15, s6, 1792")
    a("buffer_load_dwordx4 v[8:11], v5, s[60:63], s15 offen")
    a("buffer_load_dwordx4 v[12:15], v5, s[60:63], s15 offen offset:896")
    a("s_cmp_ge_u32 s38, 14")
    a("s_cselect_b32 s99, 1, 0")
    a("s_mul_i32 s6, s99, 14")
    a("s_sub_u32 s100, s38, s6")
    a("s_lshl_b32 s101, s4, 1")
    a("s_add_u32 s101, s101, s99")
    a("s_cmp_lg_u32 s3, 4")
    a("s_cbranch_scc1 L_h_not4")
    a("v_lshrrev_b32 v5, 1, v2")
    a("v_lshlrev_b32 v5, 13, v5")
    a("v_and_b32 v6, 1, v2")
    a("v_lshl_add_u32 v5, v6, 4, v5")
    a("s_lshl_b32 s6, s39, 5")
    a(f"s_mov_b32 s7, {L_WQ}")
    for p in range(14):
        a("s_mov_b32 m0, s7")
        a("s_add_u32 s7, s7, 1024")
        a("buffer_load_dwordx4 v5, s[64:67], s6 offen lds")
        a("s_add_u32 s6, s6, 0x40000")
    a(f"v_mov_b32 v5, {L_F}")
    for i in range(4):
        a(f"v_mov_b32 v{16+i}, 0")
    a("ds_write_b128 v5, v[16:19]")
    a(f"s_mul_i32 s6, s97, {NSTAT}")
    a("v_add_u32 v16, s6, v2")
    a(f"v_cmp_gt_u32 vcc, {NSTAT}, v2")
    a("v_lshlrev_b32 v5, 2, v2")
    a(f"v_add_u32 v5, {L_NEXT}, v5")
    a("v_cndmask_b32 v16, -1, v16, vcc")
    if VX: a("v_add_u32 v16, s6, v2")
    if VX: a("v_max_u32 v16, v16, v16")
    if VX: a(f"v_mov_b32 v17, 0x1000")
    if VX: a("v_cndmask_b32 v16, v17, v16, vcc")
    a("v_mov_b32 v17, -1")
    a("ds_write_b32 v5, v16")
    a("ds_write_b32 v5, v17 offset:256")
    a("s_branch L_h_bar0")
    a.label("L_h_not4")
    a("s_cmp_lg_u32 s3, 6")
    a("s_cbranch_scc1 L_h_bar0")
    a("s_cmp_lg_u32 s97, 0")
    a("s_cbranch_scc1 L_nocinit")
    a("s_lshl_b32 s6, s4, 3")
    a("s_add_u32 s6, s6, s96")
    a("s_lshl_b32 s6, s6, 8")
    a(f"s_add_u32 s6, s6, {WS_CNT}")
    a("s_waitcnt lgkmcnt(0)")
    a("s_lshr_b64 s[18:19], s[16:17], 2")
    a("s_and_b32 s7, s18, 0xffffff00")
    a("v_mov_b32 v16, s7")
    a("v_mov_b32 v17, 0")
    a("s_mov_b64 exec, 1")
    a("buffer_store_dword v16, v17, s[52:55], s6 offen sc1")
    a("s_mov_b64 exec, s[58:59]")
    a.label("L_nocinit")
    a.label("L_h_bar0")
    a("s_waitcnt lgkmcnt(0)")
    if not LATE0: a("s_barrier")
    a("s_lshr_b64 s[16:17], s[16:17], 10")
    a("s_cmp_eq_u32 s3, 4")
    a("s_cbranch_scc1 L_h_w14")
    a("s_cmp_eq_u32 s3, 6")
    a("s_cbranch_scc1 L_h_w3")
    a("s_waitcnt vmcnt(0)")
    a("s_branch L_h_ln")
    a.label("L_h_w14")
    a(f"s_waitcnt vmcnt({0 if LATE0 else 14})")
    a("s_branch L_h_ln")
    a.label("L_h_w3")
    a("s_waitcnt vmcnt(1)")
    a("s_cmp_eq_u32 s97, 0")
    a("s_cbranch_scc1 L_h_ln")
    a("s_waitcnt vmcnt(0)")
    a.label("L_h_ln")
    if LATE0: a("s_barrier")
    unpack8(a, 8, 16)
    unpack8(a, 12, 24)
    layernorm8x2(a, 16, 24, (32, 33, 34), (35, 36, 37), 56)
    pack8(a, 16, 8)
    pack8(a, 24, 12)
    a("v_lshlrev_b32 v5, 4, v2")
    a(f"s_add_u32 s6, s15, {L_XN}")
    a("v_add_u32 v5, s6, v5")
    a("s_mov_b64 exec, s[56:57]")
    a("ds_write_b128 v5, v[8:11]")
    a("ds_write_b128 v5, v[12:15] offset:896")
    a("s_mov_b64 exec, 1")
    a(f"v_mov_b32 v5, {L_F}")
    a("v_mov_b32 v6, 1")
    a("s_waitcnt lgkmcnt(0)")
    a("ds_add_u32 v5, v6")
    a("s_mov_b64 exec, s[58:59]")
    a("s_lshl_b32 s7, s4, 5")
    a("v_mov_b32 v9, s7")
    a("v_mov_b32 v8, 1")
    a("s_cmp_eq_u32 s3, 4")
    a("s_cbranch_scc1 L_service")
    a("s_cmp_eq_u32 s3, 5")
    a("s_cbranch_scc1 L_w5")
    if IPF:
        a("s_cmp_lg_u32 s3, 7")
        a("s_cbranch_scc1 L_not7")
        assert IPF < NSTAT
        a(f"v_mov_b32 v5, {L_F+12}")
        a("s_mov_b32 s13, 0")
        a.label("L_w7s")
        a("s_sleep 32")
        a("ds_read_b32 v6, v5")
        a("s_add_u32 s13, s13, 1")
        a("s_waitcnt lgkmcnt(0)")
        a("v_readfirstlane_b32 s6, v6")
        a("s_cmp_ge_u32 s13, 0x10000")
        a("s_cbranch_scc1 L_w7s_d")
        a(f"s_cmp_lt_u32 s6, {IPF}")
        a("s_cbranch_scc1 L_w7s")
        a.label("L_w7s_d")
        a("s_getpc_b64 s[36:37]")
        a.label("L_pc0")
        a("s_add_u32 s36, s36, L_loop_done-L_pc0")
        a("s_addc_u32 s37, s37, -1")
        a("s_mov_b32 s6, 0")
        a.label("L_pf1")
        a("s_load_dwordx16 s[20:35], s[36:37], s6")
        a("s_add_u32 s6, s6, 64")
        a("s_cmp_lt_u32 s6, L_helpers-L_loop_done")
        a("s_cbranch_scc1 L_pf1")
        a("s_waitcnt lgkmcnt(0)")
        a("s_getpc_b64 s[36:37]")
        a.label("L_pc1")
        a("s_add_u32 s36, s36, L_tail-L_pc1")
        a("s_addc_u32 s37, s37, 0")
        a("s_mov_b32 s6, 0")
        a.label("L_pf2")
        a("s_load_dwordx16 s[20:35], s[36:37], s6")
        a("s_add_u32 s6, s6, 64")
        a("s_cmp_lt_u32 s6, L_done-L_tail")
        a("s_cbranch_scc1 L_pf2")
        a("s_waitcnt lgkmcnt(0)")
        a("s_branch L_h_bar3")
        a.label("L_not7")
    a("s_cmp_lg_u32 s3, 6")
    a("s_cbranch_scc1 L_h_bar3")
    if VX == 4: a("s_branch L_h_bar3")
    for i in range(4):
        a(f"v_mov_b32 v{16+i}, -1")
    a("v_lshlrev_b32 v6, 4, v2")
    a("s_lshl_b32 s6, s98, 11")
    a(f"s_add_u32 s6, s6, {WS_OP}")
    a("buffer_store_dwordx4 v[16:19], v6, s[52:55], s6 offen sc1")
    a("buffer_store_dwordx4 v[16:19], v6, s[52:55], s6 offen offset:1024 sc1")
    a("s_lshl_b32 s6, s98, 8")
    a(f"s_add_u32 s6, s6, {WS_ML}")
    a("s_mov_b64 exec, 0xffff")
    a("buffer_store_dwordx4 v[16:19], v6, s[52:55], s6 offen sc1")
    a("s_mov_b64 exec, s[58:59]")
    a("s_cmp_ge_u32 s38, 28")
    a("s_cbranch_scc1 L_clr_done")
    a("s_lshl_b32 s6, s4, 1")
    a("s_mul_i32 s6, s6, 14")
    a("s_add_u32 s6, s6, s38")
    a("s_lshl_b32 s6, s6, 10")
    a(f"s_add_u32 s6, s6, {WS_P2}")
    a("buffer_store_dwordx4 v[16:19], v6, s[52:55], s6 offen sc1")
    a.label("L_clr_done")
    a("s_mov_b64 exec, 1")
    a("s_waitcnt vmcnt(0)")
    a("buffer_atomic_add v8, v9, s[72:75], 0 offen sc1")
    a("s_mov_b64 exec, s[58:59]")
    a("s_branch L_h_bar3")
    a.label("L_w5")
    a(f"v_mov_b32 v5, {L_F+12}")
    a("s_mov_b32 s13, 0")
    a.label("L_w5s")
    a("s_sleep 32")
    a("ds_read_b32 v6, v5")
    a("s_add_u32 s13, s13, 1")
    a("s_waitcnt lgkmcnt(0)")
    a("v_readfirstlane_b32 s6, v6")
    a("s_cmp_ge_u32 s13, 0x10000")
    a("s_cbranch_scc1 L_w5s_d")
    a(f"s_cmp_lt_u32 s6, {min(20, NSTAT-2)}")
    a("s_cbranch_scc1 L_w5s")
    a.label("L_w5s_d")
    a("v_lshlrev_b32 v9, 5, v2")
    a("v_cmp_gt_u32 vcc, 8, v2")
    a("s_mov_b32 s13, 0")
    a("s_and_b64 exec, exec, vcc")
    a.label("L_pollall")
    a("buffer_load_dword v10, v9, s[72:75], 0 offen sc1")
    a("s_add_u32 s13, s13, 1")
    a("s_waitcnt vmcnt(0)")
    a("v_cmp_gt_u32 vcc, 64, v10")
    a(f"s_cmp_ge_u32 s13, {SPIN_MAX}")
    a("s_cbranch_scc1 L_pollall_done")
    a("s_cbranch_vccz L_pollall_done")
    a("s_sleep 64")
    a("s_branch L_pollall")
    a.label("L_pollall_done")
    a("s_mov_b64 exec, s[58:59]")
    stamp(a, 12, 236, 237)
    a.label("L_h_bar3")
    a("s_barrier")
    a("s_branch L_tail")

    a.label("L_service")
    a("v_bfe_u32 v6, v2, 2, 2")
    a("v_lshl_add_u32 v6, v4, 3, v6")
    a("v_lshlrev_b32 v6, 5, v6")
    a("v_and_b32 v7, 3, v2")
    a("v_lshl_add_u32 v6, v7, 3, v6")
    a(f"v_add_u32 v10, {L_WQ}, v6")
    a("v_and_b32 v7, 7, v2")
    a("v_mul_u32_u24 v7, 896, v7")
    a("v_lshl_add_u32 v7, v4, 4, v7")
    a(f"v_add_u32 v7, {L_XN}, v7")
    a("s_waitcnt vmcnt(0)")
    stamp(a, 1, 236, 237)
    for j in range(14):
        a(f"ds_read_b64_tr_b16 v[{40+4*j}:{41+4*j}], v10 offset:{j*1024}")
        a(f"ds_read_b64_tr_b16 v[{42+4*j}:{43+4*j}], v10 offset:{j*1024+128}")
    ldsspin(0, 4, "L_spin0")
    stamp(a, 2, 236, 237)
    for j in range(14):
        a(f"ds_read_b128 v[{100+4*j}:{103+4*j}], v7 offset:{j*64}")
    for j in range(14):
        a(f"s_waitcnt lgkmcnt({13-j})")
        c = "0" if j == 0 else "v[32:35]"
        a(f"v_mfma_f32_16x16x32_bf16 v[32:35], v[{40+4*j}:{43+4*j}], v[{100+4*j}:{103+4*j}], {c}")
    a("v_cmp_gt_u32 vcc, 8, v3")
    a("v_lshlrev_b32 v5, 6, v3")
    a("v_lshl_add_u32 v5, v4, 4, v5")
    a("s_lshl_b32 s6, s39, 9")
    a("v_mov_b32 v37, s16")
    a("v_mov_b32 v39, s16")
    a(f"v_mov_b32 v6, {L_F+4}")
    a("s_sub_u32 s17, s16, 2")
    a("s_nop 1")
    a("v_cvt_pk_bf16_f32 v36, v32, v33")
    a("v_cvt_pk_bf16_f32 v38, v34, v35")
    a("s_and_b64 exec, exec, vcc")
    a(f"buffer_store_dwordx4 v[36:39], v5, s[52:55], s6 offen offset:{WS_Q} sc1")
    a("s_mov_b64 exec, 1")
    a("ds_write_b32 v6, v8")
    a("s_mov_b64 exec, s[58:59]")
    stamp(a, 3, 236, 237)
    a("v_lshrrev_b32 v5, 1, v2")
    a("v_lshlrev_b32 v5, 9, v5")
    a("v_and_b32 v6, 1, v2")
    a("v_lshl_add_u32 v5, v6, 5, v5")
    a("s_lshl_b32 s6, s96, 6")
    a("s_lshl_b32 s7, s4, 14")
    a("s_add_u32 s15, s6, s7")
    a("s_mov_b32 s13, 0")
    a.label("L_pollq")
    a(f"buffer_load_dwordx4 v[12:15], v5, s[52:55], s15 offen offset:{WS_Q} sc1")
    a(f"buffer_load_dwordx4 v[16:19], v5, s[52:55], s15 offen offset:{WS_Q+16} sc1")
    a("s_waitcnt vmcnt(0)")
    a("s_cmp_lg_u32 s13, 2047")
    a("s_cbranch_scc1 L_pq_noat")
    a("s_mov_b64 exec, 1")
    a("buffer_atomic_add v8, v9, s[72:75], 0 offen sc1")
    a("s_mov_b64 exec, s[58:59]")
    a.label("L_pq_noat")
    a("s_add_u32 s13, s13, 1")
    a("v_subrev_u32 v20, s17, v13")
    a("v_subrev_u32 v21, s17, v15")
    a("v_subrev_u32 v22, s17, v17")
    a("v_subrev_u32 v23, s17, v19")
    a("v_max_u32 v20, v20, v21")
    a("v_max3_u32 v20, v20, v22, v23")
    a("v_cmp_lt_u32 vcc, 4, v20")
    a("s_cbranch_vccz L_pollq_done")
    a("s_cmp_lt_u32 s13, 2048")
    a("s_cbranch_scc1 L_pollq")
    a("buffer_load_dword v10, v9, s[72:75], 0 offen sc1")
    a("s_waitcnt vmcnt(0)")
    a("v_readfirstlane_b32 s6, v10")
    a(f"s_cmp_ge_u32 s13, {SPIN_MAX}")
    a("s_cbranch_scc1 L_pollq_done")
    a("s_cmp_ge_u32 s6, 64")
    a("s_cbranch_scc0 L_pollq")
    a(f"buffer_load_dwordx4 v[12:15], v5, s[52:55], s15 offen offset:{WS_Q} sc1")
    a(f"buffer_load_dwordx4 v[16:19], v5, s[52:55], s15 offen offset:{WS_Q+16} sc1")
    a("s_waitcnt vmcnt(0)")
    a.label("L_pollq_done")
    stamp(a, 4, 236, 237)
    a("v_mov_b32 v13, v14")
    a("v_mov_b32 v14, v16")
    a("v_mov_b32 v15, v18")
    a("v_lshlrev_b32 v5, 4, v2")
    a(f"v_add_u32 v5, {L_QL}, v5")
    a(f"v_mov_b32 v6, {L_F+8}")
    a("ds_write_b128 v5, v[12:15]")
    a("s_waitcnt lgkmcnt(0)")
    a("s_mov_b64 exec, 1")
    a("ds_write_b32 v6, v8")
    a("s_cmp_ge_u32 s13, 2048")
    a("s_cbranch_scc1 L_pq_noat2")
    a("buffer_atomic_add v8, v9, s[72:75], 0 offen sc1")
    a.label("L_pq_noat2")
    a("s_mov_b64 exec, s[58:59]")
    stamp(a, 5, 236, 237)
    a("s_cmp_ge_u32 s38, 28")
    a("s_cbranch_scc1 L_nowo")
    a("v_lshrrev_b32 v5, 2, v2")
    a("v_mul_u32_u24 v5, 896, v5")
    a("v_and_b32 v6, 3, v2")
    a("v_lshl_add_u32 v5, v6, 4, v5")
    a("s_mul_i32 s6, s101, 229376")
    a("s_lshl_b32 s7, s100, 6")
    a("s_add_u32 s6, s6, s7")
    a(f"s_mov_b32 s7, {L_WO}")
    for p in range(16):
        a("s_mov_b32 m0, s7")
        a("s_add_u32 s7, s7, 1024")
        a("buffer_load_dwordx4 v5, s[68:71], s6 offen lds")
        a("s_add_u32 s6, s6, 14336")
    a.label("L_nowo")
    if VX: a("s_branch L_skipdyn")
    a("s_lshl_b32 s6, s4, 3")
    a("s_add_u32 s6, s6, s96")
    a("s_lshl_b32 s6, s6, 8")
    a(f"s_add_u32 s25, s6, {WS_CNT}")
    a("v_mov_b32 v14, 0")
    a("s_mov_b32 s13, 0")
    a.label("L_pcnt")
    a("buffer_load_dword v10, v14, s[52:55], s25 offen sc1")
    a("s_add_u32 s13, s13, 1")
    a("s_waitcnt vmcnt(0)")
    a("v_readfirstlane_b32 s6, v10")
    a("s_lshr_b32 s6, s6, 8")
    a("s_sub_u32 s6, s6, s17")
    a("s_and_b32 s6, s6, 0xffffff")
    a("s_cmp_le_u32 s6, 4")
    a("s_cbranch_scc1 L_pcnt_done")
    a("s_sleep 16")
    a("s_cmp_lt_u32 s13, 1024")
    a("s_cbranch_scc1 L_pcnt")
    a("buffer_load_dword v10, v9, s[72:75], 0 offen sc1")
    a("s_waitcnt vmcnt(0)")
    a("v_readfirstlane_b32 s6, v10")
    a(f"s_cmp_ge_u32 s13, {SPIN_MAX}")
    a("s_cbranch_scc1 L_pcnt_done")
    a("s_cmp_ge_u32 s6, 64")
    a("s_cbranch_scc0 L_pcnt")
    a.label("L_pcnt_done")
    a("s_mov_b32 s22, 1")
    a(f"s_mov_b32 s23, {NSTAT}")
    a(f"s_mov_b32 s24, {NSTAT}")
    a(f"v_mov_b32 v11, {L_F+12}")
    a("v_mov_b32 v10, s22")
    a("s_waitcnt vmcnt(0)")
    a.label("L_dyn")
    a("ds_read_b32 v6, v11")
    a("s_waitcnt lgkmcnt(0)")
    a("v_readfirstlane_b32 s6, v6")
    a(f"s_add_u32 s6, s6, {LOOK}")
    a("s_cmp_ge_u32 s6, s23")
    a("s_cbranch_scc1 L_dyn_go")
    a("s_sleep 4")
    a("s_branch L_dyn")
    a.label("L_dyn_go")
    if STAMP:
        a(f"s_cmp_lg_u32 s23, {NSTAT}")
        a("s_cbranch_scc1 L_sq1")
        a("s_memrealtime s[26:27]")
        a("s_waitcnt lgkmcnt(0)")
        a.label("L_sq1")
    a(f"s_sub_u32 s6, s23, {NSTAT}")
    a("s_lshl_b64 exec, 1, s6")
    a("buffer_atomic_add v10, v14, s[52:55], s25 offen sc0 sc1")
    a("s_mov_b64 exec, s[58:59]")
    a("s_add_u32 s23, s23, 1")
    a("s_sub_u32 s6, s23, s24")
    a(f"s_cmp_le_u32 s6, {DEPTH}")
    a("s_cbranch_scc1 L_dyn")
    a(f"s_waitcnt vmcnt({DEPTH})")
    if STAMP:
        a(f"s_cmp_lg_u32 s24, {NSTAT}")
        a("s_cbranch_scc1 L_sq2")
        a("s_memrealtime s[28:29]")
        a("s_waitcnt lgkmcnt(0)")
        a.label("L_sq2")
    a(f"s_sub_u32 s6, s24, {NSTAT}")
    a("v_readlane_b32 s6, v10, s6")
    a("s_and_b32 s6, s6, 0xff")
    a(f"s_add_u32 s7, s6, {4*NSTAT}")
    a(f"s_cmp_lt_u32 s6, {128-4*NSTAT}")
    a("s_cselect_b32 s7, s7, 0x1000")
    a("s_lshl_b32 s6, s24, 2")
    a(f"s_add_u32 s6, s6, {L_NEXT}")
    a("v_mov_b32 v12, s6")
    a("v_mov_b32 v13, s7")
    a("ds_write_b32 v12, v13")
    a("s_add_u32 s24, s24, 1")
    a("s_cmp_lt_u32 s7, 128")
    a("s_cbranch_scc1 L_dyn")
    a("v_add_u32 v12, 4, v12")
    a("ds_write_b32 v12, v13")
    a("s_waitcnt vmcnt(0) lgkmcnt(0)")
    if STAMP:
        stamp(a, 16, 236, 237)
        for (sr, idx) in ((26, 14), (28, 15)):
            a(f"v_mov_b32 v236, s{sr}")
            a("s_lshl_b32 s42, s2, 7")
            a(f"s_add_u32 s42, s42, {0x200000 + idx*4}")
            a("v_mov_b32 v237, 0")
            a("s_mov_b64 exec, 1")
            a("buffer_store_dword v236, v237, s[52:55], s42 offen")
            a("s_mov_b64 exec, s[58:59]")
    a.label("L_skipdyn")
    a("s_waitcnt vmcnt(0)")
    a("s_barrier")
    stamp(a, 7, 236, 237)

    a.label("L_tail")
    a("s_cmp_ge_u32 s38, 14")
    a("s_cselect_b32 s99, 1, 0")
    a("s_mul_i32 s6, s99, 14")
    a("s_sub_u32 s100, s38, s6")
    a("s_lshl_b32 s101, s4, 1")
    a("s_add_u32 s101, s101, s99")
    a("s_cmp_eq_u32 s3, 7")
    a("s_cbranch_scc1 L_now")
    a("v_mul_u32_u24 v5, 56, v2")
    for (base, sr) in ((128, 80), (144, 84), (160, 88)):
        for i in range(3):
            a(f"buffer_load_dwordx4 v[{base+4*i}:{base+4*i+3}], v5, s[{sr}:{sr+3}], 0 offen offset:{16*i}")
        a(f"buffer_load_dwordx2 v[{base+12}:{base+13}], v5, s[{sr}:{sr+3}], 0 offen offset:48")
    a("v_mov_b32 v6, 0")
    a("buffer_load_ushort v174, v6, s[92:95], 0 offen")
    a.label("L_now")
    a("s_cmp_ge_u32 s38, 28")
    a("s_cbranch_scc1 L_stageD")
    a("s_cmp_ge_u32 s3, 4")
    a("s_cbranch_scc1 L_bar4")
    a("v_lshrrev_b32 v5, 5, v0")
    a("v_and_b32 v6, 31, v0")
    a("v_lshlrev_b32 v7, 13, v5")
    a("v_lshl_add_u32 v7, v6, 5, v7")
    a("v_lshlrev_b32 v8, 10, v5")
    a("s_lshl_b32 s10, s4, 16")
    a("s_lshl_b32 s11, s99, 10")
    a("s_add_u32 s10, s10, s11")
    a(f"s_add_u32 s10, s10, {WS_OP}")
    a("s_add_u32 s11, s10, 4096")
    a("s_lshl_b32 s12, s4, 13")
    a("s_lshl_b32 s6, s99, 7")
    a("s_add_u32 s12, s12, s6")
    a(f"s_add_u32 s12, s12, {WS_ML}")
    a("v_and_b32 v9, 31, v2")
    a("v_lshlrev_b32 v9, 8, v9")
    a("s_mov_b32 s13, 0")
    if BULK & 1: a("s_branch L_pollC")
    a.label("L_pollC0")
    a("buffer_load_dwordx2 v[16:17], v9, s[52:55], s12 offen sc1")
    a("s_add_u32 s13, s13, 1")
    a("s_waitcnt vmcnt(0)")
    anysent(a, range(16, 18), 56)
    a("v_cmp_eq_u32 vcc, -1, v56")
    a(f"s_cmp_ge_u32 s13, {SPIN_MAX}")
    a("s_cbranch_scc1 L_pollC")
    a("s_cbranch_vccz L_pollC")
    a("s_sleep 8")
    a("s_branch L_pollC0")
    a.label("L_pollC")
    if STAMP:
        a("s_cmp_lg_u32 s3, 0")
        a("s_cbranch_scc1 L_st19")
        stamp(a, 19)
        a.label("L_st19")
    for s in range(4):
        a(f"buffer_load_dwordx2 v[{48+2*s}:{49+2*s}], v8, s[52:55], s12 offen offset:{s*256} sc1")
    for s in range(4):
        a(f"buffer_load_dwordx4 v[{16+8*s}:{19+8*s}], v7, s[52:55], s{10+(s>>1)} offen offset:{(s&1)*2048} sc1")
        a(f"buffer_load_dwordx4 v[{20+8*s}:{23+8*s}], v7, s[52:55], s{10+(s>>1)} offen offset:{(s&1)*2048+16} sc1")
    a("s_add_u32 s13, s13, 1")
    a("s_waitcnt vmcnt(0)")
    anysent(a, range(16, 56), 56)
    a("v_cmp_eq_u32 vcc, -1, v56")
    a(f"s_cmp_ge_u32 s13, {SPIN_MAX}")
    a("s_cbranch_scc1 L_pollC_done")
    a("s_cbranch_vccz L_pollC_done")
    a("s_sleep 4")
    a("s_branch L_pollC")
    a.label("L_pollC_done")
    if STAMP:
        a("s_cmp_lg_u32 s3, 0")
        a("s_cbranch_scc1 L_st8")
        stamp(a, 8)
        a.label("L_st8")
    a("v_max_f32 v56, v48, v50")
    a("v_max3_f32 v56, v56, v52, v54")
    for s in range(4):
        a(f"v_sub_f32 v{48+2*s}, v{48+2*s}, v56")
        a(f"v_exp_f32 v{48+2*s}, v{48+2*s}")
    a("s_nop 0")
    a("v_mul_f32 v57, v48, v49")
    for s in range(1, 4):
        a(f"v_fmac_f32 v57, v{48+2*s}, v{49+2*s}")
    a("v_rcp_f32 v57, v57")
    a("s_nop 0")
    for s in range(4):
        a(f"v_mul_f32 v{48+2*s}, v{48+2*s}, v57")
    for i in range(8):
        a(f"v_mul_f32 v{60+i}, v48, v{16+i}")
        for s in range(1, 4):
            a(f"v_fmac_f32 v{60+i}, v{48+2*s}, v{16+8*s+i}")
    pack8(a, 60, 68)
    a("v_lshlrev_b32 v6, 4, v0")
    a(f"v_add_u32 v6, {L_O}, v6")
    a("ds_write_b128 v6, v[68:71]")
    a("s_waitcnt lgkmcnt(0)")
    a.label("L_bar4")
    a("s_barrier")
    a("s_cmp_lg_u32 s3, 0")
    a("s_cbranch_scc1 L_stageD")
    a("v_bfe_u32 v5, v2, 2, 2")
    a("v_lshl_add_u32 v5, v4, 3, v5")
    a("v_lshlrev_b32 v5, 6, v5")
    a("v_and_b32 v6, 3, v2")
    a("v_lshl_add_u32 v5, v6, 3, v5")
    a(f"v_add_u32 v5, {L_WO}, v5")
    a("v_and_b32 v6, 7, v2")
    a("v_lshlrev_b32 v6, 9, v6")
    a("v_lshl_add_u32 v6, v4, 4, v6")
    a(f"v_add_u32 v6, {L_O}, v6")
    for j in range(8):
        a(f"ds_read_b128 v[{48+4*j}:{51+4*j}], v6 offset:{j*64}")
        a(f"ds_read_b64_tr_b16 v[{16+4*j}:{17+4*j}], v5 offset:{j*2048}")
        a(f"ds_read_b64_tr_b16 v[{18+4*j}:{19+4*j}], v5 offset:{j*2048+256}")
        a(f"ds_read_b64_tr_b16 v[{88+4*j}:{89+4*j}], v5 offset:{j*2048+32}")
        a(f"ds_read_b64_tr_b16 v[{90+4*j}:{91+4*j}], v5 offset:{j*2048+256+32}")
    a("s_waitcnt lgkmcnt(0)")
    for j in range(8):
        c0 = "0" if j == 0 else "v[80:83]"
        c1 = "0" if j == 0 else "v[84:87]"
        a(f"v_mfma_f32_16x16x32_bf16 v[80:83], v[{16+4*j}:{19+4*j}], v[{48+4*j}:{51+4*j}], {c0}")
        a(f"v_mfma_f32_16x16x32_bf16 v[84:87], v[{88+4*j}:{91+4*j}], v[{48+4*j}:{51+4*j}], {c1}")
    a("v_cmp_gt_u32 vcc, 8, v3")
    a("v_lshlrev_b32 v5, 7, v3")
    a("v_lshl_add_u32 v5, v4, 4, v5")
    a(f"v_add_u32 v5, {L_QL}, v5")
    a("v_lshlrev_b32 v6, 4, v2")
    a(f"v_add_u32 v7, {L_QL}, v6")
    a("s_lshl_b32 s6, s4, 1")
    a("s_mul_i32 s6, s6, 14")
    a("s_add_u32 s6, s6, s38")
    a("s_lshl_b32 s6, s6, 10")
    a(f"s_add_u32 s6, s6, {WS_P2}")
    a("s_and_b64 exec, exec, vcc")
    a("ds_write_b128 v5, v[80:83]")
    a("ds_write_b128 v5, v[84:87] offset:64")
    a("s_mov_b64 exec, s[58:59]")
    a("s_waitcnt lgkmcnt(0)")
    a("ds_read_b128 v[80:83], v7")
    a("s_waitcnt lgkmcnt(0)")
    a("buffer_store_dwordx4 v[80:83], v6, s[52:55], s6 offen sc1")
    if STAMP:
        a("s_cmp_lg_u32 s3, 0")
        a("s_cbranch_scc1 L_st9")
        stamp(a, 9)
        a("s_waitcnt vmcnt(0)")
        stamp(a, 18)
        a.label("L_st9")

    a.label("L_stageD")
    a("s_lshr_b32 s96, s2, 5")
    a("s_and_b32 s97, s2, 31")
    a("s_cmp_lg_u32 s3, 7")
    a("s_cbranch_scc1 L_bar5")
    a("v_lshrrev_b32 v5, 2, v2")
    a("v_lshlrev_b32 v5, 10, v5")
    a("v_and_b32 v6, 3, v2")
    a("v_lshl_add_u32 v5, v6, 5, v5")
    a("v_mov_b32 v6, 0x7fff0000")
    a("v_cndmask_b32 v5, v6, v5, s[56:57]")
    a("v_lshlrev_b32 v7, 4, v2")
    a("v_cndmask_b32 v7, v6, v7, s[56:57]")
    a("s_mul_i32 s6, s96, 896")
    a("buffer_load_dwordx4 v[8:11], v7, s[60:63], s6 offen")
    a("s_mov_b32 s13, 0")
    a.label("L_pollD")
    a("s_lshl_b32 s6, s96, 7")
    a(f"s_add_u32 s6, s6, {WS_P2}")
    for h in range(16):
        a(f"buffer_load_dwordx4 v[{128+8*h}:{131+8*h}], v5, s[52:55], s6 offen sc1")
        a(f"buffer_load_dwordx4 v[{132+8*h}:{135+8*h}], v5, s[52:55], s6 offen offset:16 sc1")
        a("s_add_u32 s6, s6, 14336")
    a("s_add_u32 s13, s13, 1")
    a("s_waitcnt vmcnt(0)")
    anysent(a, range(128, 256), 12)
    a("v_cmp_eq_u32 vcc, -1, v12")
    a(f"s_cmp_ge_u32 s13, {SPIN_MAX}")
    a("s_cbranch_scc1 L_pollD_done")
    a("s_cbranch_vccz L_pollD_done")
    a("s_sleep 4")
    a("s_branch L_pollD")
    a.label("L_pollD_done")
    stamp(a, 10, 13, 14)
    for h in range(1, 16):
        for i in range(8):
            a(f"v_add_f32 v{128+i}, v{128+i}, v{128+8*h+i}")
    unpack8(a, 8, 16)
    for i in range(0, 8, 2):
        bf16r2(a, 128+i, 129+i, 12)
        a(f"v_add_f32 v{16+i}, v{16+i}, v{128+i}")
        a(f"v_add_f32 v{17+i}, v{17+i}, v{129+i}")
        bf16r2(a, 16+i, 17+i, 12)
    a("v_lshlrev_b32 v5, 5, v2")
    a(f"v_add_u32 v5, {L_H}, v5")
    a("s_mov_b64 exec, s[56:57]")
    a("ds_write_b128 v5, v[16:19]")
    a("ds_write_b128 v5, v[20:23] offset:16")
    a("s_mov_b64 exec, s[58:59]")
    layernorm8(a, 16, 32, 33, 34, 56)
    for i in range(8):
        a(f"v_cndmask_b32 v{16+i}, 0, v{16+i}, s[56:57]")
    layernorm8(a, 16, 32, 33, 34, 56)
    a("s_mov_b64 exec, s[56:57]")
    a(f"ds_write_b128 v5, v[16:19] offset:{L_T-L_H}")
    a(f"ds_write_b128 v5, v[20:23] offset:{L_T-L_H+16}")
    a("s_mov_b64 exec, s[58:59]")
    a("s_waitcnt lgkmcnt(0)")
    stamp(a, 11, 13, 14)
    a("s_barrier")
    a("s_branch L_done")
    a.label("L_bar5")
    a("s_waitcnt vmcnt(0)")
    for i in range(14):
        a(f"v_lshlrev_b32 v{16+2*i}, 16, v{128+i}")
        a(f"v_and_b32 v{17+2*i}, 0xffff0000, v{128+i}")
        a(f"v_lshlrev_b32 v{44+2*i}, 16, v{144+i}")
        a(f"v_and_b32 v{45+2*i}, 0xffff0000, v{144+i}")
    a("v_lshlrev_b32 v174, 16, v174")
    C1 = -2.0 * LOG2E * math.sqrt(2.0/math.pi)
    C2 = C1 * 0.044715
    a(f"v_mov_b32 v72, {hex(f2u(C1))}")
    a(f"v_mov_b32 v73, {hex(f2u(C1))}")
    a(f"v_mov_b32 v74, {hex(f2u(C2))}")
    a(f"v_mov_b32 v75, {hex(f2u(C2))}")
    a("v_mov_b32 v76, 1.0")
    a("v_mov_b32 v77, 1.0")
    a("v_mov_b32 v78, 0")
    a("v_mov_b32 v79, 0")
    a("s_mul_i32 s6, s97, 56")
    a("s_lshl_b32 s7, s3, 3")
    a("s_add_u32 s6, s6, s7")
    a(f"s_add_u32 s6, s6, {L_H}")
    a("v_mov_b32 v5, s6")
    a("s_barrier")
    a(f"ds_read_b64 v[80:81], v5 offset:{L_T-L_H}")
    a("ds_read_b64 v[82:83], v5")
    a("s_waitcnt lgkmcnt(0)")
    for i in range(14):
        U = [84, 92]; Tt = [86, 94]; C = [88, 96]
        for d in range(2):
            osel = "op_sel_hi:[0,1]" if d == 0 else "op_sel:[1,0] op_sel_hi:[1,1]"
            a(f"v_pk_mul_f32 v[{U[d]}:{U[d]+1}], v[80:81], v[{16+2*i}:{17+2*i}] {osel}")
        for d in range(2):
            bf16r2(a, U[d], U[d]+1, C[d])
        for d in range(2):
            a(f"v_pk_add_f32 v[{U[d]}:{U[d]+1}], v[{U[d]}:{U[d]+1}], v[{44+2*i}:{45+2*i}]")
        for d in range(2):
            bf16r2(a, U[d], U[d]+1, C[d])
        for d in range(2):
            a(f"v_pk_mul_f32 v[{Tt[d]}:{Tt[d]+1}], v[{U[d]}:{U[d]+1}], v[{U[d]}:{U[d]+1}]")
        for d in range(2):
            a(f"v_pk_fma_f32 v[{Tt[d]}:{Tt[d]+1}], v[{Tt[d]}:{Tt[d]+1}], v[74:75], v[72:73]")
        for d in range(2):
            a(f"v_pk_mul_f32 v[{Tt[d]}:{Tt[d]+1}], v[{Tt[d]}:{Tt[d]+1}], v[{U[d]}:{U[d]+1}]")
        for d in range(2):
            a(f"v_exp_f32 v{Tt[d]}, v{Tt[d]}")
            a(f"v_exp_f32 v{Tt[d]+1}, v{Tt[d]+1}")
        for d in range(2):
            a(f"v_pk_add_f32 v[{Tt[d]}:{Tt[d]+1}], v[{Tt[d]}:{Tt[d]+1}], v[76:77]")
        for d in range(2):
            a(f"v_rcp_f32 v{Tt[d]}, v{Tt[d]}")
            a(f"v_rcp_f32 v{Tt[d]+1}, v{Tt[d]+1}")
        for d in range(2):
            a(f"v_pk_mul_f32 v[{Tt[d]}:{Tt[d]+1}], v[{Tt[d]}:{Tt[d]+1}], v[{U[d]}:{U[d]+1}]")
        for d in range(2):
            a(f"v_cvt_pk_bf16_f32 v{C[d]}, v{Tt[d]}, v{Tt[d]+1}")
        for d in range(2):
            a(f"v_dot2_f32_bf16 v{78+d}, v{C[d]}, v{160+i}, v{78+d}")
    a("s_nop 3")
    wave_reduce2(a, "v_add_f32", 78, 84, 79, 85)
    bf16r2(a, 78, 79, 84)
    a("v_add_f32 v78, v78, v174")
    a("v_add_f32 v79, v79, v174")
    bf16r2(a, 78, 79, 84)
    a("v_add_f32 v78, v78, v82")
    a("v_add_f32 v79, v79, v83")
    a("v_cvt_pk_bf16_f32 v78, v78, v79")
    a("s_mul_i32 s6, s96, 896")
    a("s_mul_i32 s7, s97, 28")
    a("s_add_u32 s6, s6, s7")
    a("s_lshl_b32 s7, s3, 2")
    a("s_add_u32 s6, s6, s7")
    a("v_mov_b32 v5, 0")
    a("s_mov_b64 exec, 1")
    a("buffer_store_dword v78, v5, s[76:79], s6 offen")
    if STAMP:
        a("s_cmp_lg_u32 s3, 0")
        a("s_cbranch_scc1 L_done")
        stamp(a, 13)
    a.label("L_done")
    a("s_endpgm")
    a.raw(".section .rodata,\"a\"")
    a.raw(".p2align 6")
    a.raw(f".amdhsa_kernel {n}")
    a.raw("  .amdhsa_next_free_vgpr 256")
    a.raw("  .amdhsa_next_free_sgpr 102")
    a.raw("  .amdhsa_accum_offset 256")
    a.raw("  .amdhsa_group_segment_fixed_size 0")
    a.raw("  .amdhsa_kernarg_size 104")
    a.raw("  .amdhsa_user_sgpr_count 2")
    a.raw("  .amdhsa_user_sgpr_kernarg_segment_ptr 1")
    a.raw("  .amdhsa_system_sgpr_workgroup_id_x 1")
    a.raw(".end_amdhsa_kernel")

def main():
    a = Asm()
    hdr = open("cdna_kernels/%s.s.ref" % NAME).read().split("\n")
    for l in hdr:
        if l.startswith("; @launch"):
            break
        a.raw(l)
    a.raw(f"; @launch grid=(256,1,1) block=(512,1,1) lds={LDS_BYTES}")
    a.raw('.amdgcn_target "amdgcn-amd-amdhsa--gfx950"')
    gen(a)
    out = sys.argv[1] if len(sys.argv) > 1 else OUT
    open(out, "w").write(a.text())

if __name__ == "__main__":
    main()
```

```python
import sys, math, struct, os, re

NAME = "sequential_preLN__gqa_block_cached__mixer_token_mlp__decode"
KNAME = NAME + "_kernel"
OUT = "cdna_kernels/%s.s" % NAME

def f2u(x):
    return struct.unpack("<I", struct.pack("<f", x))[0]

class Asm:
    def __init__(self):
        self.lines = []
    def __call__(self, s):
        for l in s.strip("\n").split("\n"):
            l = l.strip()
            m = re.search(r"offset:(\d+)", l)
            if m and l.startswith("buffer_"):
                assert int(m.group(1)) < 4096, l
            if m and l.startswith("ds_"):
                assert int(m.group(1)) < 65536, l
            self.lines.append("    " + l)
    def label(self, l):
        self.lines.append(l + ":")
    def raw(self, s):
        self.lines.append(s)
    def text(self):
        return "\n".join(self.lines) + "\n"

WS_Q = 0
WS_OP = 0x20000
WS_ML = 0x120000
WS_P2 = 0x140000
WS_CNT = 0x180000
WS_BYTES = 0x400000

LOG2E = 1.4426950408889634
SCALE_C = 0.0625 * LOG2E
NT = os.environ.get("NT", " nt")
NTV = os.environ.get("NTV", NT)

MB = 131072
L_WQ = MB
L_XN = MB + 14336
L_QL = MB + 19456
L_SA = MB + 22528
L_SM = MB + 30720
L_WO = MB
L_O = MB + 22528
L_H = MB + 26624
L_T = MB + 28672
L_F = MB + 31744
L_NEXT = MB + 31808
NSTAT = int(os.environ.get("NSTAT", "12"))
LOOK = int(os.environ.get("LOOK", "6"))
DEPTH = int(os.environ.get("DEPTH", "3"))
VX = int(os.environ.get("VX", "0"))
BULK = int(os.environ.get("BULK", "0"))
IPF = int(os.environ.get("IPF", "0"))
LDS_BYTES = 163840

SPIN_MAX = 1 << 18

def srd(a, d, base, nbytes):
    a(f"s_mov_b32 s{d}, s{base}")
    a(f"s_and_b32 s{d+1}, s{base+1}, 0xffff")
    a(f"s_mov_b32 s{d+2}, {nbytes}")
    a(f"s_mov_b32 s{d+3}, 0x00020000")

def wave_reduce(a, op, v, t):
    for ctl in ["quad_perm:[1,0,3,2]", "quad_perm:[2,3,0,1]", "row_half_mirror", "row_mirror"]:
        a("s_nop 1")
        a(f"{op}_dpp v{v}, v{v}, v{v} {ctl} row_mask:0xf bank_mask:0xf")
    group_reduce(a, op, v, t)

def group_reduce(a, op, v, t):
    a(f"v_mov_b32 v{t}, v{v}")
    a("s_nop 1")
    a(f"v_permlane16_swap_b32 v{v}, v{t}")
    a("s_nop 1")
    a(f"{op} v{v}, v{v}, v{t}")
    a(f"v_mov_b32 v{t}, v{v}")
    a("s_nop 1")
    a(f"v_permlane32_swap_b32 v{v}, v{t}")
    a("s_nop 1")
    a(f"{op} v{v}, v{v}, v{t}")

def wave_reduce2(a, op, v, t, w, u):
    for ctl in ["quad_perm:[1,0,3,2]", "quad_perm:[2,3,0,1]", "row_half_mirror", "row_mirror"]:
        a("s_nop 0")
        a(f"{op}_dpp v{v}, v{v}, v{v} {ctl} row_mask:0xf bank_mask:0xf")
        a(f"{op}_dpp v{w}, v{w}, v{w} {ctl} row_mask:0xf bank_mask:0xf")
    for sw in ["v_permlane16_swap_b32", "v_permlane32_swap_b32"]:
        a(f"v_mov_b32 v{t}, v{v}")
        a(f"v_mov_b32 v{u}, v{w}")
        a("s_nop 1")
        a(f"{sw} v{v}, v{t}")
        a(f"{sw} v{w}, v{u}")
        a("s_nop 1")
        a(f"{op} v{v}, v{v}, v{t}")
        a(f"{op} v{w}, v{w}, v{u}")

def bf16r(a, v):
    a(f"v_cvt_pk_bf16_f32 v{v}, v{v}, v{v}")
    a(f"v_and_b32 v{v}, 0xffff0000, v{v}")

def bf16r2(a, v, w, t):
    a(f"v_cvt_pk_bf16_f32 v{t}, v{v}, v{w}")
    a(f"v_lshlrev_b32 v{v}, 16, v{t}")
    a(f"v_and_b32 v{w}, 0xffff0000, v{t}")

def unpack8(a, src, dst):
    for i in range(4):
        a(f"v_lshlrev_b32 v{dst+2*i}, 16, v{src+i}")
        a(f"v_and_b32 v{dst+2*i+1}, 0xffff0000, v{src+i}")

def layernorm8(a, x, t0, t1, t2, smask, t3=35):
    a(f"v_add_f32 v{t0}, v{x}, v{x+1}")
    a(f"v_add_f32 v{t1}, v{x+2}, v{x+3}")
    a(f"v_add_f32 v{t2}, v{x+4}, v{x+5}")
    a(f"v_add_f32 v{t3}, v{x+6}, v{x+7}")
    a(f"v_add_f32 v{t0}, v{t0}, v{t1}")
    a(f"v_add_f32 v{t2}, v{t2}, v{t3}")
    a(f"v_add_f32 v{t0}, v{t0}, v{t2}")
    wave_reduce(a, "v_add_f32", t0, t1)
    a(f"v_mul_f32 v{t0}, {hex(f2u(1.0/448))}, v{t0}")
    a(f"v_sub_f32 v{t2}, v{x}, v{t0}")
    a(f"v_sub_f32 v{t3}, v{x+1}, v{t0}")
    a(f"v_mul_f32 v{t1}, v{t2}, v{t2}")
    a(f"v_mul_f32 v{t3}, v{t3}, v{t3}")
    for i in range(2, 8, 2):
        a(f"v_sub_f32 v{t2}, v{x+i}, v{t0}")
        a(f"v_fmac_f32 v{t1}, v{t2}, v{t2}")
        a(f"v_sub_f32 v{t2}, v{x+i+1}, v{t0}")
        a(f"v_fmac_f32 v{t3}, v{t2}, v{t2}")
    a(f"v_add_f32 v{t1}, v{t1}, v{t3}")
    a(f"v_cndmask_b32 v{t1}, 0, v{t1}, s[{smask}:{smask+1}]")
    wave_reduce(a, "v_add_f32", t1, t2)
    a(f"v_mul_f32 v{t1}, {hex(f2u(1.0/448))}, v{t1}")
    bf16r(a, t1)
    a(f"v_add_f32 v{t1}, {hex(f2u(1e-5))}, v{t1}")
    bf16r(a, t1)
    a(f"v_sqrt_f32 v{t1}, v{t1}")
    bf16r(a, t0)
    bf16r(a, t1)
    a(f"v_rcp_f32 v{t1}, v{t1}")
    for i in range(0, 8, 2):
        a(f"v_sub_f32 v{x+i}, v{x+i}, v{t0}")
        a(f"v_sub_f32 v{x+i+1}, v{x+i+1}, v{t0}")
        bf16r2(a, x+i, x+i+1, t2)
    for i in range(0, 8, 2):
        a(f"v_mul_f32 v{x+i}, v{x+i}, v{t1}")
        a(f"v_mul_f32 v{x+i+1}, v{x+i+1}, v{t1}")
        bf16r2(a, x+i, x+i+1, t2)

def layernorm8x2(a, x, y, tx, ty, smask):
    t0, t1, t2 = tx; u0, u1, u2 = ty
    a(f"v_add_f32 v{t0}, v{x}, v{x+1}")
    a(f"v_add_f32 v{u0}, v{y}, v{y+1}")
    for i in range(2, 8):
        a(f"v_add_f32 v{t0}, v{t0}, v{x+i}")
        a(f"v_add_f32 v{u0}, v{u0}, v{y+i}")
    wave_reduce2(a, "v_add_f32", t0, t1, u0, u1)
    a(f"v_mul_f32 v{t0}, {hex(f2u(1.0/448))}, v{t0}")
    a(f"v_mul_f32 v{u0}, {hex(f2u(1.0/448))}, v{u0}")
    for i in range(8):
        a(f"v_sub_f32 v{t2}, v{x+i}, v{t0}")
        a(f"v_sub_f32 v{u2}, v{y+i}, v{u0}")
        if i == 0:
            a(f"v_mul_f32 v{t1}, v{t2}, v{t2}")
            a(f"v_mul_f32 v{u1}, v{u2}, v{u2}")
        else:
            a(f"v_fmac_f32 v{t1}, v{t2}, v{t2}")
            a(f"v_fmac_f32 v{u1}, v{u2}, v{u2}")
    a(f"v_cndmask_b32 v{t1}, 0, v{t1}, s[{smask}:{smask+1}]")
    a(f"v_cndmask_b32 v{u1}, 0, v{u1}, s[{smask}:{smask+1}]")
    wave_reduce2(a, "v_add_f32", t1, t2, u1, u2)
    a(f"v_mul_f32 v{t1}, {hex(f2u(1.0/448))}, v{t1}")
    a(f"v_mul_f32 v{u1}, {hex(f2u(1.0/448))}, v{u1}")
    bf16r2(a, t1, u1, t2)
    a(f"v_add_f32 v{t1}, {hex(f2u(1e-5))}, v{t1}")
    a(f"v_add_f32 v{u1}, {hex(f2u(1e-5))}, v{u1}")
    bf16r2(a, t1, u1, t2)
    a(f"v_sqrt_f32 v{t1}, v{t1}")
    a(f"v_sqrt_f32 v{u1}, v{u1}")
    a("s_nop 0")
    bf16r2(a, t1, u1, t2)
    a(f"v_rcp_f32 v{t1}, v{t1}")
    a(f"v_rcp_f32 v{u1}, v{u1}")
    bf16r2(a, t0, u0, t2)
    for (z, m, r_) in ((x, t0, t1), (y, u0, u1)):
        for i in range(0, 8, 2):
            a(f"v_sub_f32 v{z+i}, v{z+i}, v{m}")
            a(f"v_sub_f32 v{z+i+1}, v{z+i+1}, v{m}")
            bf16r2(a, z+i, z+i+1, t2)
            a(f"v_mul_f32 v{z+i}, v{z+i}, v{r_}")
            a(f"v_mul_f32 v{z+i+1}, v{z+i+1}, v{r_}")

def pack8(a, x, dst):
    for i in range(4):
        a(f"v_cvt_pk_bf16_f32 v{dst+i}, v{x+2*i}, v{x+2*i+1}")

def anysent(a, regs, t):
    regs = list(regs)
    a(f"v_max_u32 v{t}, v{regs[0]}, v{regs[1]}")
    i = 2
    while i < len(regs):
        if i + 1 < len(regs):
            a(f"v_max3_u32 v{t}, v{t}, v{regs[i]}, v{regs[i+1]}")
            i += 2
        else:
            a(f"v_max_u32 v{t}, v{t}, v{regs[i]}")
            i += 1

QF = 16; OA = 64; KF = 128; VF = 160; KOFF = 192; VOFF = 200; KRA = 208; VRA = 212
SA = 220; PB = 224; M = 226; L = 227; AL = 228; T0 = 229; T1 = 230; T2 = 231

STAMP = int(os.environ.get("STAMP", "0"))
PRE = int(os.environ.get("PRE", "2"))
LATE0 = int(os.environ.get("LATE0", "0"))
MAP = int(os.environ.get("MAP", "1"))
def stamp(a, idx, va=233, vb=234):
    if not STAMP: return
    a("s_memrealtime s[42:43]")
    a("s_waitcnt lgkmcnt(0)")
    a(f"v_mov_b32 v{va}, s42")
    a("s_lshl_b32 s42, s2, 7")
    a(f"s_add_u32 s42, s42, {0x200000 + idx*4}")
    a(f"v_mov_b32 v{vb}, 0")
    a("s_mov_b64 exec, 1")
    a(f"buffer_store_dword v{va}, v{vb}, s[52:55], s42 offen")
    a("s_mov_b64 exec, s[58:59]")

def gen(a):
    n = KNAME
    a.raw(".text")
    a.raw(f".globl {n}")
    a.raw(".p2align 8")
    a.raw(f".type {n},@function")
    a.label(n)
    a("s_cmp_ge_u32 s2, 256")
    a("s_cbranch_scc1 L_done")
    a("s_load_dwordx16 s[16:31], s[0:1], 0")
    a("s_load_dwordx8 s[32:39], s[0:1], 64")
    a("s_load_dwordx2 s[40:41], s[0:1], 96")
    a("v_lshrrev_b32 v1, 6, v0")
    a("v_and_b32 v2, 63, v0")
    a("v_and_b32 v3, 15, v2")
    a("v_readfirstlane_b32 s3, v1")
    a("v_lshrrev_b32 v4, 4, v2")
    if MAP == 0:
        a("s_and_b32 s4, s2, 7")
        a("s_lshr_b32 s5, s2, 3")
    else:
        a("s_lshr_b32 s4, s2, 5")
        a("s_and_b32 s5, s2, 31")
    a("s_lshr_b32 s96, s5, 3")
    a("s_and_b32 s97, s5, 7")
    a("s_lshl_b32 s98, s4, 6")
    a("s_add_u32 s98, s98, s5")
    a("v_cmp_gt_u32 s[56:57], 56, v2")
    a("s_mov_b64 s[58:59], exec")
    a("s_waitcnt lgkmcnt(0)")
    srd(a, 44, 18, 0x10000000)
    srd(a, 48, 20, 0x10000000)
    srd(a, 52, 40, WS_BYTES)
    srd(a, 60, 16, 7168)
    srd(a, 64, 22, 448*4096*2)
    srd(a, 68, 24, 4096*448*2)
    srd(a, 72, 38, 256)
    srd(a, 76, 36, 7168)
    srd(a, 80, 28, 3584)
    srd(a, 84, 30, 3584)
    srd(a, 88, 32, 3584)
    srd(a, 92, 34, 4)
    a("s_and_b32 s38, s5, 7")
    a("s_lshl_b32 s38, s38, 2")
    a("s_lshr_b32 s39, s5, 3")
    a("s_add_u32 s38, s38, s39")
    a("s_lshl_b32 s39, s4, 5")
    a("s_add_u32 s39, s39, s38")
    a("s_cmp_ge_u32 s3, 4")
    a("s_cbranch_scc1 L_helpers")

    if STAMP:
        a("s_cmp_lg_u32 s3, 0")
        a("s_cbranch_scc1 L_st0")
        stamp(a, 0)
        a.label("L_st0")
    a("v_lshrrev_b32 v7, 5, v2")
    a("v_and_b32 v8, 31, v2")
    for p in range(8):
        a(f"v_add_u32 v5, {2*p}, v7")
        a("v_xor_b32 v6, v8, v5")
        a("v_lshlrev_b32 v6, 4, v6")
        a(f"v_lshl_add_u32 v{KOFF+p}, v7, 9, v6")
        a(f"v_add_u32 v{KOFF+p}, {p*4096-(p&3)*1024}, v{KOFF+p}")
        a("v_and_b32 v5, 7, v5")
        a("v_lshlrev_b32 v5, 1, v5")
        a("v_xor_b32 v6, v8, v5")
        a("v_lshlrev_b32 v6, 4, v6")
        a(f"v_lshl_add_u32 v{VOFF+p}, v7, 9, v6")
        a(f"v_add_u32 v{VOFF+p}, {p*4096-(p&3)*1024}, v{VOFF+p}")
    a("s_lshl_b32 s8, s3, 15")
    a("s_lshl_b32 s20, s96, 3")
    a("s_add_u32 s20, s20, s4")
    a("s_lshl_b32 s20, s20, 22")
    a("s_lshl_b32 s6, s3, 10")
    a("s_add_u32 s20, s20, s6")
    a(f"s_mul_i32 s6, s97, {NSTAT*32768}")
    a("s_add_u32 s9, s20, s6")

    def issue(kind, slot):
        srd_ = "s[44:47]" if kind == "K" else "s[48:51]"
        so = "s9"
        off = KOFF if kind == "K" else VOFF
        ntk = NT if kind == "K" else NTV
        a(f"s_add_u32 s11, s8, {slot*8192}")
        a("s_mov_b32 m0, s11")
        a(f"s_add_u32 s12, s8, {slot*8192+4096}")
        for p in range(4):
            a(f"buffer_load_dwordx4 v{off+p}, {srd_}, {so} offen offset:{p*1024}{ntk} lds")
        a("s_mov_b32 m0, s12")
        a("s_nop 0")
        for p in range(4):
            a(f"buffer_load_dwordx4 v{off+4+p}, {srd_}, {so} offen offset:{p*1024}{ntk} lds")

    def ldsspin(word, target, lab):
        a(f"v_mov_b32 v5, {L_F + word*4}")
        a.label(lab)
        a("ds_read_b32 v6, v5")
        a("s_waitcnt lgkmcnt(0)")
        a("v_readfirstlane_b32 s6, v6")
        a(f"s_cmp_ge_u32 s6, {target}")
        a(f"s_cbranch_scc1 {lab}_d")
        a("s_sleep 1")
        a(f"s_branch {lab}")
        a.label(lab + "_d")

    units = [("K", 0), ("V", 1), ("K", 2), ("V", 3)]
    a("s_barrier")
    assert PRE == 2
    for u in units[:2]: issue(*u)
    a("s_add_u32 s9, s9, 32768")
    for jj in range(4):
        a(f"v_add_u32 v5, {4*jj}, v4")
        a("v_xor_b32 v5, v5, v3")
        a("v_lshlrev_b32 v5, 4, v5")
        a(f"v_lshl_add_u32 v5, v3, 9, v5")
        a(f"v_add_u32 v{KRA+jj}, s8, v5")
    a("v_bfe_u32 v5, v2, 2, 2")
    a("v_lshl_add_u32 v5, v4, 2, v5")
    a("v_and_b32 v6, 7, v5")
    a("v_and_b32 v7, 3, v2")
    a("v_lshlrev_b32 v7, 3, v7")
    a("v_lshl_add_u32 v7, v5, 9, v7")
    a("v_add_u32 v7, s8, v7")
    for nn in range(8):
        a(f"v_xor_b32 v5, {nn}, v6")
        a(f"v_lshl_add_u32 v{VRA+nn}, v5, 5, v7")
    for i in range(64):
        a(f"v_mov_b32 v{OA+i}, 0")
    a(f"v_mov_b32 v{M}, 0xf149f2ca")
    a(f"v_mov_b32 v{L}, 0")
    a(f"s_mov_b32 s14, {hex(f2u(SCALE_C))}")
    if PRE < 4:
        ldsspin(1, 1, "L_spin1")
        for u in units[PRE:]: issue(*u)
    ldsspin(2, 1, "L_spin2")
    a("v_and_b32 v5, 1, v2")
    a("v_lshlrev_b32 v5, 9, v5")
    a("v_lshl_add_u32 v5, v4, 4, v5")
    a(f"v_add_u32 v5, {L_QL}, v5")
    for j in range(8):
        a(f"ds_read_b128 v[{QF+4*j}:{QF+4*j+3}], v5 offset:{j*64}")
    a("s_waitcnt lgkmcnt(0)")
    a(f"v_mov_b32 v235, {L_NEXT+8}")
    a(f"v_mov_b32 v238, {L_F+12}")

    def flushA(tag):
        group_reduce(a, "v_add_f32", L, T1)
        a("v_cmp_gt_u32 vcc, 2, v3")
        a("v_lshlrev_b32 v5, 10, v3")
        a("v_lshl_add_u32 v5, v4, 4, v5")
        a("s_lshl_b32 s6, s3, 11")
        a(f"s_add_u32 s6, s6, {L_SA}")
        a("v_add_u32 v5, s6, v5")
        a("s_and_b64 exec, exec, vcc")
        for nn in range(16):
            a(f"ds_write_b128 v5, v[{OA+4*nn}:{OA+4*nn+3}] offset:{nn*64}")
        a("v_cmp_gt_u32 vcc, 2, v2")
        a("v_lshlrev_b32 v5, 3, v2")
        a("s_lshl_b32 s6, s3, 4")
        a(f"s_add_u32 s6, s6, {L_SM}")
        a("v_add_u32 v5, s6, v5")
        a("s_and_b64 exec, exec, vcc")
        a(f"ds_write_b64 v5, v[{M}:{M+1}]")
        a("s_mov_b64 exec, 1")
        a(f"v_mov_b32 v5, {L_F+16}")
        a("v_mov_b32 v6, 1")
        a("s_waitcnt lgkmcnt(0)")
        a("ds_add_rtn_u32 v6, v5, v6")
        a("s_mov_b64 exec, s[58:59]")
        a("v_and_b32 v5, 1, v2")
        a("v_lshlrev_b32 v5, 9, v5")
        a("v_lshl_add_u32 v5, v4, 4, v5")
        a(f"v_add_u32 v5, {L_QL+1024}, v5")
        for j in range(8):
            a(f"ds_read_b128 v[{QF+4*j}:{QF+4*j+3}], v5 offset:{j*64}")
        for i in range(64):
            a(f"v_mov_b32 v{OA+i}, 0")
        a(f"v_mov_b32 v{M}, 0xf149f2ca")
        a(f"v_mov_b32 v{L}, 0")
        a("s_mov_b32 s22, 1")
        a("s_waitcnt lgkmcnt(0)")
        a("v_readfirstlane_b32 s6, v6")
        a("s_cmp_lg_u32 s6, 3")
        a(f"s_cbranch_scc1 L_fl_done_{tag}")
        a("v_lshlrev_b32 v5, 4, v2")
        a(f"v_add_u32 v6, {L_SA}, v5")
        a(f"v_mov_b32 v7, {L_SM}")
        for w in range(4):
            a(f"ds_read_b128 v[{128+4*w}:{131+4*w}], v7 offset:{w*16}")
            a(f"ds_read_b128 v[{144+8*w}:{147+8*w}], v6 offset:{w*2048}")
            a(f"ds_read_b128 v[{148+8*w}:{151+8*w}], v6 offset:{w*2048+1024}")
        a("s_waitcnt lgkmcnt(0)")
        for h in range(2):
            mm = 176 + 2*h
            a(f"v_max_f32 v{mm}, v{128+2*h}, v{132+2*h}")
            a(f"v_max3_f32 v{mm}, v{mm}, v{136+2*h}, v{140+2*h}")
            for w in range(4):
                a(f"v_sub_f32 v{128+4*w+2*h}, v{128+4*w+2*h}, v{mm}")
                a(f"v_exp_f32 v{128+4*w+2*h}, v{128+4*w+2*h}")
            a("s_nop 0")
            a(f"v_mul_f32 v{mm+1}, v{128+2*h}, v{129+2*h}")
            for w in range(1, 4):
                a(f"v_fmac_f32 v{mm+1}, v{128+4*w+2*h}, v{129+4*w+2*h}")
            for i in range(4):
                a(f"v_mul_f32 v{180+4*h+i}, v{128+2*h}, v{144+4*h+i}")
                for w in range(1, 4):
                    a(f"v_fmac_f32 v{180+4*h+i}, v{128+4*w+2*h}, v{144+8*w+4*h+i}")
        a("s_lshl_b32 s6, s98, 11")
        a(f"s_add_u32 s6, s6, {WS_OP}")
        a("buffer_store_dwordx4 v[180:183], v5, s[52:55], s6 offen sc1")
        a("buffer_store_dwordx4 v[184:187], v5, s[52:55], s6 offen offset:1024 sc1")
        a("v_cmp_gt_u32 vcc, 16, v2")
        a("v_lshlrev_b32 v5, 3, v2")
        a("s_lshl_b32 s6, s98, 8")
        a(f"s_add_u32 s6, s6, {WS_ML}")
        a("v_cndmask_b32 v176, v178, v176, vcc")
        a("v_cndmask_b32 v177, v179, v177, vcc")
        a("s_mov_b64 exec, 0xffffffff")
        a("buffer_store_dwordx2 v[176:177], v5, s[52:55], s6 offen sc1")
        a("s_mov_b64 exec, s[58:59]")
        a.label(f"L_fl_done_{tag}")

    def step(kslot, vslot, do_issue, wk, wv, tag):
        a("s_cmp_lg_u32 s13, s21")
        a(f"s_cbranch_scc1 L_nosw_{tag}")
        flushA(tag)
        a.label(f"L_nosw_{tag}")
        a("s_cmp_eq_u32 s15, 1000")
        a(f"s_cbranch_scc1 L_wk_{tag}")
        a("s_waitcnt vmcnt(0)")
        a.label(f"L_wk_{tag}")
        a(f"s_waitcnt vmcnt({wk})")
        a("v_mov_b32 v237, s13")
        a("ds_read_b32 v236, v235")
        if VX != 2: a("ds_write_b32 v238, v237")
        for j in range(8):
            a(f"ds_read_b128 v[{KF+4*j}:{KF+4*j+3}], v{KRA+(j&3)} offset:{kslot*8192 + (j>>2)*256}")
        for j in range(8):
            a(f"s_waitcnt lgkmcnt({7-j})")
            c = "0" if j == 0 else f"v[{SA}:{SA+3}]"
            a(f"v_mfma_f32_16x16x32_bf16 v[{SA}:{SA+3}], v[{KF+4*j}:{KF+4*j+3}], v[{QF+4*j}:{QF+4*j+3}], {c}")
        a("v_readfirstlane_b32 s6, v236")
        a("s_cmp_lg_u32 s6, -1")
        a(f"s_cbranch_scc1 L_nx_{tag}")
        a.label(f"L_nxs_{tag}")
        a("s_sleep 1")
        a("ds_read_b32 v236, v235")
        a("s_waitcnt lgkmcnt(0)")
        a("v_readfirstlane_b32 s6, v236")
        a("s_cmp_eq_u32 s6, -1")
        a(f"s_cbranch_scc1 L_nxs_{tag}")
        a.label(f"L_nx_{tag}")
        a("v_add_u32 v235, 4, v235")
        a("s_and_b32 s7, s6, 127")
        a("s_lshl_b32 s7, s7, 15")
        a("s_add_u32 s9, s20, s7")
        a("s_lshr_b32 s7, s6, 7")
        a("s_lshl_b32 s7, s7, 27")
        a("s_add_u32 s9, s9, s7")
        a("s_add_u32 s7, s13, 2")
        a("s_min_u32 s10, s7, s21")
        a("s_cmp_ge_u32 s6, 128")
        a("s_cselect_b32 s21, s10, s21")
        a("s_min_u32 s7, s7, s15")
        a("s_cmp_ge_u32 s6, 256")
        a("s_cselect_b32 s15, s7, s15")
        a(f"s_cbranch_scc1 L_noik_{tag}")
        issue("K", kslot)
        a.label(f"L_noik_{tag}")
        a("s_nop 3")
        a(f"v_cvt_pk_bf16_f32 v{T0}, v{SA}, v{SA+1}")
        a(f"v_cvt_pk_bf16_f32 v{T1}, v{SA+2}, v{SA+3}")
        a(f"v_lshlrev_b32 v{SA}, 16, v{T0}")
        a(f"v_and_b32 v{SA+1}, 0xffff0000, v{T0}")
        a(f"v_lshlrev_b32 v{SA+2}, 16, v{T1}")
        a(f"v_and_b32 v{SA+3}, 0xffff0000, v{T1}")
        a(f"v_max3_f32 v{T0}, v{SA}, v{SA+1}, v{SA+2}")
        a(f"v_max_f32 v{T0}, v{T0}, v{SA+3}")
        group_reduce(a, "v_max_f32", T0, T1)
        a(f"v_mul_f32 v{T0}, s14, v{T0}")
        a(f"v_max_f32 v{T0}, v{T0}, v{M}")
        a(f"v_sub_f32 v{AL}, v{M}, v{T0}")
        a(f"v_exp_f32 v{AL}, v{AL}")
        a(f"v_mov_b32 v{M}, v{T0}")
        for r in range(4):
            a(f"v_fma_f32 v{SA+r}, v{SA+r}, s14, -v{T0}")
        for r in range(4):
            a(f"v_exp_f32 v{SA+r}, v{SA+r}")
        a(f"v_cmp_neq_f32 vcc, 1.0, v{AL}")
        a(f"v_cvt_pk_bf16_f32 v{PB}, v{SA}, v{SA+1}")
        a(f"v_cvt_pk_bf16_f32 v{PB+1}, v{SA+2}, v{SA+3}")
        a(f"v_add_f32 v{T1}, v{SA}, v{SA+1}")
        a(f"v_add_f32 v{T2}, v{SA+2}, v{SA+3}")
        a(f"v_add_f32 v{T1}, v{T1}, v{T2}")
        a(f"v_fma_f32 v{L}, v{L}, v{AL}, v{T1}")
        a(f"s_cbranch_vccz L_nors_{tag}")
        for i in range(64):
            a(f"v_mul_f32 v{OA+i}, v{OA+i}, v{AL}")
        a.label(f"L_nors_{tag}")
        a("s_cmp_eq_u32 s15, 1000")
        a(f"s_cbranch_scc1 L_wv_{tag}")
        a("s_waitcnt vmcnt(0)")
        a.label(f"L_wv_{tag}")
        a(f"s_waitcnt vmcnt({wv})")
        for nn in range(16):
            a(f"ds_read_b64_tr_b16 v[{VF+2*nn}:{VF+2*nn+1}], v{VRA+(nn&7)} offset:{vslot*8192 + (nn>>3)*256}")
        for nn in range(16):
            a(f"s_waitcnt lgkmcnt({15-nn})")
            a(f"v_mfma_f32_16x16x16_bf16 v[{OA+4*nn}:{OA+4*nn+3}], v[{VF+2*nn}:{VF+2*nn+1}], v[{PB}:{PB+1}], v[{OA+4*nn}:{OA+4*nn+3}]")
        a("s_cmp_lg_u32 s15, 1000")
        a(f"s_cbranch_scc1 L_noiv_{tag}")
        issue("V", vslot)
        a.label(f"L_noiv_{tag}")

    a("s_mov_b32 s13, 0")
    a("s_mov_b32 s15, 1000")
    a("s_mov_b32 s21, 1000")
    a("s_mov_b32 s22, 0")
    a.label("L_loop")
    step(0, 1, True, 24, 24, "a")
    a("s_add_u32 s13, s13, 1")
    a("s_cmp_ge_u32 s13, s15")
    a("s_cbranch_scc1 L_loop_done")
    step(2, 3, True, 24, 24, "b")
    a("s_add_u32 s13, s13, 1")
    a("s_cmp_lt_u32 s13, s15")
    a("s_cbranch_scc1 L_loop")
    a.label("L_loop_done")
    a("s_cmp_lg_u32 s22, 0")
    a("s_cbranch_scc1 L_flushed")
    a("s_nop 7")
    flushA("e")
    a.label("L_flushed")
    a("s_waitcnt vmcnt(0)")
    if STAMP:
        a("s_cmp_lg_u32 s3, 0")
        a("s_cbranch_scc1 L_st6")
        stamp(a, 6)
        a.label("L_st6")
    group_reduce(a, "v_add_f32", L, T1)
    a("s_nop 7")
    a("v_cmp_gt_u32 vcc, 2, v3")
    a("v_lshlrev_b32 v5, 10, v3")
    a("v_lshl_add_u32 v5, v4, 4, v5")
    a("v_add_u32 v5, s8, v5")
    a("s_and_b64 exec, exec, vcc")
    for nn in range(16):
        a(f"ds_write_b128 v5, v[{OA+4*nn}:{OA+4*nn+3}] offset:{nn*64}")
    a("v_cmp_gt_u32 vcc, 2, v2")
    a("v_lshlrev_b32 v5, 3, v2")
    a("v_add_u32 v5, s8, v5")
    a("s_and_b64 exec, exec, vcc")
    a(f"ds_write_b64 v5, v[{M}:{M+1}] offset:2048")
    a("s_mov_b64 exec, s[58:59]")
    a("s_waitcnt lgkmcnt(0)")
    a("s_barrier")
    a("v_lshrrev_b32 v5, 7, v0")
    a("v_lshlrev_b32 v6, 3, v5")
    a("v_lshlrev_b32 v7, 3, v0")
    a("v_add_u32 v9, 0x10000, v6")
    a("v_add_u32 v10, 0x10000, v7")
    for w in range(4):
        a(f"ds_read_b64 v[{16+2*w}:{17+2*w}], v{6 if w<2 else 9} offset:{(w&1)*32768+2048}")
        a(f"ds_read_b64 v[{24+2*w}:{25+2*w}], v{7 if w<2 else 10} offset:{(w&1)*32768}")
    a("s_waitcnt lgkmcnt(0)")
    a("v_max_f32 v32, v16, v18")
    a("v_max3_f32 v32, v32, v20, v22")
    for w in range(4):
        a(f"v_sub_f32 v{16+2*w}, v{16+2*w}, v32")
        a(f"v_exp_f32 v{16+2*w}, v{16+2*w}")
    a("s_nop 0")
    a("v_mul_f32 v33, v16, v17")
    a("v_mul_f32 v34, v16, v24")
    a("v_mul_f32 v35, v16, v25")
    for w in range(1, 4):
        a(f"v_fmac_f32 v33, v{16+2*w}, v{17+2*w}")
        a(f"v_fmac_f32 v34, v{16+2*w}, v{24+2*w}")
        a(f"v_fmac_f32 v35, v{16+2*w}, v{25+2*w}")
    a("s_lshl_b32 s6, s98, 11")
    a(f"s_add_u32 s6, s6, {WS_OP + 32*2048}")
    a("buffer_store_dwordx2 v[34:35], v7, s[52:55], s6 offen sc1")
    a("v_and_b32 v8, 127, v0")
    a("v_cmp_gt_u32 vcc, 16, v8")
    a("v_lshlrev_b32 v8, 3, v8")
    a("v_lshl_add_u32 v8, v5, 7, v8")
    a("s_lshl_b32 s6, s98, 8")
    a(f"s_add_u32 s6, s6, {WS_ML + 32*256}")
    a("s_and_b64 exec, exec, vcc")
    a("s_cbranch_execz L_noml")
    a("buffer_store_dwordx2 v[32:33], v8, s[52:55], s6 offen sc1")
    a.label("L_noml")
    a("s_mov_b64 exec, s[58:59]")
    a("s_branch L_tail")

    a.label("L_helpers")
    a("s_memrealtime s[16:17]")
    a("v_lshlrev_b32 v5, 4, v2")
    a("v_mov_b32 v6, 0x7fff0000")
    a("v_cndmask_b32 v5, v6, v5, s[56:57]")
    a("s_sub_u32 s6, s3, 4")
    a("s_mul_i32 s15, s6, 1792")
    a("buffer_load_dwordx4 v[8:11], v5, s[60:63], s15 offen")
    a("buffer_load_dwordx4 v[12:15], v5, s[60:63], s15 offen offset:896")
    a("s_cmp_ge_u32 s38, 14")
    a("s_cselect_b32 s99, 1, 0")
    a("s_mul_i32 s6, s99, 14")
    a("s_sub_u32 s100, s38, s6")
    a("s_lshl_b32 s101, s4, 1")
    a("s_add_u32 s101, s101, s99")
    a("s_cmp_lg_u32 s3, 4")
    a("s_cbranch_scc1 L_h_not4")
    a("v_lshrrev_b32 v5, 1, v2")
    a("v_lshlrev_b32 v5, 13, v5")
    a("v_and_b32 v6, 1, v2")
    a("v_lshl_add_u32 v5, v6, 4, v5")
    a("s_lshl_b32 s6, s39, 5")
    a(f"s_mov_b32 s7, {L_WQ}")
    for p in range(14):
        a("s_mov_b32 m0, s7")
        a("s_add_u32 s7, s7, 1024")
        a("buffer_load_dwordx4 v5, s[64:67], s6 offen lds")
        a("s_add_u32 s6, s6, 0x40000")
    a(f"v_mov_b32 v5, {L_F}")
    for i in range(4):
        a(f"v_mov_b32 v{16+i}, 0")
    a("ds_write_b128 v5, v[16:19]")
    a("ds_write_b32 v5, v16 offset:16")
    a(f"s_mul_i32 s6, s97, {NSTAT}")
    a("v_add_u32 v16, s6, v2")
    a(f"v_cmp_gt_u32 vcc, {NSTAT}, v2")
    a("v_lshlrev_b32 v5, 2, v2")
    a(f"v_add_u32 v5, {L_NEXT}, v5")
    a("v_cndmask_b32 v16, -1, v16, vcc")
    if VX: a("v_add_u32 v16, s6, v2")
    if VX: a("v_max_u32 v16, v16, v16")
    if VX: a(f"v_mov_b32 v17, 0x1000")
    if VX: a("v_cndmask_b32 v16, v17, v16, vcc")
    a("v_mov_b32 v17, -1")
    a("ds_write_b32 v5, v16")
    a("ds_write_b32 v5, v17 offset:256")
    a("s_branch L_h_bar0")
    a.label("L_h_not4")
    a("s_cmp_lg_u32 s3, 6")
    a("s_cbranch_scc1 L_h_bar0")
    a("s_cmp_lg_u32 s97, 0")
    a("s_cbranch_scc1 L_nocinit")
    a("s_lshl_b32 s6, s4, 2")
    a("s_add_u32 s6, s6, s96")
    a("s_lshl_b32 s6, s6, 8")
    a(f"s_add_u32 s6, s6, {WS_CNT}")
    a("s_waitcnt lgkmcnt(0)")
    a("s_lshr_b64 s[18:19], s[16:17], 2")
    a("s_and_b32 s7, s18, 0xffffff00")
    a("v_mov_b32 v16, s7")
    a("v_mov_b32 v17, 0")
    a("s_mov_b64 exec, 1")
    a("buffer_store_dword v16, v17, s[52:55], s6 offen sc1")
    a("s_mov_b64 exec, s[58:59]")
    a.label("L_nocinit")
    a.label("L_h_bar0")
    a("s_waitcnt lgkmcnt(0)")
    if not LATE0: a("s_barrier")
    a("s_lshr_b64 s[16:17], s[16:17], 10")
    a("s_cmp_eq_u32 s3, 4")
    a("s_cbranch_scc1 L_h_w14")
    a("s_cmp_eq_u32 s3, 6")
    a("s_cbranch_scc1 L_h_w3")
    a("s_waitcnt vmcnt(0)")
    a("s_branch L_h_ln")
    a.label("L_h_w14")
    a(f"s_waitcnt vmcnt({0 if LATE0 else 14})")
    a("s_branch L_h_ln")
    a.label("L_h_w3")
    a("s_waitcnt vmcnt(1)")
    a("s_cmp_eq_u32 s97, 0")
    a("s_cbranch_scc1 L_h_ln")
    a("s_waitcnt vmcnt(0)")
    a.label("L_h_ln")
    if LATE0: a("s_barrier")
    unpack8(a, 8, 16)
    unpack8(a, 12, 24)
    layernorm8x2(a, 16, 24, (32, 33, 34), (35, 36, 37), 56)
    pack8(a, 16, 8)
    pack8(a, 24, 12)
    a("v_lshlrev_b32 v5, 4, v2")
    a(f"s_add_u32 s6, s15, {L_XN}")
    a("v_add_u32 v5, s6, v5")
    a("s_mov_b64 exec, s[56:57]")
    a("ds_write_b128 v5, v[8:11]")
    a("ds_write_b128 v5, v[12:15] offset:896")
    a("s_mov_b64 exec, 1")
    a(f"v_mov_b32 v5, {L_F}")
    a("v_mov_b32 v6, 1")
    a("s_waitcnt lgkmcnt(0)")
    a("ds_add_u32 v5, v6")
    a("s_mov_b64 exec, s[58:59]")
    a("s_lshl_b32 s7, s4, 5")
    a("v_mov_b32 v9, s7")
    a("v_mov_b32 v8, 1")
    a("s_cmp_eq_u32 s3, 4")
    a("s_cbranch_scc1 L_service")
    a("s_cmp_eq_u32 s3, 5")
    a("s_cbranch_scc1 L_w5")
    if IPF:
        a("s_cmp_lg_u32 s3, 7")
        a("s_cbranch_scc1 L_not7")
        assert IPF < NSTAT
        a(f"v_mov_b32 v5, {L_F+12}")
        a("s_mov_b32 s13, 0")
        a.label("L_w7s")
        a("s_sleep 32")
        a("ds_read_b32 v6, v5")
        a("s_add_u32 s13, s13, 1")
        a("s_waitcnt lgkmcnt(0)")
        a("v_readfirstlane_b32 s6, v6")
        a("s_cmp_ge_u32 s13, 0x10000")
        a("s_cbranch_scc1 L_w7s_d")
        a(f"s_cmp_lt_u32 s6, {IPF}")
        a("s_cbranch_scc1 L_w7s")
        a.label("L_w7s_d")
        a("s_getpc_b64 s[36:37]")
        a.label("L_pc0")
        a("s_add_u32 s36, s36, L_loop_done-L_pc0")
        a("s_addc_u32 s37, s37, -1")
        a("s_mov_b32 s6, 0")
        a.label("L_pf1")
        a("s_load_dwordx16 s[20:35], s[36:37], s6")
        a("s_add_u32 s6, s6, 64")
        a("s_cmp_lt_u32 s6, L_helpers-L_loop_done")
        a("s_cbranch_scc1 L_pf1")
        a("s_waitcnt lgkmcnt(0)")
        a("s_getpc_b64 s[36:37]")
        a.label("L_pc1")
        a("s_add_u32 s36, s36, L_tail-L_pc1")
        a("s_addc_u32 s37, s37, 0")
        a("s_mov_b32 s6, 0")
        a.label("L_pf2")
        a("s_load_dwordx16 s[20:35], s[36:37], s6")
        a("s_add_u32 s6, s6, 64")
        a("s_cmp_lt_u32 s6, L_done-L_tail")
        a("s_cbranch_scc1 L_pf2")
        a("s_waitcnt lgkmcnt(0)")
        a("s_branch L_h_bar3")
        a.label("L_not7")
    a("s_cmp_lg_u32 s3, 6")
    a("s_cbranch_scc1 L_h_bar3")
    if VX == 4: a("s_branch L_h_bar3")
    for i in range(4):
        a(f"v_mov_b32 v{16+i}, -1")
    a("v_lshlrev_b32 v6, 4, v2")
    a("s_lshl_b32 s6, s98, 11")
    a(f"s_add_u32 s6, s6, {WS_OP}")
    a("buffer_store_dwordx4 v[16:19], v6, s[52:55], s6 offen sc1")
    a("buffer_store_dwordx4 v[16:19], v6, s[52:55], s6 offen offset:1024 sc1")
    a("s_add_u32 s6, s6, 0x10000")
    a("buffer_store_dwordx4 v[16:19], v6, s[52:55], s6 offen sc1")
    a("buffer_store_dwordx4 v[16:19], v6, s[52:55], s6 offen offset:1024 sc1")
    a("s_lshl_b32 s6, s98, 8")
    a(f"s_add_u32 s6, s6, {WS_ML}")
    a("s_add_u32 s7, s6, 0x2000")
    a("s_mov_b64 exec, 0xffff")
    a("buffer_store_dwordx4 v[16:19], v6, s[52:55], s6 offen sc1")
    a("buffer_store_dwordx4 v[16:19], v6, s[52:55], s7 offen sc1")
    a("s_mov_b64 exec, s[58:59]")
    a("s_cmp_ge_u32 s38, 28")
    a("s_cbranch_scc1 L_clr_done")
    a("s_lshl_b32 s6, s4, 1")
    a("s_mul_i32 s6, s6, 14")
    a("s_add_u32 s6, s6, s38")
    a("s_lshl_b32 s6, s6, 10")
    a(f"s_add_u32 s6, s6, {WS_P2}")
    a("buffer_store_dwordx4 v[16:19], v6, s[52:55], s6 offen sc1")
    a.label("L_clr_done")
    a("s_mov_b64 exec, 1")
    a("s_waitcnt vmcnt(0)")
    a("buffer_atomic_add v8, v9, s[72:75], 0 offen sc1")
    a("s_mov_b64 exec, s[58:59]")
    a("s_branch L_h_bar3")
    a.label("L_w5")
    a(f"v_mov_b32 v5, {L_F+12}")
    a("s_mov_b32 s13, 0")
    a.label("L_w5s")
    a("s_sleep 32")
    a("ds_read_b32 v6, v5")
    a("s_add_u32 s13, s13, 1")
    a("s_waitcnt lgkmcnt(0)")
    a("v_readfirstlane_b32 s6, v6")
    a("s_cmp_ge_u32 s13, 56")
    a("s_cbranch_scc1 L_w5s_d")
    a("s_cmp_lt_u32 s6, 20")
    a("s_cbranch_scc1 L_w5s")
    a.label("L_w5s_d")
    a("v_lshlrev_b32 v9, 5, v2")
    a("v_cmp_gt_u32 vcc, 8, v2")
    a("s_mov_b32 s13, 0")
    a("s_and_b64 exec, exec, vcc")
    a.label("L_pollall")
    a("buffer_load_dword v10, v9, s[72:75], 0 offen sc1")
    a("s_add_u32 s13, s13, 1")
    a("s_waitcnt vmcnt(0)")
    a("v_cmp_gt_u32 vcc, 64, v10")
    a(f"s_cmp_ge_u32 s13, {SPIN_MAX}")
    a("s_cbranch_scc1 L_pollall_done")
    a("s_cbranch_vccz L_pollall_done")
    a("s_sleep 64")
    a("s_branch L_pollall")
    a.label("L_pollall_done")
    a("s_mov_b64 exec, s[58:59]")
    stamp(a, 12, 236, 237)
    a.label("L_h_bar3")
    a("s_barrier")
    a("s_branch L_tail")

    a.label("L_service")
    a("v_bfe_u32 v6, v2, 2, 2")
    a("v_lshl_add_u32 v6, v4, 3, v6")
    a("v_lshlrev_b32 v6, 5, v6")
    a("v_and_b32 v7, 3, v2")
    a("v_lshl_add_u32 v6, v7, 3, v6")
    a(f"v_add_u32 v10, {L_WQ}, v6")
    a("v_and_b32 v7, 7, v2")
    a("v_mul_u32_u24 v7, 896, v7")
    a("v_lshl_add_u32 v7, v4, 4, v7")
    a(f"v_add_u32 v7, {L_XN}, v7")
    a("s_waitcnt vmcnt(0)")
    stamp(a, 1, 236, 237)
    for j in range(14):
        a(f"ds_read_b64_tr_b16 v[{40+4*j}:{41+4*j}], v10 offset:{j*1024}")
        a(f"ds_read_b64_tr_b16 v[{42+4*j}:{43+4*j}], v10 offset:{j*1024+128}")
    ldsspin(0, 4, "L_spin0")
    stamp(a, 2, 236, 237)
    for j in range(14):
        a(f"ds_read_b128 v[{100+4*j}:{103+4*j}], v7 offset:{j*64}")
    for j in range(14):
        a(f"s_waitcnt lgkmcnt({13-j})")
        c = "0" if j == 0 else "v[32:35]"
        a(f"v_mfma_f32_16x16x32_bf16 v[32:35], v[{40+4*j}:{43+4*j}], v[{100+4*j}:{103+4*j}], {c}")
    a("v_cmp_gt_u32 vcc, 8, v3")
    a("v_lshlrev_b32 v5, 6, v3")
    a("v_lshl_add_u32 v5, v4, 4, v5")
    a("s_lshl_b32 s6, s39, 9")
    a("v_mov_b32 v37, s16")
    a("v_mov_b32 v39, s16")
    a(f"v_mov_b32 v6, {L_F+4}")
    a("s_sub_u32 s17, s16, 2")
    a("s_nop 1")
    a("v_cvt_pk_bf16_f32 v36, v32, v33")
    a("v_cvt_pk_bf16_f32 v38, v34, v35")
    a("s_and_b64 exec, exec, vcc")
    a(f"buffer_store_dwordx4 v[36:39], v5, s[52:55], s6 offen offset:{WS_Q} sc1")
    a("s_mov_b64 exec, 1")
    a("ds_write_b32 v6, v8")
    a("s_mov_b64 exec, s[58:59]")
    stamp(a, 3, 236, 237)
    a("v_lshrrev_b32 v5, 1, v2")
    a("v_lshlrev_b32 v5, 9, v5")
    a("v_and_b32 v6, 1, v2")
    a("v_lshl_add_u32 v5, v6, 5, v5")
    a("s_lshl_b32 s6, s96, 6")
    a("s_lshl_b32 s7, s4, 14")
    a("s_add_u32 s15, s6, s7")
    a("s_mov_b32 s13, 0")
    def qld():
        a(f"buffer_load_dwordx4 v[12:15], v5, s[52:55], s15 offen offset:{WS_Q} sc1")
        a(f"buffer_load_dwordx4 v[16:19], v5, s[52:55], s15 offen offset:{WS_Q+16} sc1")
        a(f"buffer_load_dwordx4 v[24:27], v5, s[52:55], s15 offen offset:{WS_Q+256} sc1")
        a(f"buffer_load_dwordx4 v[28:31], v5, s[52:55], s15 offen offset:{WS_Q+272} sc1")
    a.label("L_pollq")
    qld()
    a("s_waitcnt vmcnt(0)")
    a("s_cmp_lg_u32 s13, 2047")
    a("s_cbranch_scc1 L_pq_noat")
    a("s_mov_b64 exec, 1")
    a("buffer_atomic_add v8, v9, s[72:75], 0 offen sc1")
    a("s_mov_b64 exec, s[58:59]")
    a.label("L_pq_noat")
    a("s_add_u32 s13, s13, 1")
    for i, r in enumerate((13, 15, 17, 19, 25, 27, 29, 31)):
        a(f"v_subrev_u32 v{36+i}, s17, v{r}")
    a("v_max3_u32 v20, v36, v37, v38")
    a("v_max3_u32 v20, v20, v39, v40")
    a("v_max3_u32 v20, v20, v41, v42")
    a("v_max_u32 v20, v20, v43")
    a("v_cmp_lt_u32 vcc, 4, v20")
    a("s_cbranch_vccz L_pollq_done")
    a("s_cmp_lt_u32 s13, 2048")
    a("s_cbranch_scc1 L_pollq")
    a("buffer_load_dword v10, v9, s[72:75], 0 offen sc1")
    a("s_waitcnt vmcnt(0)")
    a("v_readfirstlane_b32 s6, v10")
    a(f"s_cmp_ge_u32 s13, {SPIN_MAX}")
    a("s_cbranch_scc1 L_pollq_done")
    a("s_cmp_ge_u32 s6, 64")
    a("s_cbranch_scc0 L_pollq")
    qld()
    a("s_waitcnt vmcnt(0)")
    a.label("L_pollq_done")
    stamp(a, 4, 236, 237)
    a("v_mov_b32 v13, v14")
    a("v_mov_b32 v14, v16")
    a("v_mov_b32 v15, v18")
    a("v_mov_b32 v25, v26")
    a("v_mov_b32 v26, v28")
    a("v_mov_b32 v27, v30")
    a("v_lshlrev_b32 v5, 4, v2")
    a(f"v_add_u32 v5, {L_QL}, v5")
    a(f"v_mov_b32 v6, {L_F+8}")
    a("ds_write_b128 v5, v[12:15]")
    a("ds_write_b128 v5, v[24:27] offset:1024")
    a("s_waitcnt lgkmcnt(0)")
    a("s_mov_b64 exec, 1")
    a("ds_write_b32 v6, v8")
    a("s_cmp_ge_u32 s13, 2048")
    a("s_cbranch_scc1 L_pq_noat2")
    a("buffer_atomic_add v8, v9, s[72:75], 0 offen sc1")
    a.label("L_pq_noat2")
    a("s_mov_b64 exec, s[58:59]")
    stamp(a, 5, 236, 237)
    a("s_cmp_ge_u32 s38, 28")
    a("s_cbranch_scc1 L_nowo")
    a("v_lshrrev_b32 v5, 2, v2")
    a("v_mul_u32_u24 v5, 896, v5")
    a("v_and_b32 v6, 3, v2")
    a("v_lshl_add_u32 v5, v6, 4, v5")
    a("s_mul_i32 s6, s101, 229376")
    a("s_lshl_b32 s7, s100, 6")
    a("s_add_u32 s6, s6, s7")
    a(f"s_mov_b32 s7, {L_WO}")
    for p in range(16):
        a("s_mov_b32 m0, s7")
        a("s_add_u32 s7, s7, 1024")
        a("buffer_load_dwordx4 v5, s[68:71], s6 offen lds")
        a("s_add_u32 s6, s6, 14336")
    a.label("L_nowo")
    if VX: a("s_branch L_skipdyn")
    a("s_lshl_b32 s6, s4, 2")
    a("s_add_u32 s6, s6, s96")
    a("s_lshl_b32 s6, s6, 8")
    a(f"s_add_u32 s25, s6, {WS_CNT}")
    a("v_mov_b32 v14, 0")
    a("s_mov_b32 s13, 0")
    a.label("L_pcnt")
    a("buffer_load_dword v10, v14, s[52:55], s25 offen sc1")
    a("s_add_u32 s13, s13, 1")
    a("s_waitcnt vmcnt(0)")
    a("v_readfirstlane_b32 s6, v10")
    a("s_lshr_b32 s6, s6, 8")
    a("s_sub_u32 s6, s6, s17")
    a("s_and_b32 s6, s6, 0xffffff")
    a("s_cmp_le_u32 s6, 4")
    a("s_cbranch_scc1 L_pcnt_done")
    a("s_sleep 16")
    a("s_cmp_lt_u32 s13, 1024")
    a("s_cbranch_scc1 L_pcnt")
    a("buffer_load_dword v10, v9, s[72:75], 0 offen sc1")
    a("s_waitcnt vmcnt(0)")
    a("v_readfirstlane_b32 s6, v10")
    a(f"s_cmp_ge_u32 s13, {SPIN_MAX}")
    a("s_cbranch_scc1 L_pcnt_done")
    a("s_cmp_ge_u32 s6, 64")
    a("s_cbranch_scc0 L_pcnt")
    a.label("L_pcnt_done")
    a("s_mov_b32 s22, 1")
    a(f"s_mov_b32 s23, {NSTAT}")
    a(f"s_mov_b32 s24, {NSTAT}")
    a(f"v_mov_b32 v11, {L_F+12}")
    a("v_mov_b32 v10, s22")
    a("s_waitcnt vmcnt(0)")
    a.label("L_dyn")
    a("ds_read_b32 v6, v11")
    a("s_waitcnt lgkmcnt(0)")
    a("v_readfirstlane_b32 s6, v6")
    a(f"s_add_u32 s6, s6, {LOOK}")
    a("s_cmp_ge_u32 s6, s23")
    a("s_cbranch_scc1 L_dyn_go")
    a("s_sleep 4")
    a("s_branch L_dyn")
    a.label("L_dyn_go")
    if STAMP:
        a(f"s_cmp_lg_u32 s23, {NSTAT}")
        a("s_cbranch_scc1 L_sq1")
        a("s_memrealtime s[26:27]")
        a("s_waitcnt lgkmcnt(0)")
        a.label("L_sq1")
    a(f"s_sub_u32 s6, s23, {NSTAT}")
    a("s_lshl_b64 exec, 1, s6")
    a("buffer_atomic_add v10, v14, s[52:55], s25 offen sc0 sc1")
    a("s_mov_b64 exec, s[58:59]")
    a("s_add_u32 s23, s23, 1")
    a("s_sub_u32 s6, s23, s24")
    a(f"s_cmp_le_u32 s6, {DEPTH}")
    a("s_cbranch_scc1 L_dyn")
    a(f"s_waitcnt vmcnt({DEPTH})")
    if STAMP:
        a(f"s_cmp_lg_u32 s24, {NSTAT}")
        a("s_cbranch_scc1 L_sq2")
        a("s_memrealtime s[28:29]")
        a("s_waitcnt lgkmcnt(0)")
        a.label("L_sq2")
    a(f"s_sub_u32 s6, s24, {NSTAT}")
    a("v_readlane_b32 s6, v10, s6")
    a("s_and_b32 s6, s6, 0xff")
    a(f"s_add_u32 s7, s6, {8*NSTAT}")
    a(f"s_cmp_lt_u32 s6, {256-8*NSTAT}")
    a("s_cselect_b32 s7, s7, 0x1000")
    a("s_lshl_b32 s6, s24, 2")
    a(f"s_add_u32 s6, s6, {L_NEXT}")
    a("v_mov_b32 v12, s6")
    a("v_mov_b32 v13, s7")
    a("ds_write_b32 v12, v13")
    a("s_add_u32 s24, s24, 1")
    a("s_cmp_lt_u32 s7, 256")
    a("s_cbranch_scc1 L_dyn")
    a("v_add_u32 v12, 4, v12")
    a("ds_write_b32 v12, v13")
    a("s_waitcnt vmcnt(0) lgkmcnt(0)")
    if STAMP:
        stamp(a, 16, 236, 237)
        for (sr, idx) in ((26, 14), (28, 15)):
            a(f"v_mov_b32 v236, s{sr}")
            a("s_lshl_b32 s42, s2, 7")
            a(f"s_add_u32 s42, s42, {0x200000 + idx*4}")
            a("v_mov_b32 v237, 0")
            a("s_mov_b64 exec, 1")
            a("buffer_store_dword v236, v237, s[52:55], s42 offen")
            a("s_mov_b64 exec, s[58:59]")
    a.label("L_skipdyn")
    a("s_waitcnt vmcnt(0)")
    a("s_barrier")
    stamp(a, 7, 236, 237)

    a.label("L_tail")
    a("s_cmp_ge_u32 s38, 14")
    a("s_cselect_b32 s99, 1, 0")
    a("s_mul_i32 s6, s99, 14")
    a("s_sub_u32 s100, s38, s6")
    a("s_lshl_b32 s101, s4, 1")
    a("s_add_u32 s101, s101, s99")
    a("s_cmp_eq_u32 s3, 7")
    a("s_cbranch_scc1 L_now")
    a("v_mul_u32_u24 v5, 56, v2")
    for (base, sr) in ((128, 80), (144, 84), (160, 88)):
        for i in range(3):
            a(f"buffer_load_dwordx4 v[{base+4*i}:{base+4*i+3}], v5, s[{sr}:{sr+3}], 0 offen offset:{16*i}")
        a(f"buffer_load_dwordx2 v[{base+12}:{base+13}], v5, s[{sr}:{sr+3}], 0 offen offset:48")
    a("v_mov_b32 v6, 0")
    a("buffer_load_ushort v174, v6, s[92:95], 0 offen")
    a.label("L_now")
    a("s_cmp_ge_u32 s38, 28")
    a("s_cbranch_scc1 L_stageD")
    a("s_cmp_ge_u32 s3, 4")
    a("s_cbranch_scc1 L_bar4")
    a("v_lshrrev_b32 v5, 5, v0")
    a("v_and_b32 v6, 31, v0")
    a("v_lshlrev_b32 v7, 14, v5")
    a("v_lshl_add_u32 v7, v6, 5, v7")
    a("v_lshlrev_b32 v8, 11, v5")
    a("s_lshl_b32 s10, s4, 17")
    a("s_lshl_b32 s11, s99, 10")
    a("s_add_u32 s10, s10, s11")
    a(f"s_add_u32 s20, s10, {WS_OP}")
    a("s_add_u32 s21, s20, 4096")
    a("s_add_u32 s22, s20, 8192")
    a("s_add_u32 s23, s20, 12288")
    a("s_lshl_b32 s12, s4, 14")
    a("s_lshl_b32 s6, s99, 7")
    a("s_add_u32 s12, s12, s6")
    a(f"s_add_u32 s12, s12, {WS_ML}")
    a("v_lshlrev_b32 v9, 8, v2")
    a("s_mov_b32 s13, 0")
    a.label("L_pollC0")
    a("buffer_load_dwordx2 v[16:17], v9, s[52:55], s12 offen sc1")
    a("s_add_u32 s13, s13, 1")
    a("s_waitcnt vmcnt(0)")
    anysent(a, range(16, 18), 96)
    a("v_cmp_eq_u32 vcc, -1, v96")
    a(f"s_cmp_ge_u32 s13, {SPIN_MAX}")
    a("s_cbranch_scc1 L_pollC")
    a("s_cbranch_vccz L_pollC")
    a("s_sleep 8")
    a("s_branch L_pollC0")
    a.label("L_pollC")
    if STAMP:
        a("s_cmp_lg_u32 s3, 0")
        a("s_cbranch_scc1 L_st19")
        stamp(a, 19)
        a.label("L_st19")
    for jj in range(8):
        a(f"buffer_load_dwordx2 v[{80+2*jj}:{81+2*jj}], v8, s[52:55], s12 offen offset:{jj*256} sc1")
    for jj in range(8):
        a(f"buffer_load_dwordx4 v[{16+8*jj}:{19+8*jj}], v7, s[52:55], s{20+(jj>>1)} offen offset:{(jj&1)*2048} sc1")
        a(f"buffer_load_dwordx4 v[{20+8*jj}:{23+8*jj}], v7, s[52:55], s{20+(jj>>1)} offen offset:{(jj&1)*2048+16} sc1")
    a("s_add_u32 s13, s13, 1")
    a("s_waitcnt vmcnt(0)")
    anysent(a, range(16, 96), 96)
    a("v_cmp_eq_u32 vcc, -1, v96")
    a(f"s_cmp_ge_u32 s13, {SPIN_MAX}")
    a("s_cbranch_scc1 L_pollC_done")
    a("s_cbranch_vccz L_pollC_done")
    a("s_sleep 4")
    a("s_branch L_pollC")
    a.label("L_pollC_done")
    if STAMP:
        a("s_cmp_lg_u32 s3, 0")
        a("s_cbranch_scc1 L_st8")
        stamp(a, 8)
        a.label("L_st8")
    a("v_max3_f32 v96, v80, v82, v84")
    a("v_max3_f32 v96, v96, v86, v88")
    a("v_max3_f32 v96, v96, v90, v92")
    a("v_max_f32 v96, v96, v94")
    for jj in range(8):
        a(f"v_sub_f32 v{80+2*jj}, v{80+2*jj}, v96")
    for jj in range(8):
        a(f"v_exp_f32 v{80+2*jj}, v{80+2*jj}")
    a("s_nop 0")
    a("v_mul_f32 v97, v80, v81")
    for jj in range(1, 8):
        a(f"v_fmac_f32 v97, v{80+2*jj}, v{81+2*jj}")
    a("v_rcp_f32 v97, v97")
    a("s_nop 0")
    for jj in range(8):
        a(f"v_mul_f32 v{80+2*jj}, v{80+2*jj}, v97")
    for i in range(8):
        a(f"v_mul_f32 v{100+i}, v80, v{16+i}")
        for jj in range(1, 8):
            a(f"v_fmac_f32 v{100+i}, v{80+2*jj}, v{16+8*jj+i}")
    pack8(a, 100, 108)
    a("v_lshlrev_b32 v6, 4, v0")
    a(f"v_add_u32 v6, {L_O}, v6")
    a("ds_write_b128 v6, v[108:111]")
    a("s_waitcnt lgkmcnt(0)")
    a.label("L_bar4")
    a("s_barrier")
    a("s_cmp_lg_u32 s3, 0")
    a("s_cbranch_scc1 L_stageD")
    a("v_bfe_u32 v5, v2, 2, 2")
    a("v_lshl_add_u32 v5, v4, 3, v5")
    a("v_lshlrev_b32 v5, 6, v5")
    a("v_and_b32 v6, 3, v2")
    a("v_lshl_add_u32 v5, v6, 3, v5")
    a(f"v_add_u32 v5, {L_WO}, v5")
    a("v_and_b32 v6, 7, v2")
    a("v_lshlrev_b32 v6, 9, v6")
    a("v_lshl_add_u32 v6, v4, 4, v6")
    a(f"v_add_u32 v6, {L_O}, v6")
    for j in range(8):
        a(f"ds_read_b128 v[{48+4*j}:{51+4*j}], v6 offset:{j*64}")
        a(f"ds_read_b64_tr_b16 v[{16+4*j}:{17+4*j}], v5 offset:{j*2048}")
        a(f"ds_read_b64_tr_b16 v[{18+4*j}:{19+4*j}], v5 offset:{j*2048+256}")
        a(f"ds_read_b64_tr_b16 v[{88+4*j}:{89+4*j}], v5 offset:{j*2048+32}")
        a(f"ds_read_b64_tr_b16 v[{90+4*j}:{91+4*j}], v5 offset:{j*2048+256+32}")
    a("s_waitcnt lgkmcnt(0)")
    for j in range(8):
        c0 = "0" if j == 0 else "v[80:83]"
        c1 = "0" if j == 0 else "v[84:87]"
        a(f"v_mfma_f32_16x16x32_bf16 v[80:83], v[{16+4*j}:{19+4*j}], v[{48+4*j}:{51+4*j}], {c0}")
        a(f"v_mfma_f32_16x16x32_bf16 v[84:87], v[{88+4*j}:{91+4*j}], v[{48+4*j}:{51+4*j}], {c1}")
    a("v_cmp_gt_u32 vcc, 8, v3")
    a("v_lshlrev_b32 v5, 7, v3")
    a("v_lshl_add_u32 v5, v4, 4, v5")
    a(f"v_add_u32 v5, {L_QL}, v5")
    a("v_lshlrev_b32 v6, 4, v2")
    a(f"v_add_u32 v7, {L_QL}, v6")
    a("s_lshl_b32 s6, s4, 1")
    a("s_mul_i32 s6, s6, 14")
    a("s_add_u32 s6, s6, s38")
    a("s_lshl_b32 s6, s6, 10")
    a(f"s_add_u32 s6, s6, {WS_P2}")
    a("s_and_b64 exec, exec, vcc")
    a("ds_write_b128 v5, v[80:83]")
    a("ds_write_b128 v5, v[84:87] offset:64")
    a("s_mov_b64 exec, s[58:59]")
    a("s_waitcnt lgkmcnt(0)")
    a("ds_read_b128 v[80:83], v7")
    a("s_waitcnt lgkmcnt(0)")
    a("buffer_store_dwordx4 v[80:83], v6, s[52:55], s6 offen sc1")
    if STAMP:
        a("s_cmp_lg_u32 s3, 0")
        a("s_cbranch_scc1 L_st9")
        stamp(a, 9)
        a("s_waitcnt vmcnt(0)")
        stamp(a, 18)
        a.label("L_st9")

    a.label("L_stageD")
    a("s_lshr_b32 s96, s2, 5")
    a("s_and_b32 s97, s2, 31")
    a("s_cmp_lg_u32 s3, 7")
    a("s_cbranch_scc1 L_bar5")
    a("v_lshrrev_b32 v5, 2, v2")
    a("v_lshlrev_b32 v5, 10, v5")
    a("v_and_b32 v6, 3, v2")
    a("v_lshl_add_u32 v5, v6, 5, v5")
    a("v_mov_b32 v6, 0x7fff0000")
    a("v_cndmask_b32 v5, v6, v5, s[56:57]")
    a("v_lshlrev_b32 v7, 4, v2")
    a("v_cndmask_b32 v7, v6, v7, s[56:57]")
    a("s_mul_i32 s6, s96, 896")
    a("buffer_load_dwordx4 v[8:11], v7, s[60:63], s6 offen")
    a("s_mov_b32 s13, 0")
    a.label("L_pollD")
    a("s_lshl_b32 s6, s96, 7")
    a(f"s_add_u32 s6, s6, {WS_P2}")
    for h in range(16):
        a(f"buffer_load_dwordx4 v[{128+8*h}:{131+8*h}], v5, s[52:55], s6 offen sc1")
        a(f"buffer_load_dwordx4 v[{132+8*h}:{135+8*h}], v5, s[52:55], s6 offen offset:16 sc1")
        a("s_add_u32 s6, s6, 14336")
    a("s_add_u32 s13, s13, 1")
    a("s_waitcnt vmcnt(0)")
    anysent(a, range(128, 256), 12)
    a("v_cmp_eq_u32 vcc, -1, v12")
    a(f"s_cmp_ge_u32 s13, {SPIN_MAX}")
    a("s_cbranch_scc1 L_pollD_done")
    a("s_cbranch_vccz L_pollD_done")
    a("s_sleep 4")
    a("s_branch L_pollD")
    a.label("L_pollD_done")
    stamp(a, 10, 13, 14)
    for h in range(1, 16):
        for i in range(8):
            a(f"v_add_f32 v{128+i}, v{128+i}, v{128+8*h+i}")
    unpack8(a, 8, 16)
    for i in range(0, 8, 2):
        bf16r2(a, 128+i, 129+i, 12)
        a(f"v_add_f32 v{16+i}, v{16+i}, v{128+i}")
        a(f"v_add_f32 v{17+i}, v{17+i}, v{129+i}")
        bf16r2(a, 16+i, 17+i, 12)
    a("v_lshlrev_b32 v5, 5, v2")
    a(f"v_add_u32 v5, {L_H}, v5")
    a("s_mov_b64 exec, s[56:57]")
    a("ds_write_b128 v5, v[16:19]")
    a("ds_write_b128 v5, v[20:23] offset:16")
    a("s_mov_b64 exec, s[58:59]")
    layernorm8(a, 16, 32, 33, 34, 56)
    for i in range(8):
        a(f"v_cndmask_b32 v{16+i}, 0, v{16+i}, s[56:57]")
    layernorm8(a, 16, 32, 33, 34, 56)
    a("s_mov_b64 exec, s[56:57]")
    a(f"ds_write_b128 v5, v[16:19] offset:{L_T-L_H}")
    a(f"ds_write_b128 v5, v[20:23] offset:{L_T-L_H+16}")
    a("s_mov_b64 exec, s[58:59]")
    a("s_waitcnt lgkmcnt(0)")
    stamp(a, 11, 13, 14)
    a("s_barrier")
    a("s_branch L_done")
    a.label("L_bar5")
    a("s_waitcnt vmcnt(0)")
    for i in range(14):
        a(f"v_lshlrev_b32 v{16+2*i}, 16, v{128+i}")
        a(f"v_and_b32 v{17+2*i}, 0xffff0000, v{128+i}")
        a(f"v_lshlrev_b32 v{44+2*i}, 16, v{144+i}")
        a(f"v_and_b32 v{45+2*i}, 0xffff0000, v{144+i}")
    a("v_lshlrev_b32 v174, 16, v174")
    C1 = -2.0 * LOG2E * math.sqrt(2.0/math.pi)
    C2 = C1 * 0.044715
    a(f"v_mov_b32 v72, {hex(f2u(C1))}")
    a(f"v_mov_b32 v73, {hex(f2u(C1))}")
    a(f"v_mov_b32 v74, {hex(f2u(C2))}")
    a(f"v_mov_b32 v75, {hex(f2u(C2))}")
    a("v_mov_b32 v76, 1.0")
    a("v_mov_b32 v77, 1.0")
    a("v_mov_b32 v78, 0")
    a("v_mov_b32 v79, 0")
    a("s_mul_i32 s6, s97, 56")
    a("s_lshl_b32 s7, s3, 3")
    a("s_add_u32 s6, s6, s7")
    a(f"s_add_u32 s6, s6, {L_H}")
    a("v_mov_b32 v5, s6")
    a("s_barrier")
    a(f"ds_read_b64 v[80:81], v5 offset:{L_T-L_H}")
    a("ds_read_b64 v[82:83], v5")
    a("s_waitcnt lgkmcnt(0)")
    for i in range(14):
        U = [84, 92]; Tt = [86, 94]; C = [88, 96]
        for d in range(2):
            osel = "op_sel_hi:[0,1]" if d == 0 else "op_sel:[1,0] op_sel_hi:[1,1]"
            a(f"v_pk_mul_f32 v[{U[d]}:{U[d]+1}], v[80:81], v[{16+2*i}:{17+2*i}] {osel}")
        for d in range(2):
            bf16r2(a, U[d], U[d]+1, C[d])
        for d in range(2):
            a(f"v_pk_add_f32 v[{U[d]}:{U[d]+1}], v[{U[d]}:{U[d]+1}], v[{44+2*i}:{45+2*i}]")
        for d in range(2):
            bf16r2(a, U[d], U[d]+1, C[d])
        for d in range(2):
            a(f"v_pk_mul_f32 v[{Tt[d]}:{Tt[d]+1}], v[{U[d]}:{U[d]+1}], v[{U[d]}:{U[d]+1}]")
        for d in range(2):
            a(f"v_pk_fma_f32 v[{Tt[d]}:{Tt[d]+1}], v[{Tt[d]}:{Tt[d]+1}], v[74:75], v[72:73]")
        for d in range(2):
            a(f"v_pk_mul_f32 v[{Tt[d]}:{Tt[d]+1}], v[{Tt[d]}:{Tt[d]+1}], v[{U[d]}:{U[d]+1}]")
        for d in range(2):
            a(f"v_exp_f32 v{Tt[d]}, v{Tt[d]}")
            a(f"v_exp_f32 v{Tt[d]+1}, v{Tt[d]+1}")
        for d in range(2):
            a(f"v_pk_add_f32 v[{Tt[d]}:{Tt[d]+1}], v[{Tt[d]}:{Tt[d]+1}], v[76:77]")
        for d in range(2):
            a(f"v_rcp_f32 v{Tt[d]}, v{Tt[d]}")
            a(f"v_rcp_f32 v{Tt[d]+1}, v{Tt[d]+1}")
        for d in range(2):
            a(f"v_pk_mul_f32 v[{Tt[d]}:{Tt[d]+1}], v[{Tt[d]}:{Tt[d]+1}], v[{U[d]}:{U[d]+1}]")
        for d in range(2):
            a(f"v_cvt_pk_bf16_f32 v{C[d]}, v{Tt[d]}, v{Tt[d]+1}")
        for d in range(2):
            a(f"v_dot2_f32_bf16 v{78+d}, v{C[d]}, v{160+i}, v{78+d}")
    a("s_nop 3")
    wave_reduce2(a, "v_add_f32", 78, 84, 79, 85)
    bf16r2(a, 78, 79, 84)
    a("v_add_f32 v78, v78, v174")
    a("v_add_f32 v79, v79, v174")
    bf16r2(a, 78, 79, 84)
    a("v_add_f32 v78, v78, v82")
    a("v_add_f32 v79, v79, v83")
    a("v_cvt_pk_bf16_f32 v78, v78, v79")
    a("s_mul_i32 s6, s96, 896")
    a("s_mul_i32 s7, s97, 28")
    a("s_add_u32 s6, s6, s7")
    a("s_lshl_b32 s7, s3, 2")
    a("s_add_u32 s6, s6, s7")
    a("v_mov_b32 v5, 0")
    a("s_mov_b64 exec, 1")
    a("buffer_store_dword v78, v5, s[76:79], s6 offen")
    if STAMP:
        a("s_cmp_lg_u32 s3, 0")
        a("s_cbranch_scc1 L_done")
        stamp(a, 13)
    a.label("L_done")
    a("s_endpgm")
    a.raw(".section .rodata,\"a\"")
    a.raw(".p2align 6")
    a.raw(f".amdhsa_kernel {n}")
    a.raw("  .amdhsa_next_free_vgpr 256")
    a.raw("  .amdhsa_next_free_sgpr 102")
    a.raw("  .amdhsa_accum_offset 256")
    a.raw("  .amdhsa_group_segment_fixed_size 0")
    a.raw("  .amdhsa_kernarg_size 104")
    a.raw("  .amdhsa_user_sgpr_count 2")
    a.raw("  .amdhsa_user_sgpr_kernarg_segment_ptr 1")
    a.raw("  .amdhsa_system_sgpr_workgroup_id_x 1")
    a.raw(".end_amdhsa_kernel")

def main():
    a = Asm()
    hdr = open("cdna_kernels/%s.s.ref" % NAME).read().split("\n")
    for l in hdr:
        if l.startswith("; @launch"):
            break
        a.raw(l)
    a.raw(f"; @launch grid=(256,1,1) block=(512,1,1) lds={LDS_BYTES}")
    a.raw('.amdgcn_target "amdgcn-amd-amdhsa--gfx950"')
    gen(a)
    out = sys.argv[1] if len(sys.argv) > 1 else OUT
    open(out, "w").write(a.text())

if __name__ == "__main__":
    main()
```

```python
import sys, math, struct, os, re

NAME = "sequential_preLN__gqa_block_cached__mixer_token_mlp__decode"
KNAME = NAME + "_kernel"
OUT = "cdna_kernels/%s.s" % NAME

def f2u(x):
    return struct.unpack("<I", struct.pack("<f", x))[0]

class Asm:
    def __init__(self):
        self.lines = []
    def __call__(self, s):
        for l in s.strip("\n").split("\n"):
            l = l.strip()
            m = re.search(r"offset:(\d+)", l)
            if m and l.startswith("buffer_"):
                assert int(m.group(1)) < 4096, l
            if m and l.startswith("ds_"):
                assert int(m.group(1)) < 65536, l
            self.lines.append("    " + l)
    def label(self, l):
        self.lines.append(l + ":")
    def raw(self, s):
        self.lines.append(s)
    def text(self):
        return "\n".join(self.lines) + "\n"

WS_Q = 0
WS_OP = 0x20000
WS_ML = 0xA0000
WS_P2 = 0xB0000
WS_CNT = 0xE8000
WS_BYTES = 0x400000

LOG2E = 1.4426950408889634
SCALE_C = 0.0625 * LOG2E
NT = os.environ.get("NT", " nt")
NTV = os.environ.get("NTV", NT)

MB = 131072
L_WQ = MB
L_XN = MB + 14336
L_QL = MB + 21504
L_WO = MB
L_O = MB + 22528
L_H = MB + 26624
L_T = MB + 28672
L_F = MB + 31744
L_NEXT = MB + 31808
NSTAT = int(os.environ.get("NSTAT", "24"))
LOOK = int(os.environ.get("LOOK", "6"))
DEPTH = int(os.environ.get("DEPTH", "3"))
VX = int(os.environ.get("VX", "0"))
BULK = int(os.environ.get("BULK", "0"))
IPF = int(os.environ.get("IPF", "0"))
LDS_BYTES = 163840

SPIN_MAX = 1 << 18

def srd(a, d, base, nbytes):
    a(f"s_mov_b32 s{d}, s{base}")
    a(f"s_and_b32 s{d+1}, s{base+1}, 0xffff")
    a(f"s_mov_b32 s{d+2}, {nbytes}")
    a(f"s_mov_b32 s{d+3}, 0x00020000")

def wave_reduce(a, op, v, t):
    for ctl in ["quad_perm:[1,0,3,2]", "quad_perm:[2,3,0,1]", "row_half_mirror", "row_mirror"]:
        a("s_nop 1")
        a(f"{op}_dpp v{v}, v{v}, v{v} {ctl} row_mask:0xf bank_mask:0xf")
    group_reduce(a, op, v, t)

def group_reduce(a, op, v, t):
    a(f"v_mov_b32 v{t}, v{v}")
    a("s_nop 1")
    a(f"v_permlane16_swap_b32 v{v}, v{t}")
    a("s_nop 1")
    a(f"{op} v{v}, v{v}, v{t}")
    a(f"v_mov_b32 v{t}, v{v}")
    a("s_nop 1")
    a(f"v_permlane32_swap_b32 v{v}, v{t}")
    a("s_nop 1")
    a(f"{op} v{v}, v{v}, v{t}")

def wave_reduce2(a, op, v, t, w, u):
    for ctl in ["quad_perm:[1,0,3,2]", "quad_perm:[2,3,0,1]", "row_half_mirror", "row_mirror"]:
        a("s_nop 0")
        a(f"{op}_dpp v{v}, v{v}, v{v} {ctl} row_mask:0xf bank_mask:0xf")
        a(f"{op}_dpp v{w}, v{w}, v{w} {ctl} row_mask:0xf bank_mask:0xf")
    for sw in ["v_permlane16_swap_b32", "v_permlane32_swap_b32"]:
        a(f"v_mov_b32 v{t}, v{v}")
        a(f"v_mov_b32 v{u}, v{w}")
        a("s_nop 1")
        a(f"{sw} v{v}, v{t}")
        a(f"{sw} v{w}, v{u}")
        a("s_nop 1")
        a(f"{op} v{v}, v{v}, v{t}")
        a(f"{op} v{w}, v{w}, v{u}")

def bf16r(a, v):
    a(f"v_cvt_pk_bf16_f32 v{v}, v{v}, v{v}")
    a(f"v_and_b32 v{v}, 0xffff0000, v{v}")

def bf16r2(a, v, w, t):
    a(f"v_cvt_pk_bf16_f32 v{t}, v{v}, v{w}")
    a(f"v_lshlrev_b32 v{v}, 16, v{t}")
    a(f"v_and_b32 v{w}, 0xffff0000, v{t}")

def unpack8(a, src, dst):
    for i in range(4):
        a(f"v_lshlrev_b32 v{dst+2*i}, 16, v{src+i}")
        a(f"v_and_b32 v{dst+2*i+1}, 0xffff0000, v{src+i}")

def layernorm8(a, x, t0, t1, t2, smask, t3=35):
    a(f"v_add_f32 v{t0}, v{x}, v{x+1}")
    a(f"v_add_f32 v{t1}, v{x+2}, v{x+3}")
    a(f"v_add_f32 v{t2}, v{x+4}, v{x+5}")
    a(f"v_add_f32 v{t3}, v{x+6}, v{x+7}")
    a(f"v_add_f32 v{t0}, v{t0}, v{t1}")
    a(f"v_add_f32 v{t2}, v{t2}, v{t3}")
    a(f"v_add_f32 v{t0}, v{t0}, v{t2}")
    wave_reduce(a, "v_add_f32", t0, t1)
    a(f"v_mul_f32 v{t0}, {hex(f2u(1.0/448))}, v{t0}")
    a(f"v_sub_f32 v{t2}, v{x}, v{t0}")
    a(f"v_sub_f32 v{t3}, v{x+1}, v{t0}")
    a(f"v_mul_f32 v{t1}, v{t2}, v{t2}")
    a(f"v_mul_f32 v{t3}, v{t3}, v{t3}")
    for i in range(2, 8, 2):
        a(f"v_sub_f32 v{t2}, v{x+i}, v{t0}")
        a(f"v_fmac_f32 v{t1}, v{t2}, v{t2}")
        a(f"v_sub_f32 v{t2}, v{x+i+1}, v{t0}")
        a(f"v_fmac_f32 v{t3}, v{t2}, v{t2}")
    a(f"v_add_f32 v{t1}, v{t1}, v{t3}")
    a(f"v_cndmask_b32 v{t1}, 0, v{t1}, s[{smask}:{smask+1}]")
    wave_reduce(a, "v_add_f32", t1, t2)
    a(f"v_mul_f32 v{t1}, {hex(f2u(1.0/448))}, v{t1}")
    bf16r(a, t1)
    a(f"v_add_f32 v{t1}, {hex(f2u(1e-5))}, v{t1}")
    bf16r(a, t1)
    a(f"v_sqrt_f32 v{t1}, v{t1}")
    bf16r(a, t0)
    bf16r(a, t1)
    a(f"v_rcp_f32 v{t1}, v{t1}")
    for i in range(0, 8, 2):
        a(f"v_sub_f32 v{x+i}, v{x+i}, v{t0}")
        a(f"v_sub_f32 v{x+i+1}, v{x+i+1}, v{t0}")
        bf16r2(a, x+i, x+i+1, t2)
    for i in range(0, 8, 2):
        a(f"v_mul_f32 v{x+i}, v{x+i}, v{t1}")
        a(f"v_mul_f32 v{x+i+1}, v{x+i+1}, v{t1}")
        bf16r2(a, x+i, x+i+1, t2)

def layernorm8x2(a, x, y, tx, ty, smask):
    t0, t1, t2 = tx; u0, u1, u2 = ty
    a(f"v_add_f32 v{t0}, v{x}, v{x+1}")
    a(f"v_add_f32 v{u0}, v{y}, v{y+1}")
    for i in range(2, 8):
        a(f"v_add_f32 v{t0}, v{t0}, v{x+i}")
        a(f"v_add_f32 v{u0}, v{u0}, v{y+i}")
    wave_reduce2(a, "v_add_f32", t0, t1, u0, u1)
    a(f"v_mul_f32 v{t0}, {hex(f2u(1.0/448))}, v{t0}")
    a(f"v_mul_f32 v{u0}, {hex(f2u(1.0/448))}, v{u0}")
    for i in range(8):
        a(f"v_sub_f32 v{t2}, v{x+i}, v{t0}")
        a(f"v_sub_f32 v{u2}, v{y+i}, v{u0}")
        if i == 0:
            a(f"v_mul_f32 v{t1}, v{t2}, v{t2}")
            a(f"v_mul_f32 v{u1}, v{u2}, v{u2}")
        else:
            a(f"v_fmac_f32 v{t1}, v{t2}, v{t2}")
            a(f"v_fmac_f32 v{u1}, v{u2}, v{u2}")
    a(f"v_cndmask_b32 v{t1}, 0, v{t1}, s[{smask}:{smask+1}]")
    a(f"v_cndmask_b32 v{u1}, 0, v{u1}, s[{smask}:{smask+1}]")
    wave_reduce2(a, "v_add_f32", t1, t2, u1, u2)
    a(f"v_mul_f32 v{t1}, {hex(f2u(1.0/448))}, v{t1}")
    a(f"v_mul_f32 v{u1}, {hex(f2u(1.0/448))}, v{u1}")
    bf16r2(a, t1, u1, t2)
    a(f"v_add_f32 v{t1}, {hex(f2u(1e-5))}, v{t1}")
    a(f"v_add_f32 v{u1}, {hex(f2u(1e-5))}, v{u1}")
    bf16r2(a, t1, u1, t2)
    a(f"v_sqrt_f32 v{t1}, v{t1}")
    a(f"v_sqrt_f32 v{u1}, v{u1}")
    a("s_nop 0")
    bf16r2(a, t1, u1, t2)
    a(f"v_rcp_f32 v{t1}, v{t1}")
    a(f"v_rcp_f32 v{u1}, v{u1}")
    bf16r2(a, t0, u0, t2)
    for (z, m, r_) in ((x, t0, t1), (y, u0, u1)):
        for i in range(0, 8, 2):
            a(f"v_sub_f32 v{z+i}, v{z+i}, v{m}")
            a(f"v_sub_f32 v{z+i+1}, v{z+i+1}, v{m}")
            bf16r2(a, z+i, z+i+1, t2)
            a(f"v_mul_f32 v{z+i}, v{z+i}, v{r_}")
            a(f"v_mul_f32 v{z+i+1}, v{z+i+1}, v{r_}")

def pack8(a, x, dst):
    for i in range(4):
        a(f"v_cvt_pk_bf16_f32 v{dst+i}, v{x+2*i}, v{x+2*i+1}")

def anysent(a, regs, t):
    regs = list(regs)
    a(f"v_max_u32 v{t}, v{regs[0]}, v{regs[1]}")
    i = 2
    while i < len(regs):
        if i + 1 < len(regs):
            a(f"v_max3_u32 v{t}, v{t}, v{regs[i]}, v{regs[i+1]}")
            i += 2
        else:
            a(f"v_max_u32 v{t}, v{t}, v{regs[i]}")
            i += 1

QF = 16; OA = 64; KF = 128; VF = 160; KOFF = 192; VOFF = 200; KRA = 208; VRA = 212
SA = 220; PB = 224; M = 226; L = 227; AL = 228; T0 = 229; T1 = 230; T2 = 231

STAMP = int(os.environ.get("STAMP", "0"))
PRE = int(os.environ.get("PRE", "2"))
LATE0 = int(os.environ.get("LATE0", "0"))
MAP = int(os.environ.get("MAP", "1"))
def stamp(a, idx, va=233, vb=234):
    if not STAMP: return
    a("s_memrealtime s[42:43]")
    a("s_waitcnt lgkmcnt(0)")
    a(f"v_mov_b32 v{va}, s42")
    a("s_lshl_b32 s42, s2, 7")
    a(f"s_add_u32 s42, s42, {0x200000 + idx*4}")
    a(f"v_mov_b32 v{vb}, 0")
    a("s_mov_b64 exec, 1")
    a(f"buffer_store_dword v{va}, v{vb}, s[52:55], s42 offen")
    a("s_mov_b64 exec, s[58:59]")

def gen(a):
    n = KNAME
    a.raw(".text")
    a.raw(f".globl {n}")
    a.raw(".p2align 8")
    a.raw(f".type {n},@function")
    a.label(n)
    a("s_cmp_ge_u32 s2, 256")
    a("s_cbranch_scc1 L_done")
    a("s_load_dwordx16 s[16:31], s[0:1], 0")
    a("s_load_dwordx8 s[32:39], s[0:1], 64")
    a("s_load_dwordx2 s[40:41], s[0:1], 96")
    a("v_lshrrev_b32 v1, 6, v0")
    a("v_and_b32 v2, 63, v0")
    a("v_and_b32 v3, 15, v2")
    a("v_readfirstlane_b32 s3, v1")
    a("v_lshrrev_b32 v4, 4, v2")
    if MAP == 0:
        a("s_and_b32 s4, s2, 7")
        a("s_lshr_b32 s5, s2, 3")
    else:
        a("s_lshr_b32 s4, s2, 5")
        a("s_and_b32 s5, s2, 31")
    a("s_lshr_b32 s96, s5, 2")
    a("s_and_b32 s97, s5, 3")
    a("s_lshl_b32 s98, s4, 5")
    a("s_add_u32 s98, s98, s5")
    a("v_cmp_gt_u32 s[56:57], 56, v2")
    a("s_mov_b64 s[58:59], exec")
    a("s_waitcnt lgkmcnt(0)")
    srd(a, 44, 18, 0x10000000)
    srd(a, 48, 20, 0x10000000)
    srd(a, 52, 40, WS_BYTES)
    srd(a, 60, 16, 7168)
    srd(a, 64, 22, 448*4096*2)
    srd(a, 68, 24, 4096*448*2)
    srd(a, 72, 38, 256)
    srd(a, 76, 36, 7168)
    srd(a, 80, 28, 3584)
    srd(a, 84, 30, 3584)
    srd(a, 88, 32, 3584)
    srd(a, 92, 34, 4)
    a("s_and_b32 s38, s5, 7")
    a("s_lshl_b32 s38, s38, 2")
    a("s_lshr_b32 s39, s5, 3")
    a("s_add_u32 s38, s38, s39")
    a("s_lshl_b32 s39, s4, 5")
    a("s_add_u32 s39, s39, s38")
    a("s_cmp_ge_u32 s3, 4")
    a("s_cbranch_scc1 L_helpers")

    if STAMP:
        a("s_cmp_lg_u32 s3, 0")
        a("s_cbranch_scc1 L_st0")
        stamp(a, 0)
        a.label("L_st0")
    a("v_lshrrev_b32 v7, 5, v2")
    a("v_and_b32 v8, 31, v2")
    for p in range(8):
        a(f"v_add_u32 v5, {2*p}, v7")
        a("v_xor_b32 v6, v8, v5")
        a("v_lshlrev_b32 v6, 4, v6")
        a(f"v_lshl_add_u32 v{KOFF+p}, v7, 9, v6")
        a(f"v_add_u32 v{KOFF+p}, {p*4096-(p&3)*1024}, v{KOFF+p}")
        a("v_and_b32 v5, 7, v5")
        a("v_lshlrev_b32 v5, 1, v5")
        a("v_xor_b32 v6, v8, v5")
        a("v_lshlrev_b32 v6, 4, v6")
        a(f"v_lshl_add_u32 v{VOFF+p}, v7, 9, v6")
        a(f"v_add_u32 v{VOFF+p}, {p*4096-(p&3)*1024}, v{VOFF+p}")
    a("s_lshl_b32 s8, s3, 15")
    a("s_lshl_b32 s20, s96, 3")
    a("s_add_u32 s20, s20, s4")
    a("s_lshl_b32 s20, s20, 22")
    a("s_lshl_b32 s6, s3, 10")
    a("s_add_u32 s20, s20, s6")
    a(f"s_mul_i32 s6, s97, {NSTAT*32768}")
    a("s_add_u32 s9, s20, s6")

    def issue(kind, slot):
        srd_ = "s[44:47]" if kind == "K" else "s[48:51]"
        so = "s9"
        off = KOFF if kind == "K" else VOFF
        ntk = NT if kind == "K" else NTV
        a(f"s_add_u32 s11, s8, {slot*8192}")
        a("s_mov_b32 m0, s11")
        a(f"s_add_u32 s12, s8, {slot*8192+4096}")
        for p in range(4):
            a(f"buffer_load_dwordx4 v{off+p}, {srd_}, {so} offen offset:{p*1024}{ntk} lds")
        a("s_mov_b32 m0, s12")
        a("s_nop 0")
        for p in range(4):
            a(f"buffer_load_dwordx4 v{off+4+p}, {srd_}, {so} offen offset:{p*1024}{ntk} lds")

    def ldsspin(word, target, lab):
        a(f"v_mov_b32 v5, {L_F + word*4}")
        a.label(lab)
        a("ds_read_b32 v6, v5")
        a("s_waitcnt lgkmcnt(0)")
        a("v_readfirstlane_b32 s6, v6")
        a(f"s_cmp_ge_u32 s6, {target}")
        a(f"s_cbranch_scc1 {lab}_d")
        a("s_sleep 1")
        a(f"s_branch {lab}")
        a.label(lab + "_d")

    units = [("K", 0), ("V", 1), ("K", 2), ("V", 3)]
    a("s_barrier")
    assert PRE == 2
    for u in units[:2]: issue(*u)
    a("s_add_u32 s9, s9, 32768")
    for jj in range(4):
        a(f"v_add_u32 v5, {4*jj}, v4")
        a("v_xor_b32 v5, v5, v3")
        a("v_lshlrev_b32 v5, 4, v5")
        a(f"v_lshl_add_u32 v5, v3, 9, v5")
        a(f"v_add_u32 v{KRA+jj}, s8, v5")
    a("v_bfe_u32 v5, v2, 2, 2")
    a("v_lshl_add_u32 v5, v4, 2, v5")
    a("v_and_b32 v6, 7, v5")
    a("v_and_b32 v7, 3, v2")
    a("v_lshlrev_b32 v7, 3, v7")
    a("v_lshl_add_u32 v7, v5, 9, v7")
    a("v_add_u32 v7, s8, v7")
    for nn in range(8):
        a(f"v_xor_b32 v5, {nn}, v6")
        a(f"v_lshl_add_u32 v{VRA+nn}, v5, 5, v7")
    for i in range(64):
        a(f"v_mov_b32 v{OA+i}, 0")
    a(f"v_mov_b32 v{M}, 0xf149f2ca")
    a(f"v_mov_b32 v{L}, 0")
    a(f"s_mov_b32 s14, {hex(f2u(SCALE_C))}")
    if PRE < 4:
        ldsspin(1, 1, "L_spin1")
        for u in units[PRE:]: issue(*u)
    ldsspin(2, 1, "L_spin2")
    a("v_and_b32 v5, 1, v2")
    a("v_lshlrev_b32 v5, 9, v5")
    a("v_lshl_add_u32 v5, v4, 4, v5")
    a(f"v_add_u32 v5, {L_QL}, v5")
    for j in range(8):
        a(f"ds_read_b128 v[{QF+4*j}:{QF+4*j+3}], v5 offset:{j*64}")
    a("s_waitcnt lgkmcnt(0)")
    a(f"v_mov_b32 v235, {L_NEXT+8}")
    a(f"v_mov_b32 v238, {L_F+12}")

    def step(kslot, vslot, do_issue, wk, wv, tag):
        a("s_cmp_eq_u32 s15, 1000")
        a(f"s_cbranch_scc1 L_wk_{tag}")
        a("s_waitcnt vmcnt(0)")
        a.label(f"L_wk_{tag}")
        a(f"s_waitcnt vmcnt({wk})")
        a("v_mov_b32 v237, s13")
        a("ds_read_b32 v236, v235")
        if VX != 2: a("ds_write_b32 v238, v237")
        for j in range(8):
            a(f"ds_read_b128 v[{KF+4*j}:{KF+4*j+3}], v{KRA+(j&3)} offset:{kslot*8192 + (j>>2)*256}")
        for j in range(8):
            a(f"s_waitcnt lgkmcnt({7-j})")
            c = "0" if j == 0 else f"v[{SA}:{SA+3}]"
            a(f"v_mfma_f32_16x16x32_bf16 v[{SA}:{SA+3}], v[{KF+4*j}:{KF+4*j+3}], v[{QF+4*j}:{QF+4*j+3}], {c}")
        a("v_readfirstlane_b32 s6, v236")
        a("s_cmp_lg_u32 s6, -1")
        a(f"s_cbranch_scc1 L_nx_{tag}")
        a.label(f"L_nxs_{tag}")
        a("s_sleep 1")
        a("ds_read_b32 v236, v235")
        a("s_waitcnt lgkmcnt(0)")
        a("v_readfirstlane_b32 s6, v236")
        a("s_cmp_eq_u32 s6, -1")
        a(f"s_cbranch_scc1 L_nxs_{tag}")
        a.label(f"L_nx_{tag}")
        a("v_add_u32 v235, 4, v235")
        a("s_lshl_b32 s7, s6, 15")
        a("s_add_u32 s9, s20, s7")
        a("s_add_u32 s7, s13, 2")
        a("s_min_u32 s7, s7, s15")
        a("s_cmp_ge_u32 s6, 128")
        a("s_cselect_b32 s15, s7, s15")
        a(f"s_cbranch_scc1 L_noik_{tag}")
        issue("K", kslot)
        a.label(f"L_noik_{tag}")
        a("s_nop 3")
        a(f"v_cvt_pk_bf16_f32 v{T0}, v{SA}, v{SA+1}")
        a(f"v_cvt_pk_bf16_f32 v{T1}, v{SA+2}, v{SA+3}")
        a(f"v_lshlrev_b32 v{SA}, 16, v{T0}")
        a(f"v_and_b32 v{SA+1}, 0xffff0000, v{T0}")
        a(f"v_lshlrev_b32 v{SA+2}, 16, v{T1}")
        a(f"v_and_b32 v{SA+3}, 0xffff0000, v{T1}")
        a(f"v_max3_f32 v{T0}, v{SA}, v{SA+1}, v{SA+2}")
        a(f"v_max_f32 v{T0}, v{T0}, v{SA+3}")
        group_reduce(a, "v_max_f32", T0, T1)
        a(f"v_mul_f32 v{T0}, s14, v{T0}")
        a(f"v_max_f32 v{T0}, v{T0}, v{M}")
        a(f"v_sub_f32 v{AL}, v{M}, v{T0}")
        a(f"v_exp_f32 v{AL}, v{AL}")
        a(f"v_mov_b32 v{M}, v{T0}")
        for r in range(4):
            a(f"v_fma_f32 v{SA+r}, v{SA+r}, s14, -v{T0}")
        for r in range(4):
            a(f"v_exp_f32 v{SA+r}, v{SA+r}")
        a(f"v_cmp_neq_f32 vcc, 1.0, v{AL}")
        a(f"v_cvt_pk_bf16_f32 v{PB}, v{SA}, v{SA+1}")
        a(f"v_cvt_pk_bf16_f32 v{PB+1}, v{SA+2}, v{SA+3}")
        a(f"v_add_f32 v{T1}, v{SA}, v{SA+1}")
        a(f"v_add_f32 v{T2}, v{SA+2}, v{SA+3}")
        a(f"v_add_f32 v{T1}, v{T1}, v{T2}")
        a(f"v_fma_f32 v{L}, v{L}, v{AL}, v{T1}")
        a(f"s_cbranch_vccz L_nors_{tag}")
        for i in range(64):
            a(f"v_mul_f32 v{OA+i}, v{OA+i}, v{AL}")
        a.label(f"L_nors_{tag}")
        a("s_cmp_eq_u32 s15, 1000")
        a(f"s_cbranch_scc1 L_wv_{tag}")
        a("s_waitcnt vmcnt(0)")
        a.label(f"L_wv_{tag}")
        a(f"s_waitcnt vmcnt({wv})")
        for nn in range(16):
            a(f"ds_read_b64_tr_b16 v[{VF+2*nn}:{VF+2*nn+1}], v{VRA+(nn&7)} offset:{vslot*8192 + (nn>>3)*256}")
        for nn in range(16):
            a(f"s_waitcnt lgkmcnt({15-nn})")
            a(f"v_mfma_f32_16x16x16_bf16 v[{OA+4*nn}:{OA+4*nn+3}], v[{VF+2*nn}:{VF+2*nn+1}], v[{PB}:{PB+1}], v[{OA+4*nn}:{OA+4*nn+3}]")
        a("s_cmp_lg_u32 s15, 1000")
        a(f"s_cbranch_scc1 L_noiv_{tag}")
        issue("V", vslot)
        a.label(f"L_noiv_{tag}")

    a("s_mov_b32 s13, 0")
    a("s_mov_b32 s15, 1000")
    a.label("L_loop")
    step(0, 1, True, 24, 24, "a")
    a("s_add_u32 s13, s13, 1")
    a("s_cmp_ge_u32 s13, s15")
    a("s_cbranch_scc1 L_loop_done")
    step(2, 3, True, 24, 24, "b")
    a("s_add_u32 s13, s13, 1")
    a("s_cmp_lt_u32 s13, s15")
    a("s_cbranch_scc1 L_loop")
    a.label("L_loop_done")
    a("s_waitcnt vmcnt(0)")
    if STAMP:
        a("s_cmp_lg_u32 s3, 0")
        a("s_cbranch_scc1 L_st6")
        stamp(a, 6)
        a.label("L_st6")
    group_reduce(a, "v_add_f32", L, T1)
    a("s_nop 7")
    a("v_cmp_gt_u32 vcc, 2, v3")
    a("v_lshlrev_b32 v5, 10, v3")
    a("v_lshl_add_u32 v5, v4, 4, v5")
    a("v_add_u32 v5, s8, v5")
    a("s_and_b64 exec, exec, vcc")
    for nn in range(16):
        a(f"ds_write_b128 v5, v[{OA+4*nn}:{OA+4*nn+3}] offset:{nn*64}")
    a("v_cmp_gt_u32 vcc, 2, v2")
    a("v_lshlrev_b32 v5, 3, v2")
    a("v_add_u32 v5, s8, v5")
    a("s_and_b64 exec, exec, vcc")
    a(f"ds_write_b64 v5, v[{M}:{M+1}] offset:2048")
    a("s_mov_b64 exec, s[58:59]")
    a("s_waitcnt lgkmcnt(0)")
    a("s_barrier")
    a("v_lshrrev_b32 v5, 7, v0")
    a("v_lshlrev_b32 v6, 3, v5")
    a("v_lshlrev_b32 v7, 3, v0")
    a("v_add_u32 v9, 0x10000, v6")
    a("v_add_u32 v10, 0x10000, v7")
    for w in range(4):
        a(f"ds_read_b64 v[{16+2*w}:{17+2*w}], v{6 if w<2 else 9} offset:{(w&1)*32768+2048}")
        a(f"ds_read_b64 v[{24+2*w}:{25+2*w}], v{7 if w<2 else 10} offset:{(w&1)*32768}")
    a("s_waitcnt lgkmcnt(0)")
    a("v_max_f32 v32, v16, v18")
    a("v_max3_f32 v32, v32, v20, v22")
    for w in range(4):
        a(f"v_sub_f32 v{16+2*w}, v{16+2*w}, v32")
        a(f"v_exp_f32 v{16+2*w}, v{16+2*w}")
    a("s_nop 0")
    a("v_mul_f32 v33, v16, v17")
    a("v_mul_f32 v34, v16, v24")
    a("v_mul_f32 v35, v16, v25")
    for w in range(1, 4):
        a(f"v_fmac_f32 v33, v{16+2*w}, v{17+2*w}")
        a(f"v_fmac_f32 v34, v{16+2*w}, v{24+2*w}")
        a(f"v_fmac_f32 v35, v{16+2*w}, v{25+2*w}")
    a("s_lshl_b32 s6, s98, 11")
    a(f"s_add_u32 s6, s6, {WS_OP}")
    a("buffer_store_dwordx2 v[34:35], v7, s[52:55], s6 offen sc1")
    a("v_and_b32 v8, 127, v0")
    a("v_cmp_gt_u32 vcc, 16, v8")
    a("v_lshlrev_b32 v8, 3, v8")
    a("v_lshl_add_u32 v8, v5, 7, v8")
    a("s_lshl_b32 s6, s98, 8")
    a(f"s_add_u32 s6, s6, {WS_ML}")
    a("s_and_b64 exec, exec, vcc")
    a("s_cbranch_execz L_noml")
    a("buffer_store_dwordx2 v[32:33], v8, s[52:55], s6 offen sc1")
    a.label("L_noml")
    a("s_mov_b64 exec, s[58:59]")
    a("s_branch L_tail")

    a.label("L_helpers")
    a("s_memrealtime s[16:17]")
    a("v_lshlrev_b32 v5, 4, v2")
    a("v_mov_b32 v6, 0x7fff0000")
    a("v_cndmask_b32 v5, v6, v5, s[56:57]")
    a("s_sub_u32 s6, s3, 4")
    a("s_mul_i32 s15, s6, 1792")
    a("buffer_load_dwordx4 v[8:11], v5, s[60:63], s15 offen")
    a("buffer_load_dwordx4 v[12:15], v5, s[60:63], s15 offen offset:896")
    a("s_cmp_ge_u32 s38, 14")
    a("s_cselect_b32 s99, 1, 0")
    a("s_mul_i32 s6, s99, 14")
    a("s_sub_u32 s100, s38, s6")
    a("s_lshl_b32 s101, s4, 1")
    a("s_add_u32 s101, s101, s99")
    a("s_cmp_lg_u32 s3, 4")
    a("s_cbranch_scc1 L_h_not4")
    a("v_lshrrev_b32 v5, 1, v2")
    a("v_lshlrev_b32 v5, 13, v5")
    a("v_and_b32 v6, 1, v2")
    a("v_lshl_add_u32 v5, v6, 4, v5")
    a("s_lshl_b32 s6, s39, 5")
    a(f"s_mov_b32 s7, {L_WQ}")
    for p in range(14):
        a("s_mov_b32 m0, s7")
        a("s_add_u32 s7, s7, 1024")
        a("buffer_load_dwordx4 v5, s[64:67], s6 offen lds")
        a("s_add_u32 s6, s6, 0x40000")
    a(f"v_mov_b32 v5, {L_F}")
    for i in range(4):
        a(f"v_mov_b32 v{16+i}, 0")
    a("ds_write_b128 v5, v[16:19]")
    a(f"s_mul_i32 s6, s97, {NSTAT}")
    a("v_add_u32 v16, s6, v2")
    a(f"v_cmp_gt_u32 vcc, {NSTAT}, v2")
    a("v_lshlrev_b32 v5, 2, v2")
    a(f"v_add_u32 v5, {L_NEXT}, v5")
    a("v_cndmask_b32 v16, -1, v16, vcc")
    if VX: a("v_add_u32 v16, s6, v2")
    if VX: a("v_max_u32 v16, v16, v16")
    if VX: a(f"v_mov_b32 v17, 0x1000")
    if VX: a("v_cndmask_b32 v16, v17, v16, vcc")
    a("v_mov_b32 v17, -1")
    a("ds_write_b32 v5, v16")
    a("ds_write_b32 v5, v17 offset:256")
    a("s_branch L_h_bar0")
    a.label("L_h_not4")
    a("s_cmp_lg_u32 s3, 6")
    a("s_cbranch_scc1 L_h_bar0")
    a("s_cmp_lg_u32 s97, 0")
    a("s_cbranch_scc1 L_nocinit")
    a("s_lshl_b32 s6, s4, 3")
    a("s_add_u32 s6, s6, s96")
    a("s_lshl_b32 s6, s6, 8")
    a(f"s_add_u32 s6, s6, {WS_CNT}")
    a("s_waitcnt lgkmcnt(0)")
    a("s_lshr_b64 s[18:19], s[16:17], 2")
    a("s_and_b32 s7, s18, 0xffffff00")
    a("v_mov_b32 v16, s7")
    a("v_mov_b32 v17, 0")
    a("s_mov_b64 exec, 1")
    a("buffer_store_dword v16, v17, s[52:55], s6 offen sc1")
    a("s_mov_b64 exec, s[58:59]")
    a.label("L_nocinit")
    a.label("L_h_bar0")
    a("s_waitcnt lgkmcnt(0)")
    if not LATE0: a("s_barrier")
    a("s_lshr_b64 s[16:17], s[16:17], 10")
    a("s_cmp_eq_u32 s3, 4")
    a("s_cbranch_scc1 L_h_w14")
    a("s_cmp_eq_u32 s3, 6")
    a("s_cbranch_scc1 L_h_w3")
    a("s_waitcnt vmcnt(0)")
    a("s_branch L_h_ln")
    a.label("L_h_w14")
    a(f"s_waitcnt vmcnt({0 if LATE0 else 14})")
    a("s_branch L_h_ln")
    a.label("L_h_w3")
    a("s_waitcnt vmcnt(1)")
    a("s_cmp_eq_u32 s97, 0")
    a("s_cbranch_scc1 L_h_ln")
    a("s_waitcnt vmcnt(0)")
    a.label("L_h_ln")
    if LATE0: a("s_barrier")
    unpack8(a, 8, 16)
    unpack8(a, 12, 24)
    layernorm8x2(a, 16, 24, (32, 33, 34), (35, 36, 37), 56)
    pack8(a, 16, 8)
    pack8(a, 24, 12)
    a("v_lshlrev_b32 v5, 4, v2")
    a(f"s_add_u32 s6, s15, {L_XN}")
    a("v_add_u32 v5, s6, v5")
    a("s_mov_b64 exec, s[56:57]")
    a("ds_write_b128 v5, v[8:11]")
    a("ds_write_b128 v5, v[12:15] offset:896")
    a("s_mov_b64 exec, 1")
    a(f"v_mov_b32 v5, {L_F}")
    a("v_mov_b32 v6, 1")
    a("s_waitcnt lgkmcnt(0)")
    a("ds_add_u32 v5, v6")
    a("s_mov_b64 exec, s[58:59]")
    a("s_lshl_b32 s7, s4, 5")
    a("v_mov_b32 v9, s7")
    a("v_mov_b32 v8, 1")
    a("s_cmp_eq_u32 s3, 4")
    a("s_cbranch_scc1 L_service")
    a("s_cmp_eq_u32 s3, 5")
    a("s_cbranch_scc1 L_w5")
    if IPF:
        a("s_cmp_lg_u32 s3, 7")
        a("s_cbranch_scc1 L_not7")
        assert IPF < NSTAT
        a(f"v_mov_b32 v5, {L_F+12}")
        a("s_mov_b32 s13, 0")
        a.label("L_w7s")
        a("s_sleep 32")
        a("ds_read_b32 v6, v5")
        a("s_add_u32 s13, s13, 1")
        a("s_waitcnt lgkmcnt(0)")
        a("v_readfirstlane_b32 s6, v6")
        a("s_cmp_ge_u32 s13, 0x10000")
        a("s_cbranch_scc1 L_w7s_d")
        a(f"s_cmp_lt_u32 s6, {IPF}")
        a("s_cbranch_scc1 L_w7s")
        a.label("L_w7s_d")
        a("s_getpc_b64 s[36:37]")
        a.label("L_pc0")
        a("s_add_u32 s36, s36, L_loop_done-L_pc0")
        a("s_addc_u32 s37, s37, -1")
        a("s_mov_b32 s6, 0")
        a.label("L_pf1")
        a("s_load_dwordx16 s[20:35], s[36:37], s6")
        a("s_add_u32 s6, s6, 64")
        a("s_cmp_lt_u32 s6, L_helpers-L_loop_done")
        a("s_cbranch_scc1 L_pf1")
        a("s_waitcnt lgkmcnt(0)")
        a("s_getpc_b64 s[36:37]")
        a.label("L_pc1")
        a("s_add_u32 s36, s36, L_tail-L_pc1")
        a("s_addc_u32 s37, s37, 0")
        a("s_mov_b32 s6, 0")
        a.label("L_pf2")
        a("s_load_dwordx16 s[20:35], s[36:37], s6")
        a("s_add_u32 s6, s6, 64")
        a("s_cmp_lt_u32 s6, L_done-L_tail")
        a("s_cbranch_scc1 L_pf2")
        a("s_waitcnt lgkmcnt(0)")
        a("s_branch L_h_bar3")
        a.label("L_not7")
    a("s_cmp_lg_u32 s3, 6")
    a("s_cbranch_scc1 L_h_bar3")
    if VX == 4: a("s_branch L_h_bar3")
    for i in range(4):
        a(f"v_mov_b32 v{16+i}, -1")
    a("v_lshlrev_b32 v6, 4, v2")
    a("s_lshl_b32 s6, s98, 11")
    a(f"s_add_u32 s6, s6, {WS_OP}")
    a("buffer_store_dwordx4 v[16:19], v6, s[52:55], s6 offen sc1")
    a("buffer_store_dwordx4 v[16:19], v6, s[52:55], s6 offen offset:1024 sc1")
    a("s_lshl_b32 s6, s98, 8")
    a(f"s_add_u32 s6, s6, {WS_ML}")
    a("s_mov_b64 exec, 0xffff")
    a("buffer_store_dwordx4 v[16:19], v6, s[52:55], s6 offen sc1")
    a("s_mov_b64 exec, s[58:59]")
    a("s_cmp_ge_u32 s38, 28")
    a("s_cbranch_scc1 L_clr_done")
    a("s_lshl_b32 s6, s4, 1")
    a("s_mul_i32 s6, s6, 14")
    a("s_add_u32 s6, s6, s38")
    a("s_lshl_b32 s6, s6, 10")
    a(f"s_add_u32 s6, s6, {WS_P2}")
    a("buffer_store_dwordx4 v[16:19], v6, s[52:55], s6 offen sc1")
    a.label("L_clr_done")
    a("s_mov_b64 exec, 1")
    a("s_waitcnt vmcnt(0)")
    a("buffer_atomic_add v8, v9, s[72:75], 0 offen sc1")
    a("s_mov_b64 exec, s[58:59]")
    a("s_branch L_h_bar3")
    a.label("L_w5")
    a(f"v_mov_b32 v5, {L_F+12}")
    a("s_mov_b32 s13, 0")
    a.label("L_w5s")
    a("s_sleep 32")
    a("ds_read_b32 v6, v5")
    a("s_add_u32 s13, s13, 1")
    a("s_waitcnt lgkmcnt(0)")
    a("v_readfirstlane_b32 s6, v6")
    a("s_cmp_ge_u32 s13, 0x10000")
    a("s_cbranch_scc1 L_w5s_d")
    a(f"s_cmp_lt_u32 s6, {min(20, NSTAT-2)}")
    a("s_cbranch_scc1 L_w5s")
    a.label("L_w5s_d")
    a("v_lshlrev_b32 v9, 5, v2")
    a("v_cmp_gt_u32 vcc, 8, v2")
    a("s_mov_b32 s13, 0")
    a("s_and_b64 exec, exec, vcc")
    a.label("L_pollall")
    a("buffer_load_dword v10, v9, s[72:75], 0 offen sc1")
    a("s_add_u32 s13, s13, 1")
    a("s_waitcnt vmcnt(0)")
    a("v_cmp_gt_u32 vcc, 64, v10")
    a(f"s_cmp_ge_u32 s13, {SPIN_MAX}")
    a("s_cbranch_scc1 L_pollall_done")
    a("s_cbranch_vccz L_pollall_done")
    a("s_sleep 64")
    a("s_branch L_pollall")
    a.label("L_pollall_done")
    a("s_mov_b64 exec, s[58:59]")
    stamp(a, 12, 236, 237)
    a.label("L_h_bar3")
    a("s_barrier")
    a("s_branch L_tail")

    a.label("L_service")
    a("v_bfe_u32 v6, v2, 2, 2")
    a("v_lshl_add_u32 v6, v4, 3, v6")
    a("v_lshlrev_b32 v6, 5, v6")
    a("v_and_b32 v7, 3, v2")
    a("v_lshl_add_u32 v6, v7, 3, v6")
    a(f"v_add_u32 v10, {L_WQ}, v6")
    a("v_and_b32 v7, 7, v2")
    a("v_mul_u32_u24 v7, 896, v7")
    a("v_lshl_add_u32 v7, v4, 4, v7")
    a(f"v_add_u32 v7, {L_XN}, v7")
    a("s_waitcnt vmcnt(0)")
    stamp(a, 1, 236, 237)
    for j in range(14):
        a(f"ds_read_b64_tr_b16 v[{40+4*j}:{41+4*j}], v10 offset:{j*1024}")
        a(f"ds_read_b64_tr_b16 v[{42+4*j}:{43+4*j}], v10 offset:{j*1024+128}")
    ldsspin(0, 4, "L_spin0")
    stamp(a, 2, 236, 237)
    for j in range(14):
        a(f"ds_read_b128 v[{100+4*j}:{103+4*j}], v7 offset:{j*64}")
    for j in range(14):
        a(f"s_waitcnt lgkmcnt({13-j})")
        c = "0" if j == 0 else "v[32:35]"
        a(f"v_mfma_f32_16x16x32_bf16 v[32:35], v[{40+4*j}:{43+4*j}], v[{100+4*j}:{103+4*j}], {c}")
    a("v_cmp_gt_u32 vcc, 8, v3")
    a("v_lshlrev_b32 v5, 6, v3")
    a("v_lshl_add_u32 v5, v4, 4, v5")
    a("s_lshl_b32 s6, s39, 9")
    a("v_mov_b32 v37, s16")
    a("v_mov_b32 v39, s16")
    a(f"v_mov_b32 v6, {L_F+4}")
    a("s_sub_u32 s17, s16, 2")
    a("s_nop 1")
    a("v_cvt_pk_bf16_f32 v36, v32, v33")
    a("v_cvt_pk_bf16_f32 v38, v34, v35")
    a("s_and_b64 exec, exec, vcc")
    a(f"buffer_store_dwordx4 v[36:39], v5, s[52:55], s6 offen offset:{WS_Q} sc1")
    a("s_mov_b64 exec, 1")
    a("ds_write_b32 v6, v8")
    a("s_mov_b64 exec, s[58:59]")
    stamp(a, 3, 236, 237)
    a("v_lshrrev_b32 v5, 1, v2")
    a("v_lshlrev_b32 v5, 9, v5")
    a("v_and_b32 v6, 1, v2")
    a("v_lshl_add_u32 v5, v6, 5, v5")
    a("s_lshl_b32 s6, s96, 6")
    a("s_lshl_b32 s7, s4, 14")
    a("s_add_u32 s15, s6, s7")
    a("s_mov_b32 s13, 0")
    def qld(base):
        a(f"buffer_load_dwordx4 v[{base}:{base+3}], v5, s[52:55], s15 offen offset:{WS_Q} sc1")
        a(f"buffer_load_dwordx4 v[{base+4}:{base+7}], v5, s[52:55], s15 offen offset:{WS_Q+16} sc1")
    def qchk(base):
        a(f"v_subrev_u32 v20, s17, v{base+1}")
        a(f"v_subrev_u32 v21, s17, v{base+3}")
        a(f"v_subrev_u32 v22, s17, v{base+5}")
        a(f"v_subrev_u32 v23, s17, v{base+7}")
        a("v_max_u32 v20, v20, v21")
        a("v_max3_u32 v20, v20, v22, v23")
        a("v_cmp_lt_u32 vcc, 4, v20")
    qld(12)
    a.label("L_pq2")
    qld(24)
    a("s_waitcnt vmcnt(2)")
    qchk(12)
    a("s_cbranch_vccz L_pollq_done")
    qld(12)
    a("s_waitcnt vmcnt(2)")
    qchk(24)
    a("s_cbranch_vccz L_pq_useB")
    a("s_add_u32 s13, s13, 2")
    a("s_cmp_lt_u32 s13, 2047")
    a("s_cbranch_scc1 L_pq2")
    a("s_mov_b32 s13, 2047")
    a("s_branch L_pollq")
    a.label("L_pq_useB")
    a("v_mov_b32 v32, v24")
    a("v_mov_b32 v33, v26")
    a("v_mov_b32 v34, v28")
    a("v_mov_b32 v35, v30")
    a("s_branch L_pollq_wr")
    a.label("L_pollq")
    qld(12)
    a("s_waitcnt vmcnt(0)")
    a("s_cmp_lg_u32 s13, 2047")
    a("s_cbranch_scc1 L_pq_noat")
    a("s_mov_b64 exec, 1")
    a("buffer_atomic_add v8, v9, s[72:75], 0 offen sc1")
    a("s_mov_b64 exec, s[58:59]")
    a.label("L_pq_noat")
    a("s_add_u32 s13, s13, 1")
    qchk(12)
    a("s_cbranch_vccz L_pollq_done")
    a("buffer_load_dword v10, v9, s[72:75], 0 offen sc1")
    a("s_waitcnt vmcnt(0)")
    a("v_readfirstlane_b32 s6, v10")
    a(f"s_cmp_ge_u32 s13, {SPIN_MAX}")
    a("s_cbranch_scc1 L_pollq_done")
    a("s_cmp_ge_u32 s6, 64")
    a("s_cbranch_scc0 L_pollq")
    qld(12)
    a("s_waitcnt vmcnt(0)")
    a.label("L_pollq_done")
    a("v_mov_b32 v32, v12")
    a("v_mov_b32 v33, v14")
    a("v_mov_b32 v34, v16")
    a("v_mov_b32 v35, v18")
    a.label("L_pollq_wr")
    stamp(a, 4, 236, 237)
    a("v_lshlrev_b32 v5, 4, v2")
    a(f"v_add_u32 v5, {L_QL}, v5")
    a(f"v_mov_b32 v6, {L_F+8}")
    a("ds_write_b128 v5, v[32:35]")
    a("s_waitcnt lgkmcnt(0)")
    a("s_mov_b64 exec, 1")
    a("ds_write_b32 v6, v8")
    a("s_cmp_ge_u32 s13, 2048")
    a("s_cbranch_scc1 L_pq_noat2")
    a("buffer_atomic_add v8, v9, s[72:75], 0 offen sc1")
    a.label("L_pq_noat2")
    a("s_mov_b64 exec, s[58:59]")
    a("s_waitcnt vmcnt(1)")
    stamp(a, 5, 236, 237)
    a("s_cmp_ge_u32 s38, 28")
    a("s_cbranch_scc1 L_nowo")
    a("v_lshrrev_b32 v5, 2, v2")
    a("v_mul_u32_u24 v5, 896, v5")
    a("v_and_b32 v6, 3, v2")
    a("v_lshl_add_u32 v5, v6, 4, v5")
    a("s_mul_i32 s6, s101, 229376")
    a("s_lshl_b32 s7, s100, 6")
    a("s_add_u32 s6, s6, s7")
    a(f"s_mov_b32 s7, {L_WO}")
    for p in range(16):
        a("s_mov_b32 m0, s7")
        a("s_add_u32 s7, s7, 1024")
        a("buffer_load_dwordx4 v5, s[68:71], s6 offen lds")
        a("s_add_u32 s6, s6, 14336")
    a.label("L_nowo")
    if VX: a("s_branch L_skipdyn")
    a("s_lshl_b32 s6, s4, 3")
    a("s_add_u32 s6, s6, s96")
    a("s_lshl_b32 s6, s6, 8")
    a(f"s_add_u32 s25, s6, {WS_CNT}")
    a("v_mov_b32 v14, 0")
    a("s_mov_b32 s13, 0")
    a.label("L_pcnt")
    a("buffer_load_dword v10, v14, s[52:55], s25 offen sc1")
    a("s_add_u32 s13, s13, 1")
    a("s_waitcnt vmcnt(0)")
    a("v_readfirstlane_b32 s6, v10")
    a("s_lshr_b32 s6, s6, 8")
    a("s_sub_u32 s6, s6, s17")
    a("s_and_b32 s6, s6, 0xffffff")
    a("s_cmp_le_u32 s6, 4")
    a("s_cbranch_scc1 L_pcnt_done")
    a("s_sleep 16")
    a("s_cmp_lt_u32 s13, 1024")
    a("s_cbranch_scc1 L_pcnt")
    a("buffer_load_dword v10, v9, s[72:75], 0 offen sc1")
    a("s_waitcnt vmcnt(0)")
    a("v_readfirstlane_b32 s6, v10")
    a(f"s_cmp_ge_u32 s13, {SPIN_MAX}")
    a("s_cbranch_scc1 L_pcnt_done")
    a("s_cmp_ge_u32 s6, 64")
    a("s_cbranch_scc0 L_pcnt")
    a.label("L_pcnt_done")
    a("s_mov_b32 s22, 1")
    a(f"s_mov_b32 s23, {NSTAT}")
    a(f"s_mov_b32 s24, {NSTAT}")
    a(f"v_mov_b32 v11, {L_F+12}")
    a("v_mov_b32 v10, s22")
    a("s_waitcnt vmcnt(0)")
    a.label("L_dyn")
    a("ds_read_b32 v6, v11")
    a("s_waitcnt lgkmcnt(0)")
    a("v_readfirstlane_b32 s6, v6")
    a(f"s_add_u32 s6, s6, {LOOK}")
    a("s_cmp_ge_u32 s6, s23")
    a("s_cbranch_scc1 L_dyn_go")
    a("s_sleep 4")
    a("s_branch L_dyn")
    a.label("L_dyn_go")
    if STAMP:
        a(f"s_cmp_lg_u32 s23, {NSTAT}")
        a("s_cbranch_scc1 L_sq1")
        a("s_memrealtime s[26:27]")
        a("s_waitcnt lgkmcnt(0)")
        a.label("L_sq1")
    a(f"s_sub_u32 s6, s23, {NSTAT}")
    a("s_lshl_b64 exec, 1, s6")
    a("buffer_atomic_add v10, v14, s[52:55], s25 offen sc0 sc1")
    a("s_mov_b64 exec, s[58:59]")
    a("s_add_u32 s23, s23, 1")
    a("s_sub_u32 s6, s23, s24")
    a(f"s_cmp_le_u32 s6, {DEPTH}")
    a("s_cbranch_scc1 L_dyn")
    a(f"s_waitcnt vmcnt({DEPTH})")
    if STAMP:
        a(f"s_cmp_lg_u32 s24, {NSTAT}")
        a("s_cbranch_scc1 L_sq2")
        a("s_memrealtime s[28:29]")
        a("s_waitcnt lgkmcnt(0)")
        a.label("L_sq2")
    a(f"s_sub_u32 s6, s24, {NSTAT}")
    a("v_readlane_b32 s6, v10, s6")
    a("s_and_b32 s6, s6, 0xff")
    a(f"s_add_u32 s7, s6, {4*NSTAT}")
    a(f"s_cmp_lt_u32 s6, {128-4*NSTAT}")
    a("s_cselect_b32 s7, s7, 0x1000")
    a("s_lshl_b32 s6, s24, 2")
    a(f"s_add_u32 s6, s6, {L_NEXT}")
    a("v_mov_b32 v12, s6")
    a("v_mov_b32 v13, s7")
    a("ds_write_b32 v12, v13")
    a("s_add_u32 s24, s24, 1")
    a("s_cmp_lt_u32 s7, 128")
    a("s_cbranch_scc1 L_dyn")
    a("v_add_u32 v12, 4, v12")
    a("ds_write_b32 v12, v13")
    a("s_waitcnt vmcnt(0) lgkmcnt(0)")
    if STAMP:
        stamp(a, 16, 236, 237)
        for (sr, idx) in ((26, 14), (28, 15)):
            a(f"v_mov_b32 v236, s{sr}")
            a("s_lshl_b32 s42, s2, 7")
            a(f"s_add_u32 s42, s42, {0x200000 + idx*4}")
            a("v_mov_b32 v237, 0")
            a("s_mov_b64 exec, 1")
            a("buffer_store_dword v236, v237, s[52:55], s42 offen")
            a("s_mov_b64 exec, s[58:59]")
    a.label("L_skipdyn")
    a("s_waitcnt vmcnt(0)")
    a("s_barrier")
    stamp(a, 7, 236, 237)

    a.label("L_tail")
    a("s_cmp_ge_u32 s38, 14")
    a("s_cselect_b32 s99, 1, 0")
    a("s_mul_i32 s6, s99, 14")
    a("s_sub_u32 s100, s38, s6")
    a("s_lshl_b32 s101, s4, 1")
    a("s_add_u32 s101, s101, s99")
    a("s_cmp_eq_u32 s3, 7")
    a("s_cbranch_scc1 L_now")
    a("v_mul_u32_u24 v5, 56, v2")
    for (base, sr) in ((128, 80), (144, 84), (160, 88)):
        for i in range(3):
            a(f"buffer_load_dwordx4 v[{base+4*i}:{base+4*i+3}], v5, s[{sr}:{sr+3}], 0 offen offset:{16*i}")
        a(f"buffer_load_dwordx2 v[{base+12}:{base+13}], v5, s[{sr}:{sr+3}], 0 offen offset:48")
    a("v_mov_b32 v6, 0")
    a("buffer_load_ushort v174, v6, s[92:95], 0 offen")
    a.label("L_now")
    a("s_cmp_ge_u32 s38, 28")
    a("s_cbranch_scc1 L_stageD")
    a("s_cmp_ge_u32 s3, 4")
    a("s_cbranch_scc1 L_bar4")
    a("v_lshrrev_b32 v5, 5, v0")
    a("v_and_b32 v6, 31, v0")
    a("v_lshlrev_b32 v7, 13, v5")
    a("v_lshl_add_u32 v7, v6, 5, v7")
    a("v_lshlrev_b32 v8, 10, v5")
    a("s_lshl_b32 s10, s4, 16")
    a("s_lshl_b32 s11, s99, 10")
    a("s_add_u32 s10, s10, s11")
    a(f"s_add_u32 s10, s10, {WS_OP}")
    a("s_add_u32 s11, s10, 4096")
    a("s_lshl_b32 s12, s4, 13")
    a("s_lshl_b32 s6, s99, 7")
    a("s_add_u32 s12, s12, s6")
    a(f"s_add_u32 s12, s12, {WS_ML}")
    a("v_and_b32 v9, 31, v2")
    a("v_lshlrev_b32 v9, 8, v9")
    a("s_mov_b32 s13, 0")
    if BULK & 1: a("s_branch L_pollC")
    a.label("L_pollC0")
    a("buffer_load_dwordx2 v[16:17], v9, s[52:55], s12 offen sc1")
    a("s_add_u32 s13, s13, 1")
    a("s_waitcnt vmcnt(0)")
    anysent(a, range(16, 18), 56)
    a("v_cmp_eq_u32 vcc, -1, v56")
    a(f"s_cmp_ge_u32 s13, {SPIN_MAX}")
    a("s_cbranch_scc1 L_pollC")
    a("s_cbranch_vccz L_pollC")
    a("s_sleep 8")
    a("s_branch L_pollC0")
    a.label("L_pollC")
    if STAMP:
        a("s_cmp_lg_u32 s3, 0")
        a("s_cbranch_scc1 L_st19")
        stamp(a, 19)
        a.label("L_st19")
    for s in range(4):
        a(f"buffer_load_dwordx2 v[{48+2*s}:{49+2*s}], v8, s[52:55], s12 offen offset:{s*256} sc1")
    for s in range(4):
        a(f"buffer_load_dwordx4 v[{16+8*s}:{19+8*s}], v7, s[52:55], s{10+(s>>1)} offen offset:{(s&1)*2048} sc1")
        a(f"buffer_load_dwordx4 v[{20+8*s}:{23+8*s}], v7, s[52:55], s{10+(s>>1)} offen offset:{(s&1)*2048+16} sc1")
    a("s_add_u32 s13, s13, 1")
    a("s_waitcnt vmcnt(0)")
    anysent(a, range(16, 56), 56)
    a("v_cmp_eq_u32 vcc, -1, v56")
    a(f"s_cmp_ge_u32 s13, {SPIN_MAX}")
    a("s_cbranch_scc1 L_pollC_done")
    a("s_cbranch_vccz L_pollC_done")
    a("s_sleep 4")
    a("s_branch L_pollC")
    a.label("L_pollC_done")
    if STAMP:
        a("s_cmp_lg_u32 s3, 0")
        a("s_cbranch_scc1 L_st8")
        stamp(a, 8)
        a.label("L_st8")
    a("v_max_f32 v56, v48, v50")
    a("v_max3_f32 v56, v56, v52, v54")
    for s in range(4):
        a(f"v_sub_f32 v{48+2*s}, v{48+2*s}, v56")
        a(f"v_exp_f32 v{48+2*s}, v{48+2*s}")
    a("s_nop 0")
    a("v_mul_f32 v57, v48, v49")
    for s in range(1, 4):
        a(f"v_fmac_f32 v57, v{48+2*s}, v{49+2*s}")
    a("v_rcp_f32 v57, v57")
    a("s_nop 0")
    for s in range(4):
        a(f"v_mul_f32 v{48+2*s}, v{48+2*s}, v57")
    for i in range(8):
        a(f"v_mul_f32 v{60+i}, v48, v{16+i}")
        for s in range(1, 4):
            a(f"v_fmac_f32 v{60+i}, v{48+2*s}, v{16+8*s+i}")
    pack8(a, 60, 68)
    a("v_lshlrev_b32 v6, 4, v0")
    a(f"v_add_u32 v6, {L_O}, v6")
    a("ds_write_b128 v6, v[68:71]")
    a("s_waitcnt lgkmcnt(0)")
    a.label("L_bar4")
    a("s_barrier")
    a("s_cmp_lg_u32 s3, 0")
    a("s_cbranch_scc1 L_stageD")
    a("v_bfe_u32 v5, v2, 2, 2")
    a("v_lshl_add_u32 v5, v4, 3, v5")
    a("v_lshlrev_b32 v5, 6, v5")
    a("v_and_b32 v6, 3, v2")
    a("v_lshl_add_u32 v5, v6, 3, v5")
    a(f"v_add_u32 v5, {L_WO}, v5")
    a("v_and_b32 v6, 7, v2")
    a("v_lshlrev_b32 v6, 9, v6")
    a("v_lshl_add_u32 v6, v4, 4, v6")
    a(f"v_add_u32 v6, {L_O}, v6")
    for j in range(8):
        a(f"ds_read_b128 v[{48+4*j}:{51+4*j}], v6 offset:{j*64}")
        a(f"ds_read_b64_tr_b16 v[{16+4*j}:{17+4*j}], v5 offset:{j*2048}")
        a(f"ds_read_b64_tr_b16 v[{18+4*j}:{19+4*j}], v5 offset:{j*2048+256}")
        a(f"ds_read_b64_tr_b16 v[{88+4*j}:{89+4*j}], v5 offset:{j*2048+32}")
        a(f"ds_read_b64_tr_b16 v[{90+4*j}:{91+4*j}], v5 offset:{j*2048+256+32}")
    a("s_waitcnt lgkmcnt(0)")
    for j in range(8):
        c0 = "0" if j == 0 else "v[80:83]"
        c1 = "0" if j == 0 else "v[84:87]"
        a(f"v_mfma_f32_16x16x32_bf16 v[80:83], v[{16+4*j}:{19+4*j}], v[{48+4*j}:{51+4*j}], {c0}")
        a(f"v_mfma_f32_16x16x32_bf16 v[84:87], v[{88+4*j}:{91+4*j}], v[{48+4*j}:{51+4*j}], {c1}")
    a("v_cmp_gt_u32 vcc, 8, v3")
    a("v_lshlrev_b32 v5, 7, v3")
    a("v_lshl_add_u32 v5, v4, 4, v5")
    a(f"v_add_u32 v5, {L_QL}, v5")
    a("v_lshlrev_b32 v6, 4, v2")
    a(f"v_add_u32 v7, {L_QL}, v6")
    a("s_lshl_b32 s6, s4, 1")
    a("s_mul_i32 s6, s6, 14")
    a("s_add_u32 s6, s6, s38")
    a("s_lshl_b32 s6, s6, 10")
    a(f"s_add_u32 s6, s6, {WS_P2}")
    a("s_and_b64 exec, exec, vcc")
    a("ds_write_b128 v5, v[80:83]")
    a("ds_write_b128 v5, v[84:87] offset:64")
    a("s_mov_b64 exec, s[58:59]")
    a("s_waitcnt lgkmcnt(0)")
    a("ds_read_b128 v[80:83], v7")
    a("s_waitcnt lgkmcnt(0)")
    a("buffer_store_dwordx4 v[80:83], v6, s[52:55], s6 offen sc1")
    if STAMP:
        a("s_cmp_lg_u32 s3, 0")
        a("s_cbranch_scc1 L_st9")
        stamp(a, 9)
        a("s_waitcnt vmcnt(0)")
        stamp(a, 18)
        a.label("L_st9")

    a.label("L_stageD")
    a("s_lshr_b32 s96, s2, 5")
    a("s_and_b32 s97, s2, 31")
    a("s_cmp_lg_u32 s3, 7")
    a("s_cbranch_scc1 L_bar5")
    a("v_lshrrev_b32 v5, 2, v2")
    a("v_lshlrev_b32 v5, 10, v5")
    a("v_and_b32 v6, 3, v2")
    a("v_lshl_add_u32 v5, v6, 5, v5")
    a("v_mov_b32 v6, 0x7fff0000")
    a("v_cndmask_b32 v5, v6, v5, s[56:57]")
    a("v_lshlrev_b32 v7, 4, v2")
    a("v_cndmask_b32 v7, v6, v7, s[56:57]")
    a("s_mul_i32 s6, s96, 896")
    a("buffer_load_dwordx4 v[8:11], v7, s[60:63], s6 offen")
    a("s_mov_b32 s13, 0")
    a.label("L_pollD")
    a("s_lshl_b32 s6, s96, 7")
    a(f"s_add_u32 s6, s6, {WS_P2}")
    for h in range(16):
        a(f"buffer_load_dwordx4 v[{128+8*h}:{131+8*h}], v5, s[52:55], s6 offen sc1")
        a(f"buffer_load_dwordx4 v[{132+8*h}:{135+8*h}], v5, s[52:55], s6 offen offset:16 sc1")
        a("s_add_u32 s6, s6, 14336")
    a("s_add_u32 s13, s13, 1")
    a("s_waitcnt vmcnt(0)")
    anysent(a, range(128, 256), 12)
    a("v_cmp_eq_u32 vcc, -1, v12")
    a(f"s_cmp_ge_u32 s13, {SPIN_MAX}")
    a("s_cbranch_scc1 L_pollD_done")
    a("s_cbranch_vccz L_pollD_done")
    a("s_sleep 4")
    a("s_branch L_pollD")
    a.label("L_pollD_done")
    stamp(a, 10, 13, 14)
    for h in range(1, 16):
        for i in range(8):
            a(f"v_add_f32 v{128+i}, v{128+i}, v{128+8*h+i}")
    unpack8(a, 8, 16)
    for i in range(0, 8, 2):
        bf16r2(a, 128+i, 129+i, 12)
        a(f"v_add_f32 v{16+i}, v{16+i}, v{128+i}")
        a(f"v_add_f32 v{17+i}, v{17+i}, v{129+i}")
        bf16r2(a, 16+i, 17+i, 12)
    a("v_lshlrev_b32 v5, 5, v2")
    a(f"v_add_u32 v5, {L_H}, v5")
    a("s_mov_b64 exec, s[56:57]")
    a("ds_write_b128 v5, v[16:19]")
    a("ds_write_b128 v5, v[20:23] offset:16")
    a("s_mov_b64 exec, s[58:59]")
    layernorm8(a, 16, 32, 33, 34, 56)
    for i in range(8):
        a(f"v_cndmask_b32 v{16+i}, 0, v{16+i}, s[56:57]")
    layernorm8(a, 16, 32, 33, 34, 56)
    a("s_mov_b64 exec, s[56:57]")
    a(f"ds_write_b128 v5, v[16:19] offset:{L_T-L_H}")
    a(f"ds_write_b128 v5, v[20:23] offset:{L_T-L_H+16}")
    a("s_mov_b64 exec, s[58:59]")
    a("s_waitcnt lgkmcnt(0)")
    stamp(a, 11, 13, 14)
    a("s_barrier")
    a("s_branch L_done")
    a.label("L_bar5")
    a("s_waitcnt vmcnt(0)")
    for i in range(14):
        a(f"v_lshlrev_b32 v{16+2*i}, 16, v{128+i}")
        a(f"v_and_b32 v{17+2*i}, 0xffff0000, v{128+i}")
        a(f"v_lshlrev_b32 v{44+2*i}, 16, v{144+i}")
        a(f"v_and_b32 v{45+2*i}, 0xffff0000, v{144+i}")
    a("v_lshlrev_b32 v174, 16, v174")
    C1 = -2.0 * LOG2E * math.sqrt(2.0/math.pi)
    C2 = C1 * 0.044715
    a(f"v_mov_b32 v72, {hex(f2u(C1))}")
    a(f"v_mov_b32 v73, {hex(f2u(C1))}")
    a(f"v_mov_b32 v74, {hex(f2u(C2))}")
    a(f"v_mov_b32 v75, {hex(f2u(C2))}")
    a("v_mov_b32 v76, 1.0")
    a("v_mov_b32 v77, 1.0")
    a("v_mov_b32 v78, 0")
    a("v_mov_b32 v79, 0")
    a("s_mul_i32 s6, s97, 56")
    a("s_lshl_b32 s7, s3, 3")
    a("s_add_u32 s6, s6, s7")
    a(f"s_add_u32 s6, s6, {L_H}")
    a("v_mov_b32 v5, s6")
    a("s_barrier")
    a(f"ds_read_b64 v[80:81], v5 offset:{L_T-L_H}")
    a("ds_read_b64 v[82:83], v5")
    a("s_waitcnt lgkmcnt(0)")
    for i in range(14):
        U = [84, 92]; Tt = [86, 94]; C = [88, 96]
        for d in range(2):
            osel = "op_sel_hi:[0,1]" if d == 0 else "op_sel:[1,0] op_sel_hi:[1,1]"
            a(f"v_pk_mul_f32 v[{U[d]}:{U[d]+1}], v[80:81], v[{16+2*i}:{17+2*i}] {osel}")
        for d in range(2):
            bf16r2(a, U[d], U[d]+1, C[d])
        for d in range(2):
            a(f"v_pk_add_f32 v[{U[d]}:{U[d]+1}], v[{U[d]}:{U[d]+1}], v[{44+2*i}:{45+2*i}]")
        for d in range(2):
            bf16r2(a, U[d], U[d]+1, C[d])
        for d in range(2):
            a(f"v_pk_mul_f32 v[{Tt[d]}:{Tt[d]+1}], v[{U[d]}:{U[d]+1}], v[{U[d]}:{U[d]+1}]")
        for d in range(2):
            a(f"v_pk_fma_f32 v[{Tt[d]}:{Tt[d]+1}], v[{Tt[d]}:{Tt[d]+1}], v[74:75], v[72:73]")
        for d in range(2):
            a(f"v_pk_mul_f32 v[{Tt[d]}:{Tt[d]+1}], v[{Tt[d]}:{Tt[d]+1}], v[{U[d]}:{U[d]+1}]")
        for d in range(2):
            a(f"v_exp_f32 v{Tt[d]}, v{Tt[d]}")
            a(f"v_exp_f32 v{Tt[d]+1}, v{Tt[d]+1}")
        for d in range(2):
            a(f"v_pk_add_f32 v[{Tt[d]}:{Tt[d]+1}], v[{Tt[d]}:{Tt[d]+1}], v[76:77]")
        for d in range(2):
            a(f"v_rcp_f32 v{Tt[d]}, v{Tt[d]}")
            a(f"v_rcp_f32 v{Tt[d]+1}, v{Tt[d]+1}")
        for d in range(2):
            a(f"v_pk_mul_f32 v[{Tt[d]}:{Tt[d]+1}], v[{Tt[d]}:{Tt[d]+1}], v[{U[d]}:{U[d]+1}]")
        for d in range(2):
            a(f"v_cvt_pk_bf16_f32 v{C[d]}, v{Tt[d]}, v{Tt[d]+1}")
        for d in range(2):
            a(f"v_dot2_f32_bf16 v{78+d}, v{C[d]}, v{160+i}, v{78+d}")
    a("s_nop 3")
    wave_reduce2(a, "v_add_f32", 78, 84, 79, 85)
    bf16r2(a, 78, 79, 84)
    a("v_add_f32 v78, v78, v174")
    a("v_add_f32 v79, v79, v174")
    bf16r2(a, 78, 79, 84)
    a("v_add_f32 v78, v78, v82")
    a("v_add_f32 v79, v79, v83")
    a("v_cvt_pk_bf16_f32 v78, v78, v79")
    a("s_mul_i32 s6, s96, 896")
    a("s_mul_i32 s7, s97, 28")
    a("s_add_u32 s6, s6, s7")
    a("s_lshl_b32 s7, s3, 2")
    a("s_add_u32 s6, s6, s7")
    a("v_mov_b32 v5, 0")
    a("s_mov_b64 exec, 1")
    a("buffer_store_dword v78, v5, s[76:79], s6 offen")
    if STAMP:
        a("s_cmp_lg_u32 s3, 0")
        a("s_cbranch_scc1 L_done")
        stamp(a, 13)
    a.label("L_done")
    a("s_endpgm")
    a.raw(".section .rodata,\"a\"")
    a.raw(".p2align 6")
    a.raw(f".amdhsa_kernel {n}")
    a.raw("  .amdhsa_next_free_vgpr 256")
    a.raw("  .amdhsa_next_free_sgpr 102")
    a.raw("  .amdhsa_accum_offset 256")
    a.raw("  .amdhsa_group_segment_fixed_size 0")
    a.raw("  .amdhsa_kernarg_size 104")
    a.raw("  .amdhsa_user_sgpr_count 2")
    a.raw("  .amdhsa_user_sgpr_kernarg_segment_ptr 1")
    a.raw("  .amdhsa_system_sgpr_workgroup_id_x 1")
    a.raw(".end_amdhsa_kernel")

def main():
    a = Asm()
    hdr = open("cdna_kernels/%s.s.ref" % NAME).read().split("\n")
    for l in hdr:
        if l.startswith("; @launch"):
            break
        a.raw(l)
    a.raw(f"; @launch grid=(256,1,1) block=(512,1,1) lds={LDS_BYTES}")
    a.raw('.amdgcn_target "amdgcn-amd-amdhsa--gfx950"')
    gen(a)
    out = sys.argv[1] if len(sys.argv) > 1 else OUT
    open(out, "w").write(a.text())

if __name__ == "__main__":
    main()
```

```python
import sys, math, struct, os, re

NAME = "sequential_preLN__gqa_block_cached__mixer_token_mlp__decode"
KNAME = NAME + "_kernel"
OUT = "cdna_kernels/%s.s" % NAME

def f2u(x):
    return struct.unpack("<I", struct.pack("<f", x))[0]

class Asm:
    def __init__(self):
        self.lines = []
    def __call__(self, s):
        for l in s.strip("\n").split("\n"):
            l = l.strip()
            m = re.search(r"offset:(\d+)", l)
            if m and l.startswith("buffer_"):
                assert int(m.group(1)) < 4096, l
            if m and l.startswith("ds_"):
                assert int(m.group(1)) < 65536, l
            self.lines.append("    " + l)
    def label(self, l):
        self.lines.append(l + ":")
    def raw(self, s):
        self.lines.append(s)
    def text(self):
        return "\n".join(self.lines) + "\n"

WS_Q = 0
WS_OP = 0x20000
WS_ML = 0xA0000
WS_P2 = 0xB0000
WS_CNT = 0xE8000
WS_BYTES = 0x400000

LOG2E = 1.4426950408889634
SCALE_C = 0.0625 * LOG2E
NT = os.environ.get("NT", " nt")
NTV = os.environ.get("NTV", NT)

MB = 131072
L_WQ = MB
L_XN = MB + 14336
L_QL = MB + 21504
L_WO = MB
L_O = MB + 22528
L_H = MB + 26624
L_T = MB + 28672
L_F = MB + 31744
L_NEXT = MB + 31808
NSTAT = int(os.environ.get("NSTAT", "24"))
LOOK = int(os.environ.get("LOOK", "4"))
DEPTH = int(os.environ.get("DEPTH", "2"))
VX = int(os.environ.get("VX", "0"))
BULK = int(os.environ.get("BULK", "0"))
IPF = int(os.environ.get("IPF", "0"))
G1 = int(os.environ.get("G1", "1"))
LDS_BYTES = 163840

SPIN_MAX = 1 << 18

def srd(a, d, base, nbytes):
    a(f"s_mov_b32 s{d}, s{base}")
    a(f"s_and_b32 s{d+1}, s{base+1}, 0xffff")
    a(f"s_mov_b32 s{d+2}, {nbytes}")
    a(f"s_mov_b32 s{d+3}, 0x00020000")

def wave_reduce(a, op, v, t):
    for ctl in ["quad_perm:[1,0,3,2]", "quad_perm:[2,3,0,1]", "row_half_mirror", "row_mirror"]:
        a("s_nop 1")
        a(f"{op}_dpp v{v}, v{v}, v{v} {ctl} row_mask:0xf bank_mask:0xf")
    group_reduce(a, op, v, t)

def group_reduce(a, op, v, t):
    a(f"v_mov_b32 v{t}, v{v}")
    a("s_nop 1")
    a(f"v_permlane16_swap_b32 v{v}, v{t}")
    a("s_nop 1")
    a(f"{op} v{v}, v{v}, v{t}")
    a(f"v_mov_b32 v{t}, v{v}")
    a("s_nop 1")
    a(f"v_permlane32_swap_b32 v{v}, v{t}")
    a("s_nop 1")
    a(f"{op} v{v}, v{v}, v{t}")

def wave_reduce2(a, op, v, t, w, u):
    for ctl in ["quad_perm:[1,0,3,2]", "quad_perm:[2,3,0,1]", "row_half_mirror", "row_mirror"]:
        a("s_nop 0")
        a(f"{op}_dpp v{v}, v{v}, v{v} {ctl} row_mask:0xf bank_mask:0xf")
        a(f"{op}_dpp v{w}, v{w}, v{w} {ctl} row_mask:0xf bank_mask:0xf")
    for sw in ["v_permlane16_swap_b32", "v_permlane32_swap_b32"]:
        a(f"v_mov_b32 v{t}, v{v}")
        a(f"v_mov_b32 v{u}, v{w}")
        a("s_nop 1")
        a(f"{sw} v{v}, v{t}")
        a(f"{sw} v{w}, v{u}")
        a("s_nop 1")
        a(f"{op} v{v}, v{v}, v{t}")
        a(f"{op} v{w}, v{w}, v{u}")

def bf16r(a, v):
    a(f"v_cvt_pk_bf16_f32 v{v}, v{v}, v{v}")
    a(f"v_and_b32 v{v}, 0xffff0000, v{v}")

def bf16r2(a, v, w, t):
    a(f"v_cvt_pk_bf16_f32 v{t}, v{v}, v{w}")
    a(f"v_lshlrev_b32 v{v}, 16, v{t}")
    a(f"v_and_b32 v{w}, 0xffff0000, v{t}")

def unpack8(a, src, dst):
    for i in range(4):
        a(f"v_lshlrev_b32 v{dst+2*i}, 16, v{src+i}")
        a(f"v_and_b32 v{dst+2*i+1}, 0xffff0000, v{src+i}")

def layernorm8(a, x, t0, t1, t2, smask, t3=35):
    a(f"v_add_f32 v{t0}, v{x}, v{x+1}")
    a(f"v_add_f32 v{t1}, v{x+2}, v{x+3}")
    a(f"v_add_f32 v{t2}, v{x+4}, v{x+5}")
    a(f"v_add_f32 v{t3}, v{x+6}, v{x+7}")
    a(f"v_add_f32 v{t0}, v{t0}, v{t1}")
    a(f"v_add_f32 v{t2}, v{t2}, v{t3}")
    a(f"v_add_f32 v{t0}, v{t0}, v{t2}")
    wave_reduce(a, "v_add_f32", t0, t1)
    a(f"v_mul_f32 v{t0}, {hex(f2u(1.0/448))}, v{t0}")
    a(f"v_sub_f32 v{t2}, v{x}, v{t0}")
    a(f"v_sub_f32 v{t3}, v{x+1}, v{t0}")
    a(f"v_mul_f32 v{t1}, v{t2}, v{t2}")
    a(f"v_mul_f32 v{t3}, v{t3}, v{t3}")
    for i in range(2, 8, 2):
        a(f"v_sub_f32 v{t2}, v{x+i}, v{t0}")
        a(f"v_fmac_f32 v{t1}, v{t2}, v{t2}")
        a(f"v_sub_f32 v{t2}, v{x+i+1}, v{t0}")
        a(f"v_fmac_f32 v{t3}, v{t2}, v{t2}")
    a(f"v_add_f32 v{t1}, v{t1}, v{t3}")
    a(f"v_cndmask_b32 v{t1}, 0, v{t1}, s[{smask}:{smask+1}]")
    wave_reduce(a, "v_add_f32", t1, t2)
    a(f"v_mul_f32 v{t1}, {hex(f2u(1.0/448))}, v{t1}")
    bf16r(a, t1)
    a(f"v_add_f32 v{t1}, {hex(f2u(1e-5))}, v{t1}")
    bf16r(a, t1)
    a(f"v_sqrt_f32 v{t1}, v{t1}")
    bf16r(a, t0)
    bf16r(a, t1)
    a(f"v_rcp_f32 v{t1}, v{t1}")
    for i in range(0, 8, 2):
        a(f"v_sub_f32 v{x+i}, v{x+i}, v{t0}")
        a(f"v_sub_f32 v{x+i+1}, v{x+i+1}, v{t0}")
        bf16r2(a, x+i, x+i+1, t2)
    for i in range(0, 8, 2):
        a(f"v_mul_f32 v{x+i}, v{x+i}, v{t1}")
        a(f"v_mul_f32 v{x+i+1}, v{x+i+1}, v{t1}")
        bf16r2(a, x+i, x+i+1, t2)

def layernorm8x2(a, x, y, tx, ty, smask):
    t0, t1, t2 = tx; u0, u1, u2 = ty
    a(f"v_add_f32 v{t0}, v{x}, v{x+1}")
    a(f"v_add_f32 v{u0}, v{y}, v{y+1}")
    for i in range(2, 8):
        a(f"v_add_f32 v{t0}, v{t0}, v{x+i}")
        a(f"v_add_f32 v{u0}, v{u0}, v{y+i}")
    wave_reduce2(a, "v_add_f32", t0, t1, u0, u1)
    a(f"v_mul_f32 v{t0}, {hex(f2u(1.0/448))}, v{t0}")
    a(f"v_mul_f32 v{u0}, {hex(f2u(1.0/448))}, v{u0}")
    for i in range(8):
        a(f"v_sub_f32 v{t2}, v{x+i}, v{t0}")
        a(f"v_sub_f32 v{u2}, v{y+i}, v{u0}")
        if i == 0:
            a(f"v_mul_f32 v{t1}, v{t2}, v{t2}")
            a(f"v_mul_f32 v{u1}, v{u2}, v{u2}")
        else:
            a(f"v_fmac_f32 v{t1}, v{t2}, v{t2}")
            a(f"v_fmac_f32 v{u1}, v{u2}, v{u2}")
    a(f"v_cndmask_b32 v{t1}, 0, v{t1}, s[{smask}:{smask+1}]")
    a(f"v_cndmask_b32 v{u1}, 0, v{u1}, s[{smask}:{smask+1}]")
    wave_reduce2(a, "v_add_f32", t1, t2, u1, u2)
    a(f"v_mul_f32 v{t1}, {hex(f2u(1.0/448))}, v{t1}")
    a(f"v_mul_f32 v{u1}, {hex(f2u(1.0/448))}, v{u1}")
    bf16r2(a, t1, u1, t2)
    a(f"v_add_f32 v{t1}, {hex(f2u(1e-5))}, v{t1}")
    a(f"v_add_f32 v{u1}, {hex(f2u(1e-5))}, v{u1}")
    bf16r2(a, t1, u1, t2)
    a(f"v_sqrt_f32 v{t1}, v{t1}")
    a(f"v_sqrt_f32 v{u1}, v{u1}")
    a("s_nop 0")
    bf16r2(a, t1, u1, t2)
    a(f"v_rcp_f32 v{t1}, v{t1}")
    a(f"v_rcp_f32 v{u1}, v{u1}")
    bf16r2(a, t0, u0, t2)
    for (z, m, r_) in ((x, t0, t1), (y, u0, u1)):
        for i in range(0, 8, 2):
            a(f"v_sub_f32 v{z+i}, v{z+i}, v{m}")
            a(f"v_sub_f32 v{z+i+1}, v{z+i+1}, v{m}")
            bf16r2(a, z+i, z+i+1, t2)
            a(f"v_mul_f32 v{z+i}, v{z+i}, v{r_}")
            a(f"v_mul_f32 v{z+i+1}, v{z+i+1}, v{r_}")

def pack8(a, x, dst):
    for i in range(4):
        a(f"v_cvt_pk_bf16_f32 v{dst+i}, v{x+2*i}, v{x+2*i+1}")

def anysent(a, regs, t):
    regs = list(regs)
    a(f"v_max_u32 v{t}, v{regs[0]}, v{regs[1]}")
    i = 2
    while i < len(regs):
        if i + 1 < len(regs):
            a(f"v_max3_u32 v{t}, v{t}, v{regs[i]}, v{regs[i+1]}")
            i += 2
        else:
            a(f"v_max_u32 v{t}, v{t}, v{regs[i]}")
            i += 1

QF = 16; OA = 64; KF = 128; VF = 160; KOFF = 192; VOFF = 200; KRA = 208; VRA = 212
SA = 220; PB = 224; M = 226; L = 227; AL = 228; T0 = 229; T1 = 230; T2 = 231

STAMP = int(os.environ.get("STAMP", "0"))
PRE = int(os.environ.get("PRE", "2"))
LATE0 = int(os.environ.get("LATE0", "0"))
MAP = int(os.environ.get("MAP", "1"))
def stamp(a, idx, va=233, vb=234):
    if not STAMP: return
    a("s_memrealtime s[42:43]")
    a("s_waitcnt lgkmcnt(0)")
    a(f"v_mov_b32 v{va}, s42")
    a("s_lshl_b32 s42, s2, 7")
    a(f"s_add_u32 s42, s42, {0x200000 + idx*4}")
    a(f"v_mov_b32 v{vb}, 0")
    a("s_mov_b64 exec, 1")
    a(f"buffer_store_dword v{va}, v{vb}, s[52:55], s42 offen")
    a("s_mov_b64 exec, s[58:59]")

def gen(a):
    n = KNAME
    a.raw(".text")
    a.raw(f".globl {n}")
    a.raw(".p2align 8")
    a.raw(f".type {n},@function")
    a.label(n)
    a("s_cmp_ge_u32 s2, 256")
    a("s_cbranch_scc1 L_done")
    a("s_load_dwordx16 s[16:31], s[0:1], 0")
    a("s_load_dwordx8 s[32:39], s[0:1], 64")
    a("s_load_dwordx2 s[40:41], s[0:1], 96")
    a("v_lshrrev_b32 v1, 6, v0")
    a("v_and_b32 v2, 63, v0")
    a("v_and_b32 v3, 15, v2")
    a("v_readfirstlane_b32 s3, v1")
    a("v_lshrrev_b32 v4, 4, v2")
    if MAP == 0:
        a("s_and_b32 s4, s2, 7")
        a("s_lshr_b32 s5, s2, 3")
    else:
        a("s_lshr_b32 s4, s2, 5")
        a("s_and_b32 s5, s2, 31")
    a("s_lshr_b32 s96, s5, 2")
    a("s_and_b32 s97, s5, 3")
    a("s_lshl_b32 s98, s4, 5")
    a("s_add_u32 s98, s98, s5")
    a("v_cmp_gt_u32 s[56:57], 56, v2")
    a("s_mov_b64 s[58:59], exec")
    a("s_waitcnt lgkmcnt(0)")
    srd(a, 44, 18, 0x10000000)
    srd(a, 48, 20, 0x10000000)
    srd(a, 52, 40, WS_BYTES)
    srd(a, 60, 16, 7168)
    srd(a, 64, 22, 448*4096*2)
    srd(a, 68, 24, 4096*448*2)
    srd(a, 72, 38, 256)
    srd(a, 76, 36, 7168)
    srd(a, 80, 28, 3584)
    srd(a, 84, 30, 3584)
    srd(a, 88, 32, 3584)
    srd(a, 92, 34, 4)
    a("s_and_b32 s38, s5, 7")
    a("s_lshl_b32 s38, s38, 2")
    a("s_lshr_b32 s39, s5, 3")
    a("s_add_u32 s38, s38, s39")
    a("s_lshl_b32 s39, s4, 5")
    a("s_add_u32 s39, s39, s38")
    a("s_cmp_ge_u32 s3, 4")
    a("s_cbranch_scc1 L_helpers")

    if STAMP:
        a("s_cmp_lg_u32 s3, 0")
        a("s_cbranch_scc1 L_st0")
        stamp(a, 0)
        a.label("L_st0")
    a("v_lshrrev_b32 v7, 5, v2")
    a("v_and_b32 v8, 31, v2")
    for p in range(8):
        a(f"v_add_u32 v5, {2*p}, v7")
        a("v_xor_b32 v6, v8, v5")
        a("v_lshlrev_b32 v6, 4, v6")
        a(f"v_lshl_add_u32 v{KOFF+p}, v7, 9, v6")
        a(f"v_add_u32 v{KOFF+p}, {p*4096-(p&3)*1024}, v{KOFF+p}")
        a("v_and_b32 v5, 7, v5")
        a("v_lshlrev_b32 v5, 1, v5")
        a("v_xor_b32 v6, v8, v5")
        a("v_lshlrev_b32 v6, 4, v6")
        a(f"v_lshl_add_u32 v{VOFF+p}, v7, 9, v6")
        a(f"v_add_u32 v{VOFF+p}, {p*4096-(p&3)*1024}, v{VOFF+p}")
    a("s_lshl_b32 s8, s3, 15")
    a("s_lshl_b32 s20, s96, 3")
    a("s_add_u32 s20, s20, s4")
    a("s_lshl_b32 s20, s20, 22")
    a("s_lshl_b32 s6, s3, 10")
    a("s_add_u32 s20, s20, s6")
    a(f"s_mul_i32 s6, s97, {NSTAT*32768}")
    a("s_add_u32 s9, s20, s6")

    def issue(kind, slot):
        srd_ = "s[44:47]" if kind == "K" else "s[48:51]"
        so = "s9"
        off = KOFF if kind == "K" else VOFF
        ntk = NT if kind == "K" else NTV
        a(f"s_add_u32 s11, s8, {slot*8192}")
        a("s_mov_b32 m0, s11")
        a(f"s_add_u32 s12, s8, {slot*8192+4096}")
        for p in range(4):
            a(f"buffer_load_dwordx4 v{off+p}, {srd_}, {so} offen offset:{p*1024}{ntk} lds")
        a("s_mov_b32 m0, s12")
        a("s_nop 0")
        for p in range(4):
            a(f"buffer_load_dwordx4 v{off+4+p}, {srd_}, {so} offen offset:{p*1024}{ntk} lds")

    def ldsspin(word, target, lab):
        a(f"v_mov_b32 v5, {L_F + word*4}")
        a.label(lab)
        a("ds_read_b32 v6, v5")
        a("s_waitcnt lgkmcnt(0)")
        a("v_readfirstlane_b32 s6, v6")
        a(f"s_cmp_ge_u32 s6, {target}")
        a(f"s_cbranch_scc1 {lab}_d")
        a("s_sleep 1")
        a(f"s_branch {lab}")
        a.label(lab + "_d")

    units = [("K", 0), ("V", 1), ("K", 2), ("V", 3)]
    a("s_barrier")
    assert PRE == 2
    for u in units[:2]: issue(*u)
    a("s_add_u32 s9, s9, 32768")
    for jj in range(4):
        a(f"v_add_u32 v5, {4*jj}, v4")
        a("v_xor_b32 v5, v5, v3")
        a("v_lshlrev_b32 v5, 4, v5")
        a(f"v_lshl_add_u32 v5, v3, 9, v5")
        a(f"v_add_u32 v{KRA+jj}, s8, v5")
    a("v_bfe_u32 v5, v2, 2, 2")
    a("v_lshl_add_u32 v5, v4, 2, v5")
    a("v_and_b32 v6, 7, v5")
    a("v_and_b32 v7, 3, v2")
    a("v_lshlrev_b32 v7, 3, v7")
    a("v_lshl_add_u32 v7, v5, 9, v7")
    a("v_add_u32 v7, s8, v7")
    for nn in range(8):
        a(f"v_xor_b32 v5, {nn}, v6")
        a(f"v_lshl_add_u32 v{VRA+nn}, v5, 5, v7")
    for i in range(64):
        a(f"v_mov_b32 v{OA+i}, 0")
    a(f"v_mov_b32 v{M}, 0xf149f2ca")
    a(f"v_mov_b32 v{L}, 0")
    a(f"s_mov_b32 s14, {hex(f2u(SCALE_C))}")
    if PRE < 4:
        ldsspin(G1, 1, "L_spin1")
        for u in units[PRE:]: issue(*u)
    ldsspin(2, 1, "L_spin2")
    a("v_and_b32 v5, 1, v2")
    a("v_lshlrev_b32 v5, 9, v5")
    a("v_lshl_add_u32 v5, v4, 4, v5")
    a(f"v_add_u32 v5, {L_QL}, v5")
    for j in range(8):
        a(f"ds_read_b128 v[{QF+4*j}:{QF+4*j+3}], v5 offset:{j*64}")
    a("s_waitcnt lgkmcnt(0)")
    a(f"v_mov_b32 v235, {L_NEXT+8}")
    a(f"v_mov_b32 v238, {L_F+12}")

    def step(kslot, vslot, do_issue, wk, wv, tag):
        a("s_cmp_eq_u32 s15, 1000")
        a(f"s_cbranch_scc1 L_wk_{tag}")
        a("s_waitcnt vmcnt(0)")
        a.label(f"L_wk_{tag}")
        a(f"s_waitcnt vmcnt({wk})")
        a("v_mov_b32 v237, s13")
        a("ds_read_b32 v236, v235")
        if VX != 2: a("ds_write_b32 v238, v237")
        for j in range(8):
            a(f"ds_read_b128 v[{KF+4*j}:{KF+4*j+3}], v{KRA+(j&3)} offset:{kslot*8192 + (j>>2)*256}")
        for j in range(8):
            a(f"s_waitcnt lgkmcnt({7-j})")
            c = "0" if j == 0 else f"v[{SA}:{SA+3}]"
            a(f"v_mfma_f32_16x16x32_bf16 v[{SA}:{SA+3}], v[{KF+4*j}:{KF+4*j+3}], v[{QF+4*j}:{QF+4*j+3}], {c}")
        a("v_readfirstlane_b32 s6, v236")
        a("s_cmp_lg_u32 s6, -1")
        a(f"s_cbranch_scc1 L_nx_{tag}")
        a.label(f"L_nxs_{tag}")
        a("s_sleep 1")
        a("ds_read_b32 v236, v235")
        a("s_waitcnt lgkmcnt(0)")
        a("v_readfirstlane_b32 s6, v236")
        a("s_cmp_eq_u32 s6, -1")
        a(f"s_cbranch_scc1 L_nxs_{tag}")
        a.label(f"L_nx_{tag}")
        a("v_add_u32 v235, 4, v235")
        a("s_lshl_b32 s7, s6, 15")
        a("s_add_u32 s9, s20, s7")
        a("s_add_u32 s7, s13, 2")
        a("s_min_u32 s7, s7, s15")
        a("s_cmp_ge_u32 s6, 128")
        a("s_cselect_b32 s15, s7, s15")
        a(f"s_cbranch_scc1 L_noik_{tag}")
        issue("K", kslot)
        a.label(f"L_noik_{tag}")
        a("s_nop 3")
        a(f"v_cvt_pk_bf16_f32 v{T0}, v{SA}, v{SA+1}")
        a(f"v_cvt_pk_bf16_f32 v{T1}, v{SA+2}, v{SA+3}")
        a(f"v_lshlrev_b32 v{SA}, 16, v{T0}")
        a(f"v_and_b32 v{SA+1}, 0xffff0000, v{T0}")
        a(f"v_lshlrev_b32 v{SA+2}, 16, v{T1}")
        a(f"v_and_b32 v{SA+3}, 0xffff0000, v{T1}")
        a(f"v_max3_f32 v{T0}, v{SA}, v{SA+1}, v{SA+2}")
        a(f"v_max_f32 v{T0}, v{T0}, v{SA+3}")
        group_reduce(a, "v_max_f32", T0, T1)
        a(f"v_mul_f32 v{T0}, s14, v{T0}")
        a(f"v_max_f32 v{T0}, v{T0}, v{M}")
        a(f"v_sub_f32 v{AL}, v{M}, v{T0}")
        a(f"v_exp_f32 v{AL}, v{AL}")
        a(f"v_mov_b32 v{M}, v{T0}")
        for r in range(4):
            a(f"v_fma_f32 v{SA+r}, v{SA+r}, s14, -v{T0}")
        for r in range(4):
            a(f"v_exp_f32 v{SA+r}, v{SA+r}")
        a(f"v_cmp_neq_f32 vcc, 1.0, v{AL}")
        a(f"v_cvt_pk_bf16_f32 v{PB}, v{SA}, v{SA+1}")
        a(f"v_cvt_pk_bf16_f32 v{PB+1}, v{SA+2}, v{SA+3}")
        a(f"v_add_f32 v{T1}, v{SA}, v{SA+1}")
        a(f"v_add_f32 v{T2}, v{SA+2}, v{SA+3}")
        a(f"v_add_f32 v{T1}, v{T1}, v{T2}")
        a(f"v_fma_f32 v{L}, v{L}, v{AL}, v{T1}")
        a(f"s_cbranch_vccz L_nors_{tag}")
        for i in range(64):
            a(f"v_mul_f32 v{OA+i}, v{OA+i}, v{AL}")
        a.label(f"L_nors_{tag}")
        a("s_cmp_eq_u32 s15, 1000")
        a(f"s_cbranch_scc1 L_wv_{tag}")
        a("s_waitcnt vmcnt(0)")
        a.label(f"L_wv_{tag}")
        a(f"s_waitcnt vmcnt({wv})")
        for nn in range(16):
            a(f"ds_read_b64_tr_b16 v[{VF+2*nn}:{VF+2*nn+1}], v{VRA+(nn&7)} offset:{vslot*8192 + (nn>>3)*256}")
        for nn in range(16):
            a(f"s_waitcnt lgkmcnt({15-nn})")
            a(f"v_mfma_f32_16x16x16_bf16 v[{OA+4*nn}:{OA+4*nn+3}], v[{VF+2*nn}:{VF+2*nn+1}], v[{PB}:{PB+1}], v[{OA+4*nn}:{OA+4*nn+3}]")
        a("s_cmp_lg_u32 s15, 1000")
        a(f"s_cbranch_scc1 L_noiv_{tag}")
        issue("V", vslot)
        a.label(f"L_noiv_{tag}")

    a("s_mov_b32 s13, 0")
    a("s_mov_b32 s15, 1000")
    a.label("L_loop")
    step(0, 1, True, 24, 24, "a")
    a("s_add_u32 s13, s13, 1")
    a("s_cmp_ge_u32 s13, s15")
    a("s_cbranch_scc1 L_loop_done")
    step(2, 3, True, 24, 24, "b")
    a("s_add_u32 s13, s13, 1")
    a("s_cmp_lt_u32 s13, s15")
    a("s_cbranch_scc1 L_loop")
    a.label("L_loop_done")
    a("s_waitcnt vmcnt(0)")
    if STAMP:
        a("s_cmp_lg_u32 s3, 0")
        a("s_cbranch_scc1 L_st6")
        stamp(a, 6)
        a.label("L_st6")
    group_reduce(a, "v_add_f32", L, T1)
    a("s_nop 7")
    a("v_cmp_gt_u32 vcc, 2, v3")
    a("v_lshlrev_b32 v5, 10, v3")
    a("v_lshl_add_u32 v5, v4, 4, v5")
    a("v_add_u32 v5, s8, v5")
    a("s_and_b64 exec, exec, vcc")
    for nn in range(16):
        a(f"ds_write_b128 v5, v[{OA+4*nn}:{OA+4*nn+3}] offset:{nn*64}")
    a("v_cmp_gt_u32 vcc, 2, v2")
    a("v_lshlrev_b32 v5, 3, v2")
    a("v_add_u32 v5, s8, v5")
    a("s_and_b64 exec, exec, vcc")
    a(f"ds_write_b64 v5, v[{M}:{M+1}] offset:2048")
    a("s_mov_b64 exec, s[58:59]")
    a("s_waitcnt lgkmcnt(0)")
    a("s_barrier")
    a("v_lshrrev_b32 v5, 7, v0")
    a("v_lshlrev_b32 v6, 3, v5")
    a("v_lshlrev_b32 v7, 3, v0")
    a("v_add_u32 v9, 0x10000, v6")
    a("v_add_u32 v10, 0x10000, v7")
    for w in range(4):
        a(f"ds_read_b64 v[{16+2*w}:{17+2*w}], v{6 if w<2 else 9} offset:{(w&1)*32768+2048}")
        a(f"ds_read_b64 v[{24+2*w}:{25+2*w}], v{7 if w<2 else 10} offset:{(w&1)*32768}")
    a("s_waitcnt lgkmcnt(0)")
    a("v_max_f32 v32, v16, v18")
    a("v_max3_f32 v32, v32, v20, v22")
    for w in range(4):
        a(f"v_sub_f32 v{16+2*w}, v{16+2*w}, v32")
        a(f"v_exp_f32 v{16+2*w}, v{16+2*w}")
    a("s_nop 0")
    a("v_mul_f32 v33, v16, v17")
    a("v_mul_f32 v34, v16, v24")
    a("v_mul_f32 v35, v16, v25")
    for w in range(1, 4):
        a(f"v_fmac_f32 v33, v{16+2*w}, v{17+2*w}")
        a(f"v_fmac_f32 v34, v{16+2*w}, v{24+2*w}")
        a(f"v_fmac_f32 v35, v{16+2*w}, v{25+2*w}")
    a("s_lshl_b32 s6, s98, 11")
    a(f"s_add_u32 s6, s6, {WS_OP}")
    a("buffer_store_dwordx2 v[34:35], v7, s[52:55], s6 offen sc1")
    a("v_and_b32 v8, 127, v0")
    a("v_cmp_gt_u32 vcc, 16, v8")
    a("v_lshlrev_b32 v8, 3, v8")
    a("v_lshl_add_u32 v8, v5, 7, v8")
    a("s_lshl_b32 s6, s98, 8")
    a(f"s_add_u32 s6, s6, {WS_ML}")
    a("s_and_b64 exec, exec, vcc")
    a("s_cbranch_execz L_noml")
    a("buffer_store_dwordx2 v[32:33], v8, s[52:55], s6 offen sc1")
    a.label("L_noml")
    a("s_mov_b64 exec, s[58:59]")
    a("s_branch L_tail")

    a.label("L_helpers")
    a("s_memrealtime s[16:17]")
    a("v_lshlrev_b32 v5, 4, v2")
    a("v_mov_b32 v6, 0x7fff0000")
    a("v_cndmask_b32 v5, v6, v5, s[56:57]")
    a("s_sub_u32 s6, s3, 4")
    a("s_mul_i32 s15, s6, 1792")
    a("buffer_load_dwordx4 v[8:11], v5, s[60:63], s15 offen")
    a("buffer_load_dwordx4 v[12:15], v5, s[60:63], s15 offen offset:896")
    a("s_cmp_ge_u32 s38, 14")
    a("s_cselect_b32 s99, 1, 0")
    a("s_mul_i32 s6, s99, 14")
    a("s_sub_u32 s100, s38, s6")
    a("s_lshl_b32 s101, s4, 1")
    a("s_add_u32 s101, s101, s99")
    a("s_cmp_lg_u32 s3, 4")
    a("s_cbranch_scc1 L_h_not4")
    a("v_lshrrev_b32 v5, 1, v2")
    a("v_lshlrev_b32 v5, 13, v5")
    a("v_and_b32 v6, 1, v2")
    a("v_lshl_add_u32 v5, v6, 4, v5")
    a("s_lshl_b32 s6, s39, 5")
    a(f"s_mov_b32 s7, {L_WQ}")
    for p in range(14):
        a("s_mov_b32 m0, s7")
        a("s_add_u32 s7, s7, 1024")
        a("buffer_load_dwordx4 v5, s[64:67], s6 offen lds")
        a("s_add_u32 s6, s6, 0x40000")
    a(f"v_mov_b32 v5, {L_F}")
    for i in range(4):
        a(f"v_mov_b32 v{16+i}, 0")
    a("ds_write_b128 v5, v[16:19]")
    a(f"s_mul_i32 s6, s97, {NSTAT}")
    a("v_add_u32 v16, s6, v2")
    a(f"v_cmp_gt_u32 vcc, {NSTAT}, v2")
    a("v_lshlrev_b32 v5, 2, v2")
    a(f"v_add_u32 v5, {L_NEXT}, v5")
    a("v_cndmask_b32 v16, -1, v16, vcc")
    if VX: a("v_add_u32 v16, s6, v2")
    if VX: a("v_max_u32 v16, v16, v16")
    if VX: a(f"v_mov_b32 v17, 0x1000")
    if VX: a("v_cndmask_b32 v16, v17, v16, vcc")
    a("v_mov_b32 v17, -1")
    a("ds_write_b32 v5, v16")
    a("ds_write_b32 v5, v17 offset:256")
    a("s_branch L_h_bar0")
    a.label("L_h_not4")
    a("s_cmp_lg_u32 s3, 6")
    a("s_cbranch_scc1 L_h_bar0")
    a("s_cmp_lg_u32 s97, 0")
    a("s_cbranch_scc1 L_nocinit")
    a("s_lshl_b32 s6, s4, 3")
    a("s_add_u32 s6, s6, s96")
    a("s_lshl_b32 s6, s6, 8")
    a(f"s_add_u32 s6, s6, {WS_CNT}")
    a("s_waitcnt lgkmcnt(0)")
    a("s_lshr_b64 s[18:19], s[16:17], 2")
    a("s_and_b32 s7, s18, 0xffffff00")
    a("v_mov_b32 v16, s7")
    a("v_mov_b32 v17, 0")
    a("s_mov_b64 exec, 1")
    a("buffer_store_dword v16, v17, s[52:55], s6 offen sc1")
    a("s_mov_b64 exec, s[58:59]")
    a.label("L_nocinit")
    a.label("L_h_bar0")
    a("s_waitcnt lgkmcnt(0)")
    if not LATE0: a("s_barrier")
    a("s_lshr_b64 s[16:17], s[16:17], 10")
    a("s_cmp_eq_u32 s3, 4")
    a("s_cbranch_scc1 L_h_w14")
    a("s_cmp_eq_u32 s3, 6")
    a("s_cbranch_scc1 L_h_w3")
    a("s_waitcnt vmcnt(0)")
    a("s_branch L_h_ln")
    a.label("L_h_w14")
    a(f"s_waitcnt vmcnt({0 if LATE0 else 14})")
    a("s_branch L_h_ln")
    a.label("L_h_w3")
    a("s_waitcnt vmcnt(1)")
    a("s_cmp_eq_u32 s97, 0")
    a("s_cbranch_scc1 L_h_ln")
    a("s_waitcnt vmcnt(0)")
    a.label("L_h_ln")
    if LATE0: a("s_barrier")
    unpack8(a, 8, 16)
    unpack8(a, 12, 24)
    layernorm8x2(a, 16, 24, (32, 33, 34), (35, 36, 37), 56)
    pack8(a, 16, 8)
    pack8(a, 24, 12)
    a("v_lshlrev_b32 v5, 4, v2")
    a(f"s_add_u32 s6, s15, {L_XN}")
    a("v_add_u32 v5, s6, v5")
    a("s_mov_b64 exec, s[56:57]")
    a("ds_write_b128 v5, v[8:11]")
    a("ds_write_b128 v5, v[12:15] offset:896")
    a("s_mov_b64 exec, 1")
    a(f"v_mov_b32 v5, {L_F}")
    a("v_mov_b32 v6, 1")
    a("s_waitcnt lgkmcnt(0)")
    a("ds_add_u32 v5, v6")
    a("s_mov_b64 exec, s[58:59]")
    a("s_lshl_b32 s7, s4, 5")
    a("v_mov_b32 v9, s7")
    a("v_mov_b32 v8, 1")
    a("s_cmp_eq_u32 s3, 4")
    a("s_cbranch_scc1 L_service")
    a("s_cmp_eq_u32 s3, 5")
    a("s_cbranch_scc1 L_w5")
    if IPF:
        a("s_cmp_lg_u32 s3, 7")
        a("s_cbranch_scc1 L_not7")
        assert IPF < NSTAT
        a(f"v_mov_b32 v5, {L_F+12}")
        a("s_mov_b32 s13, 0")
        a.label("L_w7s")
        a("s_sleep 32")
        a("ds_read_b32 v6, v5")
        a("s_add_u32 s13, s13, 1")
        a("s_waitcnt lgkmcnt(0)")
        a("v_readfirstlane_b32 s6, v6")
        a("s_cmp_ge_u32 s13, 0x10000")
        a("s_cbranch_scc1 L_w7s_d")
        a(f"s_cmp_lt_u32 s6, {IPF}")
        a("s_cbranch_scc1 L_w7s")
        a.label("L_w7s_d")
        a("s_getpc_b64 s[36:37]")
        a.label("L_pc0")
        a("s_add_u32 s36, s36, L_loop_done-L_pc0")
        a("s_addc_u32 s37, s37, -1")
        a("s_mov_b32 s6, 0")
        a.label("L_pf1")
        a("s_load_dwordx16 s[20:35], s[36:37], s6")
        a("s_add_u32 s6, s6, 64")
        a("s_cmp_lt_u32 s6, L_helpers-L_loop_done")
        a("s_cbranch_scc1 L_pf1")
        a("s_waitcnt lgkmcnt(0)")
        a("s_getpc_b64 s[36:37]")
        a.label("L_pc1")
        a("s_add_u32 s36, s36, L_tail-L_pc1")
        a("s_addc_u32 s37, s37, 0")
        a("s_mov_b32 s6, 0")
        a.label("L_pf2")
        a("s_load_dwordx16 s[20:35], s[36:37], s6")
        a("s_add_u32 s6, s6, 64")
        a("s_cmp_lt_u32 s6, L_done-L_tail")
        a("s_cbranch_scc1 L_pf2")
        a("s_waitcnt lgkmcnt(0)")
        a("s_branch L_h_bar3")
        a.label("L_not7")
    a("s_cmp_lg_u32 s3, 6")
    a("s_cbranch_scc1 L_h_bar3")
    if VX == 4: a("s_branch L_h_bar3")
    for i in range(4):
        a(f"v_mov_b32 v{16+i}, -1")
    a("v_lshlrev_b32 v6, 4, v2")
    a("s_lshl_b32 s6, s98, 11")
    a(f"s_add_u32 s6, s6, {WS_OP}")
    a("buffer_store_dwordx4 v[16:19], v6, s[52:55], s6 offen sc1")
    a("buffer_store_dwordx4 v[16:19], v6, s[52:55], s6 offen offset:1024 sc1")
    a("s_lshl_b32 s6, s98, 8")
    a(f"s_add_u32 s6, s6, {WS_ML}")
    a("s_mov_b64 exec, 0xffff")
    a("buffer_store_dwordx4 v[16:19], v6, s[52:55], s6 offen sc1")
    a("s_mov_b64 exec, s[58:59]")
    a("s_cmp_ge_u32 s38, 28")
    a("s_cbranch_scc1 L_clr_done")
    a("s_lshl_b32 s6, s4, 1")
    a("s_mul_i32 s6, s6, 14")
    a("s_add_u32 s6, s6, s38")
    a("s_lshl_b32 s6, s6, 10")
    a(f"s_add_u32 s6, s6, {WS_P2}")
    a("buffer_store_dwordx4 v[16:19], v6, s[52:55], s6 offen sc1")
    a.label("L_clr_done")
    a("s_mov_b64 exec, 1")
    a("s_waitcnt vmcnt(0)")
    a("buffer_atomic_add v8, v9, s[72:75], 0 offen sc1")
    a("s_mov_b64 exec, s[58:59]")
    a("s_branch L_h_bar3")
    a.label("L_w5")
    a(f"v_mov_b32 v5, {L_F+12}")
    a("s_mov_b32 s13, 0")
    a.label("L_w5s")
    a("s_sleep 32")
    a("ds_read_b32 v6, v5")
    a("s_add_u32 s13, s13, 1")
    a("s_waitcnt lgkmcnt(0)")
    a("v_readfirstlane_b32 s6, v6")
    a("s_cmp_ge_u32 s13, 0x10000")
    a("s_cbranch_scc1 L_w5s_d")
    a(f"s_cmp_lt_u32 s6, {min(20, NSTAT-2)}")
    a("s_cbranch_scc1 L_w5s")
    a.label("L_w5s_d")
    a("v_lshlrev_b32 v9, 5, v2")
    a("v_cmp_gt_u32 vcc, 8, v2")
    a("s_mov_b32 s13, 0")
    a("s_and_b64 exec, exec, vcc")
    a.label("L_pollall")
    a("buffer_load_dword v10, v9, s[72:75], 0 offen sc1")
    a("s_add_u32 s13, s13, 1")
    a("s_waitcnt vmcnt(0)")
    a("v_cmp_gt_u32 vcc, 64, v10")
    a(f"s_cmp_ge_u32 s13, {SPIN_MAX}")
    a("s_cbranch_scc1 L_pollall_done")
    a("s_cbranch_vccz L_pollall_done")
    a("s_sleep 64")
    a("s_branch L_pollall")
    a.label("L_pollall_done")
    a("s_mov_b64 exec, s[58:59]")
    stamp(a, 12, 236, 237)
    a.label("L_h_bar3")
    a("s_barrier")
    a("s_branch L_tail")

    a.label("L_service")
    a("v_bfe_u32 v6, v2, 2, 2")
    a("v_lshl_add_u32 v6, v4, 3, v6")
    a("v_lshlrev_b32 v6, 5, v6")
    a("v_and_b32 v7, 3, v2")
    a("v_lshl_add_u32 v6, v7, 3, v6")
    a(f"v_add_u32 v10, {L_WQ}, v6")
    a("v_and_b32 v7, 7, v2")
    a("v_mul_u32_u24 v7, 896, v7")
    a("v_lshl_add_u32 v7, v4, 4, v7")
    a(f"v_add_u32 v7, {L_XN}, v7")
    a("s_waitcnt vmcnt(0)")
    stamp(a, 1, 236, 237)
    for j in range(14):
        a(f"ds_read_b64_tr_b16 v[{40+4*j}:{41+4*j}], v10 offset:{j*1024}")
        a(f"ds_read_b64_tr_b16 v[{42+4*j}:{43+4*j}], v10 offset:{j*1024+128}")
    ldsspin(0, 4, "L_spin0")
    stamp(a, 2, 236, 237)
    for j in range(14):
        a(f"ds_read_b128 v[{100+4*j}:{103+4*j}], v7 offset:{j*64}")
    for j in range(14):
        a(f"s_waitcnt lgkmcnt({13-j})")
        c = "0" if j == 0 else "v[32:35]"
        a(f"v_mfma_f32_16x16x32_bf16 v[32:35], v[{40+4*j}:{43+4*j}], v[{100+4*j}:{103+4*j}], {c}")
    a("v_cmp_gt_u32 vcc, 8, v3")
    a("v_lshlrev_b32 v5, 6, v3")
    a("v_lshl_add_u32 v5, v4, 4, v5")
    a("s_lshl_b32 s6, s39, 9")
    a("v_mov_b32 v37, s16")
    a("v_mov_b32 v39, s16")
    a(f"v_mov_b32 v6, {L_F+4}")
    a("s_sub_u32 s17, s16, 2")
    a("s_nop 1")
    a("v_cvt_pk_bf16_f32 v36, v32, v33")
    a("v_cvt_pk_bf16_f32 v38, v34, v35")
    a("s_and_b64 exec, exec, vcc")
    a(f"buffer_store_dwordx4 v[36:39], v5, s[52:55], s6 offen offset:{WS_Q} sc1")
    a("s_mov_b64 exec, 1")
    a("ds_write_b32 v6, v8")
    a("s_mov_b64 exec, s[58:59]")
    stamp(a, 3, 236, 237)
    a("v_lshrrev_b32 v5, 1, v2")
    a("v_lshlrev_b32 v5, 9, v5")
    a("v_and_b32 v6, 1, v2")
    a("v_lshl_add_u32 v5, v6, 5, v5")
    a("s_lshl_b32 s6, s96, 6")
    a("s_lshl_b32 s7, s4, 14")
    a("s_add_u32 s15, s6, s7")
    a("s_mov_b32 s13, 0")
    def qld(base):
        a(f"buffer_load_dwordx4 v[{base}:{base+3}], v5, s[52:55], s15 offen offset:{WS_Q} sc1")
        a(f"buffer_load_dwordx4 v[{base+4}:{base+7}], v5, s[52:55], s15 offen offset:{WS_Q+16} sc1")
    def qchk(base):
        a(f"v_subrev_u32 v20, s17, v{base+1}")
        a(f"v_subrev_u32 v21, s17, v{base+3}")
        a(f"v_subrev_u32 v22, s17, v{base+5}")
        a(f"v_subrev_u32 v23, s17, v{base+7}")
        a("v_max_u32 v20, v20, v21")
        a("v_max3_u32 v20, v20, v22, v23")
        a("v_cmp_lt_u32 vcc, 4, v20")
    qld(12)
    a.label("L_pq2")
    qld(24)
    a("s_waitcnt vmcnt(2)")
    qchk(12)
    a("s_cbranch_vccz L_pollq_done")
    qld(12)
    a("s_waitcnt vmcnt(2)")
    qchk(24)
    a("s_cbranch_vccz L_pq_useB")
    a("s_add_u32 s13, s13, 2")
    a("s_cmp_lt_u32 s13, 2047")
    a("s_cbranch_scc1 L_pq2")
    a("s_mov_b32 s13, 2047")
    a("s_branch L_pollq")
    a.label("L_pq_useB")
    a("v_mov_b32 v32, v24")
    a("v_mov_b32 v33, v26")
    a("v_mov_b32 v34, v28")
    a("v_mov_b32 v35, v30")
    a("s_branch L_pollq_wr")
    a.label("L_pollq")
    qld(12)
    a("s_waitcnt vmcnt(0)")
    a("s_cmp_lg_u32 s13, 2047")
    a("s_cbranch_scc1 L_pq_noat")
    a("s_mov_b64 exec, 1")
    a("buffer_atomic_add v8, v9, s[72:75], 0 offen sc1")
    a("s_mov_b64 exec, s[58:59]")
    a.label("L_pq_noat")
    a("s_add_u32 s13, s13, 1")
    qchk(12)
    a("s_cbranch_vccz L_pollq_done")
    a("buffer_load_dword v10, v9, s[72:75], 0 offen sc1")
    a("s_waitcnt vmcnt(0)")
    a("v_readfirstlane_b32 s6, v10")
    a(f"s_cmp_ge_u32 s13, {SPIN_MAX}")
    a("s_cbranch_scc1 L_pollq_done")
    a("s_cmp_ge_u32 s6, 64")
    a("s_cbranch_scc0 L_pollq")
    qld(12)
    a("s_waitcnt vmcnt(0)")
    a.label("L_pollq_done")
    a("v_mov_b32 v32, v12")
    a("v_mov_b32 v33, v14")
    a("v_mov_b32 v34, v16")
    a("v_mov_b32 v35, v18")
    a.label("L_pollq_wr")
    stamp(a, 4, 236, 237)
    a("v_lshlrev_b32 v5, 4, v2")
    a(f"v_add_u32 v5, {L_QL}, v5")
    a(f"v_mov_b32 v6, {L_F+8}")
    a("ds_write_b128 v5, v[32:35]")
    a("s_waitcnt lgkmcnt(0)")
    a("s_mov_b64 exec, 1")
    a("ds_write_b32 v6, v8")
    a("s_cmp_ge_u32 s13, 2048")
    a("s_cbranch_scc1 L_pq_noat2")
    a("buffer_atomic_add v8, v9, s[72:75], 0 offen sc1")
    a.label("L_pq_noat2")
    a("s_mov_b64 exec, s[58:59]")
    a("s_waitcnt vmcnt(1)")
    stamp(a, 5, 236, 237)
    a("s_cmp_ge_u32 s38, 28")
    a("s_cbranch_scc1 L_nowo")
    a("v_lshrrev_b32 v5, 2, v2")
    a("v_mul_u32_u24 v5, 896, v5")
    a("v_and_b32 v6, 3, v2")
    a("v_lshl_add_u32 v5, v6, 4, v5")
    a("s_mul_i32 s6, s101, 229376")
    a("s_lshl_b32 s7, s100, 6")
    a("s_add_u32 s6, s6, s7")
    a(f"s_mov_b32 s7, {L_WO}")
    for p in range(16):
        a("s_mov_b32 m0, s7")
        a("s_add_u32 s7, s7, 1024")
        a("buffer_load_dwordx4 v5, s[68:71], s6 offen lds")
        a("s_add_u32 s6, s6, 14336")
    a.label("L_nowo")
    if VX: a("s_branch L_skipdyn")
    a("s_lshl_b32 s6, s4, 3")
    a("s_add_u32 s6, s6, s96")
    a("s_lshl_b32 s6, s6, 8")
    a(f"s_add_u32 s25, s6, {WS_CNT}")
    a("v_mov_b32 v14, 0")
    a("s_mov_b32 s13, 0")
    a.label("L_pcnt")
    a("buffer_load_dword v10, v14, s[52:55], s25 offen sc1")
    a("s_add_u32 s13, s13, 1")
    a("s_waitcnt vmcnt(0)")
    a("v_readfirstlane_b32 s6, v10")
    a("s_lshr_b32 s6, s6, 8")
    a("s_sub_u32 s6, s6, s17")
    a("s_and_b32 s6, s6, 0xffffff")
    a("s_cmp_le_u32 s6, 4")
    a("s_cbranch_scc1 L_pcnt_done")
    a("s_sleep 16")
    a("s_cmp_lt_u32 s13, 1024")
    a("s_cbranch_scc1 L_pcnt")
    a("buffer_load_dword v10, v9, s[72:75], 0 offen sc1")
    a("s_waitcnt vmcnt(0)")
    a("v_readfirstlane_b32 s6, v10")
    a(f"s_cmp_ge_u32 s13, {SPIN_MAX}")
    a("s_cbranch_scc1 L_pcnt_done")
    a("s_cmp_ge_u32 s6, 64")
    a("s_cbranch_scc0 L_pcnt")
    a.label("L_pcnt_done")
    a("s_mov_b32 s22, 1")
    a(f"s_mov_b32 s23, {NSTAT}")
    a(f"s_mov_b32 s24, {NSTAT}")
    a(f"v_mov_b32 v11, {L_F+12}")
    a("v_mov_b32 v10, s22")
    a("s_waitcnt vmcnt(0)")
    a.label("L_dyn")
    a("ds_read_b32 v6, v11")
    a("s_waitcnt lgkmcnt(0)")
    a("v_readfirstlane_b32 s6, v6")
    a(f"s_add_u32 s6, s6, {LOOK}")
    a("s_cmp_ge_u32 s6, s23")
    a("s_cbranch_scc1 L_dyn_go")
    a("s_sleep 4")
    a("s_branch L_dyn")
    a.label("L_dyn_go")
    if STAMP:
        a(f"s_cmp_lg_u32 s23, {NSTAT}")
        a("s_cbranch_scc1 L_sq1")
        a("s_memrealtime s[26:27]")
        a("s_waitcnt lgkmcnt(0)")
        a.label("L_sq1")
    a(f"s_sub_u32 s6, s23, {NSTAT}")
    a("s_lshl_b64 exec, 1, s6")
    a("buffer_atomic_add v10, v14, s[52:55], s25 offen sc0 sc1")
    a("s_mov_b64 exec, s[58:59]")
    a("s_add_u32 s23, s23, 1")
    a("s_sub_u32 s6, s23, s24")
    a(f"s_cmp_le_u32 s6, {DEPTH}")
    a("s_cbranch_scc1 L_dyn")
    a(f"s_waitcnt vmcnt({DEPTH})")
    if STAMP:
        a(f"s_cmp_lg_u32 s24, {NSTAT}")
        a("s_cbranch_scc1 L_sq2")
        a("s_memrealtime s[28:29]")
        a("s_waitcnt lgkmcnt(0)")
        a.label("L_sq2")
    a(f"s_sub_u32 s6, s24, {NSTAT}")
    a("v_readlane_b32 s6, v10, s6")
    a("s_and_b32 s6, s6, 0xff")
    a(f"s_add_u32 s7, s6, {4*NSTAT}")
    a(f"s_cmp_lt_u32 s6, {128-4*NSTAT}")
    a("s_cselect_b32 s7, s7, 0x1000")
    a("s_lshl_b32 s6, s24, 2")
    a(f"s_add_u32 s6, s6, {L_NEXT}")
    a("v_mov_b32 v12, s6")
    a("v_mov_b32 v13, s7")
    a("ds_write_b32 v12, v13")
    a("s_add_u32 s24, s24, 1")
    a("s_cmp_lt_u32 s7, 128")
    a("s_cbranch_scc1 L_dyn")
    a("v_add_u32 v12, 4, v12")
    a("ds_write_b32 v12, v13")
    a("s_waitcnt vmcnt(0) lgkmcnt(0)")
    if STAMP:
        stamp(a, 16, 236, 237)
        for (sr, idx) in ((26, 14), (28, 15)):
            a(f"v_mov_b32 v236, s{sr}")
            a("s_lshl_b32 s42, s2, 7")
            a(f"s_add_u32 s42, s42, {0x200000 + idx*4}")
            a("v_mov_b32 v237, 0")
            a("s_mov_b64 exec, 1")
            a("buffer_store_dword v236, v237, s[52:55], s42 offen")
            a("s_mov_b64 exec, s[58:59]")
    a.label("L_skipdyn")
    a("s_waitcnt vmcnt(0)")
    a("s_barrier")
    stamp(a, 7, 236, 237)

    a.label("L_tail")
    a("s_cmp_ge_u32 s38, 14")
    a("s_cselect_b32 s99, 1, 0")
    a("s_mul_i32 s6, s99, 14")
    a("s_sub_u32 s100, s38, s6")
    a("s_lshl_b32 s101, s4, 1")
    a("s_add_u32 s101, s101, s99")
    a("s_cmp_eq_u32 s3, 7")
    a("s_cbranch_scc1 L_now")
    a("v_mul_u32_u24 v5, 56, v2")
    for (base, sr) in ((128, 80), (144, 84), (160, 88)):
        for i in range(3):
            a(f"buffer_load_dwordx4 v[{base+4*i}:{base+4*i+3}], v5, s[{sr}:{sr+3}], 0 offen offset:{16*i}")
        a(f"buffer_load_dwordx2 v[{base+12}:{base+13}], v5, s[{sr}:{sr+3}], 0 offen offset:48")
    a("v_mov_b32 v6, 0")
    a("buffer_load_ushort v174, v6, s[92:95], 0 offen")
    a.label("L_now")
    a("s_cmp_ge_u32 s38, 28")
    a("s_cbranch_scc1 L_stageD")
    a("s_cmp_ge_u32 s3, 4")
    a("s_cbranch_scc1 L_bar4")
    a("v_lshrrev_b32 v5, 5, v0")
    a("v_and_b32 v6, 31, v0")
    a("v_lshlrev_b32 v7, 13, v5")
    a("v_lshl_add_u32 v7, v6, 5, v7")
    a("v_lshlrev_b32 v8, 10, v5")
    a("s_lshl_b32 s10, s4, 16")
    a("s_lshl_b32 s11, s99, 10")
    a("s_add_u32 s10, s10, s11")
    a(f"s_add_u32 s10, s10, {WS_OP}")
    a("s_add_u32 s11, s10, 4096")
    a("s_lshl_b32 s12, s4, 13")
    a("s_lshl_b32 s6, s99, 7")
    a("s_add_u32 s12, s12, s6")
    a(f"s_add_u32 s12, s12, {WS_ML}")
    a("v_and_b32 v9, 31, v2")
    a("v_lshlrev_b32 v9, 8, v9")
    a("s_mov_b32 s13, 0")
    if BULK & 1: a("s_branch L_pollC")
    a.label("L_pollC0")
    a("buffer_load_dwordx2 v[16:17], v9, s[52:55], s12 offen sc1")
    a("s_add_u32 s13, s13, 1")
    a("s_waitcnt vmcnt(0)")
    anysent(a, range(16, 18), 56)
    a("v_cmp_eq_u32 vcc, -1, v56")
    a(f"s_cmp_ge_u32 s13, {SPIN_MAX}")
    a("s_cbranch_scc1 L_pollC")
    a("s_cbranch_vccz L_pollC")
    a("s_sleep 8")
    a("s_branch L_pollC0")
    a.label("L_pollC")
    if STAMP:
        a("s_cmp_lg_u32 s3, 0")
        a("s_cbranch_scc1 L_st19")
        stamp(a, 19)
        a.label("L_st19")
    for s in range(4):
        a(f"buffer_load_dwordx2 v[{48+2*s}:{49+2*s}], v8, s[52:55], s12 offen offset:{s*256} sc1")
    for s in range(4):
        a(f"buffer_load_dwordx4 v[{16+8*s}:{19+8*s}], v7, s[52:55], s{10+(s>>1)} offen offset:{(s&1)*2048} sc1")
        a(f"buffer_load_dwordx4 v[{20+8*s}:{23+8*s}], v7, s[52:55], s{10+(s>>1)} offen offset:{(s&1)*2048+16} sc1")
    a("s_add_u32 s13, s13, 1")
    a("s_waitcnt vmcnt(0)")
    anysent(a, range(16, 56), 56)
    a("v_cmp_eq_u32 vcc, -1, v56")
    a(f"s_cmp_ge_u32 s13, {SPIN_MAX}")
    a("s_cbranch_scc1 L_pollC_done")
    a("s_cbranch_vccz L_pollC_done")
    a("s_sleep 4")
    a("s_branch L_pollC")
    a.label("L_pollC_done")
    if STAMP:
        a("s_cmp_lg_u32 s3, 0")
        a("s_cbranch_scc1 L_st8")
        stamp(a, 8)
        a.label("L_st8")
    a("v_max_f32 v56, v48, v50")
    a("v_max3_f32 v56, v56, v52, v54")
    for s in range(4):
        a(f"v_sub_f32 v{48+2*s}, v{48+2*s}, v56")
        a(f"v_exp_f32 v{48+2*s}, v{48+2*s}")
    a("s_nop 0")
    a("v_mul_f32 v57, v48, v49")
    for s in range(1, 4):
        a(f"v_fmac_f32 v57, v{48+2*s}, v{49+2*s}")
    a("v_rcp_f32 v57, v57")
    a("s_nop 0")
    for s in range(4):
        a(f"v_mul_f32 v{48+2*s}, v{48+2*s}, v57")
    for i in range(8):
        a(f"v_mul_f32 v{60+i}, v48, v{16+i}")
        for s in range(1, 4):
            a(f"v_fmac_f32 v{60+i}, v{48+2*s}, v{16+8*s+i}")
    pack8(a, 60, 68)
    a("v_lshlrev_b32 v6, 4, v0")
    a(f"v_add_u32 v6, {L_O}, v6")
    a("ds_write_b128 v6, v[68:71]")
    a("s_waitcnt lgkmcnt(0)")
    a.label("L_bar4")
    a("s_barrier")
    a("s_cmp_lg_u32 s3, 0")
    a("s_cbranch_scc1 L_stageD")
    a("v_bfe_u32 v5, v2, 2, 2")
    a("v_lshl_add_u32 v5, v4, 3, v5")
    a("v_lshlrev_b32 v5, 6, v5")
    a("v_and_b32 v6, 3, v2")
    a("v_lshl_add_u32 v5, v6, 3, v5")
    a(f"v_add_u32 v5, {L_WO}, v5")
    a("v_and_b32 v6, 7, v2")
    a("v_lshlrev_b32 v6, 9, v6")
    a("v_lshl_add_u32 v6, v4, 4, v6")
    a(f"v_add_u32 v6, {L_O}, v6")
    for j in range(8):
        a(f"ds_read_b128 v[{48+4*j}:{51+4*j}], v6 offset:{j*64}")
        a(f"ds_read_b64_tr_b16 v[{16+4*j}:{17+4*j}], v5 offset:{j*2048}")
        a(f"ds_read_b64_tr_b16 v[{18+4*j}:{19+4*j}], v5 offset:{j*2048+256}")
        a(f"ds_read_b64_tr_b16 v[{88+4*j}:{89+4*j}], v5 offset:{j*2048+32}")
        a(f"ds_read_b64_tr_b16 v[{90+4*j}:{91+4*j}], v5 offset:{j*2048+256+32}")
    a("s_waitcnt lgkmcnt(0)")
    for j in range(8):
        c0 = "0" if j == 0 else "v[80:83]"
        c1 = "0" if j == 0 else "v[84:87]"
        a(f"v_mfma_f32_16x16x32_bf16 v[80:83], v[{16+4*j}:{19+4*j}], v[{48+4*j}:{51+4*j}], {c0}")
        a(f"v_mfma_f32_16x16x32_bf16 v[84:87], v[{88+4*j}:{91+4*j}], v[{48+4*j}:{51+4*j}], {c1}")
    a("v_cmp_gt_u32 vcc, 8, v3")
    a("v_lshlrev_b32 v5, 7, v3")
    a("v_lshl_add_u32 v5, v4, 4, v5")
    a(f"v_add_u32 v5, {L_QL}, v5")
    a("v_lshlrev_b32 v6, 4, v2")
    a(f"v_add_u32 v7, {L_QL}, v6")
    a("s_lshl_b32 s6, s4, 1")
    a("s_mul_i32 s6, s6, 14")
    a("s_add_u32 s6, s6, s38")
    a("s_lshl_b32 s6, s6, 10")
    a(f"s_add_u32 s6, s6, {WS_P2}")
    a("s_and_b64 exec, exec, vcc")
    a("ds_write_b128 v5, v[80:83]")
    a("ds_write_b128 v5, v[84:87] offset:64")
    a("s_mov_b64 exec, s[58:59]")
    a("s_waitcnt lgkmcnt(0)")
    a("ds_read_b128 v[80:83], v7")
    a("s_waitcnt lgkmcnt(0)")
    a("buffer_store_dwordx4 v[80:83], v6, s[52:55], s6 offen sc1")
    if STAMP:
        a("s_cmp_lg_u32 s3, 0")
        a("s_cbranch_scc1 L_st9")
        stamp(a, 9)
        a("s_waitcnt vmcnt(0)")
        stamp(a, 18)
        a.label("L_st9")

    a.label("L_stageD")
    a("s_lshr_b32 s96, s2, 5")
    a("s_and_b32 s97, s2, 31")
    a("s_cmp_lg_u32 s3, 7")
    a("s_cbranch_scc1 L_bar5")
    a("v_lshrrev_b32 v5, 2, v2")
    a("v_lshlrev_b32 v5, 10, v5")
    a("v_and_b32 v6, 3, v2")
    a("v_lshl_add_u32 v5, v6, 5, v5")
    a("v_mov_b32 v6, 0x7fff0000")
    a("v_cndmask_b32 v5, v6, v5, s[56:57]")
    a("v_lshlrev_b32 v7, 4, v2")
    a("v_cndmask_b32 v7, v6, v7, s[56:57]")
    a("s_mul_i32 s6, s96, 896")
    a("buffer_load_dwordx4 v[8:11], v7, s[60:63], s6 offen")
    a("s_mov_b32 s13, 0")
    a.label("L_pollD")
    a("s_lshl_b32 s6, s96, 7")
    a(f"s_add_u32 s6, s6, {WS_P2}")
    for h in range(16):
        a(f"buffer_load_dwordx4 v[{128+8*h}:{131+8*h}], v5, s[52:55], s6 offen sc1")
        a(f"buffer_load_dwordx4 v[{132+8*h}:{135+8*h}], v5, s[52:55], s6 offen offset:16 sc1")
        a("s_add_u32 s6, s6, 14336")
    a("s_add_u32 s13, s13, 1")
    a("s_waitcnt vmcnt(0)")
    anysent(a, range(128, 256), 12)
    a("v_cmp_eq_u32 vcc, -1, v12")
    a(f"s_cmp_ge_u32 s13, {SPIN_MAX}")
    a("s_cbranch_scc1 L_pollD_done")
    a("s_cbranch_vccz L_pollD_done")
    a("s_sleep 4")
    a("s_branch L_pollD")
    a.label("L_pollD_done")
    stamp(a, 10, 13, 14)
    for h in range(1, 16):
        for i in range(8):
            a(f"v_add_f32 v{128+i}, v{128+i}, v{128+8*h+i}")
    unpack8(a, 8, 16)
    for i in range(0, 8, 2):
        bf16r2(a, 128+i, 129+i, 12)
        a(f"v_add_f32 v{16+i}, v{16+i}, v{128+i}")
        a(f"v_add_f32 v{17+i}, v{17+i}, v{129+i}")
        bf16r2(a, 16+i, 17+i, 12)
    a("v_lshlrev_b32 v5, 5, v2")
    a(f"v_add_u32 v5, {L_H}, v5")
    a("s_mov_b64 exec, s[56:57]")
    a("ds_write_b128 v5, v[16:19]")
    a("ds_write_b128 v5, v[20:23] offset:16")
    a("s_mov_b64 exec, s[58:59]")
    layernorm8(a, 16, 32, 33, 34, 56)
    for i in range(8):
        a(f"v_cndmask_b32 v{16+i}, 0, v{16+i}, s[56:57]")
    layernorm8(a, 16, 32, 33, 34, 56)
    a("s_mov_b64 exec, s[56:57]")
    a(f"ds_write_b128 v5, v[16:19] offset:{L_T-L_H}")
    a(f"ds_write_b128 v5, v[20:23] offset:{L_T-L_H+16}")
    a("s_mov_b64 exec, s[58:59]")
    a("s_waitcnt lgkmcnt(0)")
    stamp(a, 11, 13, 14)
    a("s_barrier")
    a("s_branch L_done")
    a.label("L_bar5")
    a("s_waitcnt vmcnt(0)")
    for i in range(14):
        a(f"v_lshlrev_b32 v{16+2*i}, 16, v{128+i}")
        a(f"v_and_b32 v{17+2*i}, 0xffff0000, v{128+i}")
        a(f"v_lshlrev_b32 v{44+2*i}, 16, v{144+i}")
        a(f"v_and_b32 v{45+2*i}, 0xffff0000, v{144+i}")
    a("v_lshlrev_b32 v174, 16, v174")
    C1 = -2.0 * LOG2E * math.sqrt(2.0/math.pi)
    C2 = C1 * 0.044715
    a(f"v_mov_b32 v72, {hex(f2u(C1))}")
    a(f"v_mov_b32 v73, {hex(f2u(C1))}")
    a(f"v_mov_b32 v74, {hex(f2u(C2))}")
    a(f"v_mov_b32 v75, {hex(f2u(C2))}")
    a("v_mov_b32 v76, 1.0")
    a("v_mov_b32 v77, 1.0")
    a("v_mov_b32 v78, 0")
    a("v_mov_b32 v79, 0")
    a("s_mul_i32 s6, s97, 56")
    a("s_lshl_b32 s7, s3, 3")
    a("s_add_u32 s6, s6, s7")
    a(f"s_add_u32 s6, s6, {L_H}")
    a("v_mov_b32 v5, s6")
    a("s_barrier")
    a(f"ds_read_b64 v[80:81], v5 offset:{L_T-L_H}")
    a("ds_read_b64 v[82:83], v5")
    a("s_waitcnt lgkmcnt(0)")
    for i in range(14):
        U = [84, 92]; Tt = [86, 94]; C = [88, 96]
        for d in range(2):
            osel = "op_sel_hi:[0,1]" if d == 0 else "op_sel:[1,0] op_sel_hi:[1,1]"
            a(f"v_pk_mul_f32 v[{U[d]}:{U[d]+1}], v[80:81], v[{16+2*i}:{17+2*i}] {osel}")
        for d in range(2):
            bf16r2(a, U[d], U[d]+1, C[d])
        for d in range(2):
            a(f"v_pk_add_f32 v[{U[d]}:{U[d]+1}], v[{U[d]}:{U[d]+1}], v[{44+2*i}:{45+2*i}]")
        for d in range(2):
            bf16r2(a, U[d], U[d]+1, C[d])
        for d in range(2):
            a(f"v_pk_mul_f32 v[{Tt[d]}:{Tt[d]+1}], v[{U[d]}:{U[d]+1}], v[{U[d]}:{U[d]+1}]")
        for d in range(2):
            a(f"v_pk_fma_f32 v[{Tt[d]}:{Tt[d]+1}], v[{Tt[d]}:{Tt[d]+1}], v[74:75], v[72:73]")
        for d in range(2):
            a(f"v_pk_mul_f32 v[{Tt[d]}:{Tt[d]+1}], v[{Tt[d]}:{Tt[d]+1}], v[{U[d]}:{U[d]+1}]")
        for d in range(2):
            a(f"v_exp_f32 v{Tt[d]}, v{Tt[d]}")
            a(f"v_exp_f32 v{Tt[d]+1}, v{Tt[d]+1}")
        for d in range(2):
            a(f"v_pk_add_f32 v[{Tt[d]}:{Tt[d]+1}], v[{Tt[d]}:{Tt[d]+1}], v[76:77]")
        for d in range(2):
            a(f"v_rcp_f32 v{Tt[d]}, v{Tt[d]}")
            a(f"v_rcp_f32 v{Tt[d]+1}, v{Tt[d]+1}")
        for d in range(2):
            a(f"v_pk_mul_f32 v[{Tt[d]}:{Tt[d]+1}], v[{Tt[d]}:{Tt[d]+1}], v[{U[d]}:{U[d]+1}]")
        for d in range(2):
            a(f"v_cvt_pk_bf16_f32 v{C[d]}, v{Tt[d]}, v{Tt[d]+1}")
        for d in range(2):
            a(f"v_dot2_f32_bf16 v{78+d}, v{C[d]}, v{160+i}, v{78+d}")
    a("s_nop 3")
    wave_reduce2(a, "v_add_f32", 78, 84, 79, 85)
    bf16r2(a, 78, 79, 84)
    a("v_add_f32 v78, v78, v174")
    a("v_add_f32 v79, v79, v174")
    bf16r2(a, 78, 79, 84)
    a("v_add_f32 v78, v78, v82")
    a("v_add_f32 v79, v79, v83")
    a("v_cvt_pk_bf16_f32 v78, v78, v79")
    a("s_mul_i32 s6, s96, 896")
    a("s_mul_i32 s7, s97, 28")
    a("s_add_u32 s6, s6, s7")
    a("s_lshl_b32 s7, s3, 2")
    a("s_add_u32 s6, s6, s7")
    a("v_mov_b32 v5, 0")
    a("s_mov_b64 exec, 1")
    a("buffer_store_dword v78, v5, s[76:79], s6 offen")
    if STAMP:
        a("s_cmp_lg_u32 s3, 0")
        a("s_cbranch_scc1 L_done")
        stamp(a, 13)
    a.label("L_done")
    a("s_endpgm")
    a.raw(".section .rodata,\"a\"")
    a.raw(".p2align 6")
    a.raw(f".amdhsa_kernel {n}")
    a.raw("  .amdhsa_next_free_vgpr 256")
    a.raw("  .amdhsa_next_free_sgpr 102")
    a.raw("  .amdhsa_accum_offset 256")
    a.raw("  .amdhsa_group_segment_fixed_size 0")
    a.raw("  .amdhsa_kernarg_size 104")
    a.raw("  .amdhsa_user_sgpr_count 2")
    a.raw("  .amdhsa_user_sgpr_kernarg_segment_ptr 1")
    a.raw("  .amdhsa_system_sgpr_workgroup_id_x 1")
    a.raw(".end_amdhsa_kernel")

def main():
    a = Asm()
    hdr = open("cdna_kernels/%s.s.ref" % NAME).read().split("\n")
    for l in hdr:
        if l.startswith("; @launch"):
            break
        a.raw(l)
    a.raw(f"; @launch grid=(256,1,1) block=(512,1,1) lds={LDS_BYTES}")
    a.raw('.amdgcn_target "amdgcn-amd-amdhsa--gfx950"')
    gen(a)
    out = sys.argv[1] if len(sys.argv) > 1 else OUT
    open(out, "w").write(a.text())

if __name__ == "__main__":
    main()
```

```python
import sys, math, struct, os, re

NAME = "sequential_preLN__gqa_block_cached__mixer_token_mlp__decode"
KNAME = NAME + "_kernel"
OUT = "cdna_kernels/%s.s" % NAME

def f2u(x):
    return struct.unpack("<I", struct.pack("<f", x))[0]

class Asm:
    def __init__(self):
        self.lines = []
    def __call__(self, s):
        for l in s.strip("\n").split("\n"):
            l = l.strip()
            m = re.search(r"offset:(\d+)", l)
            if m and l.startswith("buffer_"):
                assert int(m.group(1)) < 4096, l
            if m and l.startswith("ds_"):
                assert int(m.group(1)) < 65536, l
            self.lines.append("    " + l)
    def label(self, l):
        self.lines.append(l + ":")
    def raw(self, s):
        self.lines.append(s)
    def text(self):
        return "\n".join(self.lines) + "\n"

WS_Q = 0
WS_OP = 0x20000
WS_ML = 0xA0000
WS_P2 = 0xB0000
WS_CNT = 0xE8000
WS_BYTES = 0x400000

LOG2E = 1.4426950408889634
SCALE_C = 0.0625 * LOG2E
NT = os.environ.get("NT", " nt")
NTV = os.environ.get("NTV", NT)

MB = 131072
L_WQ = MB
L_XN = MB + 14336
L_QL = MB + 21504
L_WO = MB
L_O = MB + 22528
L_H = MB + 26624
L_T = MB + 28672
L_F = MB + 31744
L_NEXT = MB + 31808
NSTAT = int(os.environ.get("NSTAT", "24"))
LOOK = int(os.environ.get("LOOK", "4"))
DEPTH = int(os.environ.get("DEPTH", "2"))
VX = int(os.environ.get("VX", "0"))
BULK = int(os.environ.get("BULK", "0"))
IPF = int(os.environ.get("IPF", "0"))
G1 = int(os.environ.get("G1", "1"))
GR = int(os.environ.get("GR", "1"))
LDS_BYTES = 163840

SPIN_MAX = 1 << 18

def srd(a, d, base, nbytes):
    a(f"s_mov_b32 s{d}, s{base}")
    a(f"s_and_b32 s{d+1}, s{base+1}, 0xffff")
    a(f"s_mov_b32 s{d+2}, {nbytes}")
    a(f"s_mov_b32 s{d+3}, 0x00020000")

def wave_reduce(a, op, v, t):
    for ctl in ["quad_perm:[1,0,3,2]", "quad_perm:[2,3,0,1]", "row_half_mirror", "row_mirror"]:
        a("s_nop 1")
        a(f"{op}_dpp v{v}, v{v}, v{v} {ctl} row_mask:0xf bank_mask:0xf")
    group_reduce(a, op, v, t)

def group_reduce(a, op, v, t):
    a(f"v_mov_b32 v{t}, v{v}")
    a("s_nop 1")
    a(f"v_permlane16_swap_b32 v{v}, v{t}")
    a("s_nop 1")
    a(f"{op} v{v}, v{v}, v{t}")
    a(f"v_mov_b32 v{t}, v{v}")
    a("s_nop 1")
    a(f"v_permlane32_swap_b32 v{v}, v{t}")
    a("s_nop 1")
    a(f"{op} v{v}, v{v}, v{t}")

def wave_reduce2(a, op, v, t, w, u):
    for ctl in ["quad_perm:[1,0,3,2]", "quad_perm:[2,3,0,1]", "row_half_mirror", "row_mirror"]:
        a("s_nop 0")
        a(f"{op}_dpp v{v}, v{v}, v{v} {ctl} row_mask:0xf bank_mask:0xf")
        a(f"{op}_dpp v{w}, v{w}, v{w} {ctl} row_mask:0xf bank_mask:0xf")
    for sw in ["v_permlane16_swap_b32", "v_permlane32_swap_b32"]:
        a(f"v_mov_b32 v{t}, v{v}")
        a(f"v_mov_b32 v{u}, v{w}")
        a("s_nop 1")
        a(f"{sw} v{v}, v{t}")
        a(f"{sw} v{w}, v{u}")
        a("s_nop 1")
        a(f"{op} v{v}, v{v}, v{t}")
        a(f"{op} v{w}, v{w}, v{u}")

def bf16r(a, v):
    a(f"v_cvt_pk_bf16_f32 v{v}, v{v}, v{v}")
    a(f"v_and_b32 v{v}, 0xffff0000, v{v}")

def bf16r2(a, v, w, t):
    a(f"v_cvt_pk_bf16_f32 v{t}, v{v}, v{w}")
    a(f"v_lshlrev_b32 v{v}, 16, v{t}")
    a(f"v_and_b32 v{w}, 0xffff0000, v{t}")

def unpack8(a, src, dst):
    for i in range(4):
        a(f"v_lshlrev_b32 v{dst+2*i}, 16, v{src+i}")
        a(f"v_and_b32 v{dst+2*i+1}, 0xffff0000, v{src+i}")

def layernorm8(a, x, t0, t1, t2, smask, t3=35):
    a(f"v_add_f32 v{t0}, v{x}, v{x+1}")
    a(f"v_add_f32 v{t1}, v{x+2}, v{x+3}")
    a(f"v_add_f32 v{t2}, v{x+4}, v{x+5}")
    a(f"v_add_f32 v{t3}, v{x+6}, v{x+7}")
    a(f"v_add_f32 v{t0}, v{t0}, v{t1}")
    a(f"v_add_f32 v{t2}, v{t2}, v{t3}")
    a(f"v_add_f32 v{t0}, v{t0}, v{t2}")
    wave_reduce(a, "v_add_f32", t0, t1)
    a(f"v_mul_f32 v{t0}, {hex(f2u(1.0/448))}, v{t0}")
    a(f"v_sub_f32 v{t2}, v{x}, v{t0}")
    a(f"v_sub_f32 v{t3}, v{x+1}, v{t0}")
    a(f"v_mul_f32 v{t1}, v{t2}, v{t2}")
    a(f"v_mul_f32 v{t3}, v{t3}, v{t3}")
    for i in range(2, 8, 2):
        a(f"v_sub_f32 v{t2}, v{x+i}, v{t0}")
        a(f"v_fmac_f32 v{t1}, v{t2}, v{t2}")
        a(f"v_sub_f32 v{t2}, v{x+i+1}, v{t0}")
        a(f"v_fmac_f32 v{t3}, v{t2}, v{t2}")
    a(f"v_add_f32 v{t1}, v{t1}, v{t3}")
    a(f"v_cndmask_b32 v{t1}, 0, v{t1}, s[{smask}:{smask+1}]")
    wave_reduce(a, "v_add_f32", t1, t2)
    a(f"v_mul_f32 v{t1}, {hex(f2u(1.0/448))}, v{t1}")
    bf16r(a, t1)
    a(f"v_add_f32 v{t1}, {hex(f2u(1e-5))}, v{t1}")
    bf16r(a, t1)
    a(f"v_sqrt_f32 v{t1}, v{t1}")
    bf16r(a, t0)
    bf16r(a, t1)
    a(f"v_rcp_f32 v{t1}, v{t1}")
    for i in range(0, 8, 2):
        a(f"v_sub_f32 v{x+i}, v{x+i}, v{t0}")
        a(f"v_sub_f32 v{x+i+1}, v{x+i+1}, v{t0}")
        bf16r2(a, x+i, x+i+1, t2)
    for i in range(0, 8, 2):
        a(f"v_mul_f32 v{x+i}, v{x+i}, v{t1}")
        a(f"v_mul_f32 v{x+i+1}, v{x+i+1}, v{t1}")
        bf16r2(a, x+i, x+i+1, t2)

def layernorm8x2(a, x, y, tx, ty, smask):
    t0, t1, t2 = tx; u0, u1, u2 = ty
    a(f"v_add_f32 v{t0}, v{x}, v{x+1}")
    a(f"v_add_f32 v{u0}, v{y}, v{y+1}")
    for i in range(2, 8):
        a(f"v_add_f32 v{t0}, v{t0}, v{x+i}")
        a(f"v_add_f32 v{u0}, v{u0}, v{y+i}")
    wave_reduce2(a, "v_add_f32", t0, t1, u0, u1)
    a(f"v_mul_f32 v{t0}, {hex(f2u(1.0/448))}, v{t0}")
    a(f"v_mul_f32 v{u0}, {hex(f2u(1.0/448))}, v{u0}")
    for i in range(8):
        a(f"v_sub_f32 v{t2}, v{x+i}, v{t0}")
        a(f"v_sub_f32 v{u2}, v{y+i}, v{u0}")
        if i == 0:
            a(f"v_mul_f32 v{t1}, v{t2}, v{t2}")
            a(f"v_mul_f32 v{u1}, v{u2}, v{u2}")
        else:
            a(f"v_fmac_f32 v{t1}, v{t2}, v{t2}")
            a(f"v_fmac_f32 v{u1}, v{u2}, v{u2}")
    a(f"v_cndmask_b32 v{t1}, 0, v{t1}, s[{smask}:{smask+1}]")
    a(f"v_cndmask_b32 v{u1}, 0, v{u1}, s[{smask}:{smask+1}]")
    wave_reduce2(a, "v_add_f32", t1, t2, u1, u2)
    a(f"v_mul_f32 v{t1}, {hex(f2u(1.0/448))}, v{t1}")
    a(f"v_mul_f32 v{u1}, {hex(f2u(1.0/448))}, v{u1}")
    bf16r2(a, t1, u1, t2)
    a(f"v_add_f32 v{t1}, {hex(f2u(1e-5))}, v{t1}")
    a(f"v_add_f32 v{u1}, {hex(f2u(1e-5))}, v{u1}")
    bf16r2(a, t1, u1, t2)
    a(f"v_sqrt_f32 v{t1}, v{t1}")
    a(f"v_sqrt_f32 v{u1}, v{u1}")
    a("s_nop 0")
    bf16r2(a, t1, u1, t2)
    a(f"v_rcp_f32 v{t1}, v{t1}")
    a(f"v_rcp_f32 v{u1}, v{u1}")
    bf16r2(a, t0, u0, t2)
    for (z, m, r_) in ((x, t0, t1), (y, u0, u1)):
        for i in range(0, 8, 2):
            a(f"v_sub_f32 v{z+i}, v{z+i}, v{m}")
            a(f"v_sub_f32 v{z+i+1}, v{z+i+1}, v{m}")
            bf16r2(a, z+i, z+i+1, t2)
            a(f"v_mul_f32 v{z+i}, v{z+i}, v{r_}")
            a(f"v_mul_f32 v{z+i+1}, v{z+i+1}, v{r_}")

def pack8(a, x, dst):
    for i in range(4):
        a(f"v_cvt_pk_bf16_f32 v{dst+i}, v{x+2*i}, v{x+2*i+1}")

def anysent(a, regs, t):
    regs = list(regs)
    a(f"v_max_u32 v{t}, v{regs[0]}, v{regs[1]}")
    i = 2
    while i < len(regs):
        if i + 1 < len(regs):
            a(f"v_max3_u32 v{t}, v{t}, v{regs[i]}, v{regs[i+1]}")
            i += 2
        else:
            a(f"v_max_u32 v{t}, v{t}, v{regs[i]}")
            i += 1

QF = 16; OA = 64; KF = 128; VF = 160; KOFF = 192; VOFF = 200; KRA = 208; VRA = 212
SA = 220; PB = 224; M = 226; L = 227; AL = 228; T0 = 229; T1 = 230; T2 = 231

STAMP = int(os.environ.get("STAMP", "0"))
PRE = int(os.environ.get("PRE", "2"))
LATE0 = int(os.environ.get("LATE0", "0"))
MAP = int(os.environ.get("MAP", "1"))
def stamp(a, idx, va=233, vb=234):
    if not STAMP: return
    a("s_memrealtime s[42:43]")
    a("s_waitcnt lgkmcnt(0)")
    a(f"v_mov_b32 v{va}, s42")
    a("s_lshl_b32 s42, s2, 7")
    a(f"s_add_u32 s42, s42, {0x200000 + idx*4}")
    a(f"v_mov_b32 v{vb}, 0")
    a("s_mov_b64 exec, 1")
    a(f"buffer_store_dword v{va}, v{vb}, s[52:55], s42 offen")
    a("s_mov_b64 exec, s[58:59]")

def gen(a):
    n = KNAME
    a.raw(".text")
    a.raw(f".globl {n}")
    a.raw(".p2align 8")
    a.raw(f".type {n},@function")
    a.label(n)
    a("s_cmp_ge_u32 s2, 256")
    a("s_cbranch_scc1 L_done")
    a("s_load_dwordx16 s[16:31], s[0:1], 0")
    a("s_load_dwordx8 s[32:39], s[0:1], 64")
    a("s_load_dwordx2 s[40:41], s[0:1], 96")
    a("v_lshrrev_b32 v1, 6, v0")
    a("v_and_b32 v2, 63, v0")
    a("v_and_b32 v3, 15, v2")
    a("v_readfirstlane_b32 s3, v1")
    a("v_lshrrev_b32 v4, 4, v2")
    if MAP == 0:
        a("s_and_b32 s4, s2, 7")
        a("s_lshr_b32 s5, s2, 3")
    else:
        a("s_lshr_b32 s4, s2, 5")
        a("s_and_b32 s5, s2, 31")
    a("s_lshr_b32 s96, s5, 2")
    a("s_and_b32 s97, s5, 3")
    a("s_lshl_b32 s98, s4, 5")
    a("s_add_u32 s98, s98, s5")
    a("v_cmp_gt_u32 s[56:57], 56, v2")
    a("s_mov_b64 s[58:59], exec")
    a("s_waitcnt lgkmcnt(0)")
    srd(a, 44, 18, 0x10000000)
    srd(a, 48, 20, 0x10000000)
    srd(a, 52, 40, WS_BYTES)
    srd(a, 60, 16, 7168)
    srd(a, 64, 22, 448*4096*2)
    srd(a, 68, 24, 4096*448*2)
    srd(a, 72, 38, 256)
    srd(a, 76, 36, 7168)
    srd(a, 80, 28, 3584)
    srd(a, 84, 30, 3584)
    srd(a, 88, 32, 3584)
    srd(a, 92, 34, 4)
    a("s_and_b32 s38, s5, 7")
    a("s_lshl_b32 s38, s38, 2")
    a("s_lshr_b32 s39, s5, 3")
    a("s_add_u32 s38, s38, s39")
    a("s_lshl_b32 s39, s4, 5")
    a("s_add_u32 s39, s39, s38")
    a("s_cmp_ge_u32 s3, 4")
    a("s_cbranch_scc1 L_helpers")

    if STAMP:
        a("s_cmp_lg_u32 s3, 0")
        a("s_cbranch_scc1 L_st0")
        stamp(a, 0)
        a.label("L_st0")
    a("v_lshrrev_b32 v7, 5, v2")
    a("v_and_b32 v8, 31, v2")
    for p in range(8):
        a(f"v_add_u32 v5, {2*p}, v7")
        a("v_xor_b32 v6, v8, v5")
        a("v_lshlrev_b32 v6, 4, v6")
        a(f"v_lshl_add_u32 v{KOFF+p}, v7, 9, v6")
        a(f"v_add_u32 v{KOFF+p}, {(p//GR)*GR*4096+(p%GR)*1024-(p&3)*1024}, v{KOFF+p}")
        a("v_and_b32 v5, 7, v5")
        a("v_lshlrev_b32 v5, 1, v5")
        a("v_xor_b32 v6, v8, v5")
        a("v_lshlrev_b32 v6, 4, v6")
        a(f"v_lshl_add_u32 v{VOFF+p}, v7, 9, v6")
        a(f"v_add_u32 v{VOFF+p}, {(p//GR)*GR*4096+(p%GR)*1024-(p&3)*1024}, v{VOFF+p}")
    a("s_lshl_b32 s8, s3, 15")
    a("s_lshl_b32 s20, s96, 3")
    a("s_add_u32 s20, s20, s4")
    a("s_lshl_b32 s20, s20, 22")
    a(f"s_mul_i32 s6, s3, {1024*GR}")
    a("s_add_u32 s20, s20, s6")
    a(f"s_mul_i32 s6, s97, {NSTAT*32768}")
    a("s_add_u32 s9, s20, s6")

    def issue(kind, slot):
        srd_ = "s[44:47]" if kind == "K" else "s[48:51]"
        so = "s9"
        off = KOFF if kind == "K" else VOFF
        ntk = NT if kind == "K" else NTV
        a(f"s_add_u32 s11, s8, {slot*8192}")
        a("s_mov_b32 m0, s11")
        a(f"s_add_u32 s12, s8, {slot*8192+4096}")
        for p in range(4):
            a(f"buffer_load_dwordx4 v{off+p}, {srd_}, {so} offen offset:{p*1024}{ntk} lds")
        a("s_mov_b32 m0, s12")
        a("s_nop 0")
        for p in range(4):
            a(f"buffer_load_dwordx4 v{off+4+p}, {srd_}, {so} offen offset:{p*1024}{ntk} lds")

    def ldsspin(word, target, lab):
        a(f"v_mov_b32 v5, {L_F + word*4}")
        a.label(lab)
        a("ds_read_b32 v6, v5")
        a("s_waitcnt lgkmcnt(0)")
        a("v_readfirstlane_b32 s6, v6")
        a(f"s_cmp_ge_u32 s6, {target}")
        a(f"s_cbranch_scc1 {lab}_d")
        a("s_sleep 1")
        a(f"s_branch {lab}")
        a.label(lab + "_d")

    units = [("K", 0), ("V", 1), ("K", 2), ("V", 3)]
    a("s_barrier")
    assert PRE == 2
    for u in units[:2]: issue(*u)
    a("s_add_u32 s9, s9, 32768")
    for jj in range(4):
        a(f"v_add_u32 v5, {4*jj}, v4")
        a("v_xor_b32 v5, v5, v3")
        a("v_lshlrev_b32 v5, 4, v5")
        a(f"v_lshl_add_u32 v5, v3, 9, v5")
        a(f"v_add_u32 v{KRA+jj}, s8, v5")
    a("v_bfe_u32 v5, v2, 2, 2")
    a("v_lshl_add_u32 v5, v4, 2, v5")
    a("v_and_b32 v6, 7, v5")
    a("v_and_b32 v7, 3, v2")
    a("v_lshlrev_b32 v7, 3, v7")
    a("v_lshl_add_u32 v7, v5, 9, v7")
    a("v_add_u32 v7, s8, v7")
    for nn in range(8):
        a(f"v_xor_b32 v5, {nn}, v6")
        a(f"v_lshl_add_u32 v{VRA+nn}, v5, 5, v7")
    for i in range(64):
        a(f"v_mov_b32 v{OA+i}, 0")
    a(f"v_mov_b32 v{M}, 0xf149f2ca")
    a(f"v_mov_b32 v{L}, 0")
    a(f"s_mov_b32 s14, {hex(f2u(SCALE_C))}")
    if PRE < 4:
        ldsspin(G1, 1, "L_spin1")
        for u in units[PRE:]: issue(*u)
    ldsspin(2, 1, "L_spin2")
    a("v_and_b32 v5, 1, v2")
    a("v_lshlrev_b32 v5, 9, v5")
    a("v_lshl_add_u32 v5, v4, 4, v5")
    a(f"v_add_u32 v5, {L_QL}, v5")
    for j in range(8):
        a(f"ds_read_b128 v[{QF+4*j}:{QF+4*j+3}], v5 offset:{j*64}")
    a("s_waitcnt lgkmcnt(0)")
    a(f"v_mov_b32 v235, {L_NEXT+8}")
    a(f"v_mov_b32 v238, {L_F+12}")

    def step(kslot, vslot, do_issue, wk, wv, tag):
        a("s_cmp_eq_u32 s15, 1000")
        a(f"s_cbranch_scc1 L_wk_{tag}")
        a("s_waitcnt vmcnt(0)")
        a.label(f"L_wk_{tag}")
        a(f"s_waitcnt vmcnt({wk})")
        a("v_mov_b32 v237, s13")
        a("ds_read_b32 v236, v235")
        if VX != 2: a("ds_write_b32 v238, v237")
        for j in range(8):
            a(f"ds_read_b128 v[{KF+4*j}:{KF+4*j+3}], v{KRA+(j&3)} offset:{kslot*8192 + (j>>2)*256}")
        for j in range(8):
            a(f"s_waitcnt lgkmcnt({7-j})")
            c = "0" if j == 0 else f"v[{SA}:{SA+3}]"
            a(f"v_mfma_f32_16x16x32_bf16 v[{SA}:{SA+3}], v[{KF+4*j}:{KF+4*j+3}], v[{QF+4*j}:{QF+4*j+3}], {c}")
        a("v_readfirstlane_b32 s6, v236")
        a("s_cmp_lg_u32 s6, -1")
        a(f"s_cbranch_scc1 L_nx_{tag}")
        a.label(f"L_nxs_{tag}")
        a("s_sleep 1")
        a("ds_read_b32 v236, v235")
        a("s_waitcnt lgkmcnt(0)")
        a("v_readfirstlane_b32 s6, v236")
        a("s_cmp_eq_u32 s6, -1")
        a(f"s_cbranch_scc1 L_nxs_{tag}")
        a.label(f"L_nx_{tag}")
        a("v_add_u32 v235, 4, v235")
        a("s_lshl_b32 s7, s6, 15")
        a("s_add_u32 s9, s20, s7")
        a("s_add_u32 s7, s13, 2")
        a("s_min_u32 s7, s7, s15")
        a("s_cmp_ge_u32 s6, 128")
        a("s_cselect_b32 s15, s7, s15")
        a(f"s_cbranch_scc1 L_noik_{tag}")
        issue("K", kslot)
        a.label(f"L_noik_{tag}")
        a("s_nop 3")
        a(f"v_cvt_pk_bf16_f32 v{T0}, v{SA}, v{SA+1}")
        a(f"v_cvt_pk_bf16_f32 v{T1}, v{SA+2}, v{SA+3}")
        a(f"v_lshlrev_b32 v{SA}, 16, v{T0}")
        a(f"v_and_b32 v{SA+1}, 0xffff0000, v{T0}")
        a(f"v_lshlrev_b32 v{SA+2}, 16, v{T1}")
        a(f"v_and_b32 v{SA+3}, 0xffff0000, v{T1}")
        a(f"v_max3_f32 v{T0}, v{SA}, v{SA+1}, v{SA+2}")
        a(f"v_max_f32 v{T0}, v{T0}, v{SA+3}")
        group_reduce(a, "v_max_f32", T0, T1)
        a(f"v_mul_f32 v{T0}, s14, v{T0}")
        a(f"v_max_f32 v{T0}, v{T0}, v{M}")
        a(f"v_sub_f32 v{AL}, v{M}, v{T0}")
        a(f"v_exp_f32 v{AL}, v{AL}")
        a(f"v_mov_b32 v{M}, v{T0}")
        for r in range(4):
            a(f"v_fma_f32 v{SA+r}, v{SA+r}, s14, -v{T0}")
        for r in range(4):
            a(f"v_exp_f32 v{SA+r}, v{SA+r}")
        a(f"v_cmp_neq_f32 vcc, 1.0, v{AL}")
        a(f"v_cvt_pk_bf16_f32 v{PB}, v{SA}, v{SA+1}")
        a(f"v_cvt_pk_bf16_f32 v{PB+1}, v{SA+2}, v{SA+3}")
        a(f"v_add_f32 v{T1}, v{SA}, v{SA+1}")
        a(f"v_add_f32 v{T2}, v{SA+2}, v{SA+3}")
        a(f"v_add_f32 v{T1}, v{T1}, v{T2}")
        a(f"v_fma_f32 v{L}, v{L}, v{AL}, v{T1}")
        a(f"s_cbranch_vccz L_nors_{tag}")
        for i in range(64):
            a(f"v_mul_f32 v{OA+i}, v{OA+i}, v{AL}")
        a.label(f"L_nors_{tag}")
        a("s_cmp_eq_u32 s15, 1000")
        a(f"s_cbranch_scc1 L_wv_{tag}")
        a("s_waitcnt vmcnt(0)")
        a.label(f"L_wv_{tag}")
        a(f"s_waitcnt vmcnt({wv})")
        for nn in range(16):
            a(f"ds_read_b64_tr_b16 v[{VF+2*nn}:{VF+2*nn+1}], v{VRA+(nn&7)} offset:{vslot*8192 + (nn>>3)*256}")
        for nn in range(16):
            a(f"s_waitcnt lgkmcnt({15-nn})")
            a(f"v_mfma_f32_16x16x16_bf16 v[{OA+4*nn}:{OA+4*nn+3}], v[{VF+2*nn}:{VF+2*nn+1}], v[{PB}:{PB+1}], v[{OA+4*nn}:{OA+4*nn+3}]")
        a("s_cmp_lg_u32 s15, 1000")
        a(f"s_cbranch_scc1 L_noiv_{tag}")
        issue("V", vslot)
        a.label(f"L_noiv_{tag}")

    a("s_mov_b32 s13, 0")
    a("s_mov_b32 s15, 1000")
    a.label("L_loop")
    step(0, 1, True, 24, 24, "a")
    a("s_add_u32 s13, s13, 1")
    a("s_cmp_ge_u32 s13, s15")
    a("s_cbranch_scc1 L_loop_done")
    step(2, 3, True, 24, 24, "b")
    a("s_add_u32 s13, s13, 1")
    a("s_cmp_lt_u32 s13, s15")
    a("s_cbranch_scc1 L_loop")
    a.label("L_loop_done")
    a("s_waitcnt vmcnt(0)")
    if STAMP:
        a("s_cmp_lg_u32 s3, 0")
        a("s_cbranch_scc1 L_st6")
        stamp(a, 6)
        a.label("L_st6")
    group_reduce(a, "v_add_f32", L, T1)
    a("s_nop 7")
    a("v_cmp_gt_u32 vcc, 2, v3")
    a("v_lshlrev_b32 v5, 10, v3")
    a("v_lshl_add_u32 v5, v4, 4, v5")
    a("v_add_u32 v5, s8, v5")
    a("s_and_b64 exec, exec, vcc")
    for nn in range(16):
        a(f"ds_write_b128 v5, v[{OA+4*nn}:{OA+4*nn+3}] offset:{nn*64}")
    a("v_cmp_gt_u32 vcc, 2, v2")
    a("v_lshlrev_b32 v5, 3, v2")
    a("v_add_u32 v5, s8, v5")
    a("s_and_b64 exec, exec, vcc")
    a(f"ds_write_b64 v5, v[{M}:{M+1}] offset:2048")
    a("s_mov_b64 exec, s[58:59]")
    a("s_waitcnt lgkmcnt(0)")
    a("s_barrier")
    a("v_lshrrev_b32 v5, 7, v0")
    a("v_lshlrev_b32 v6, 3, v5")
    a("v_lshlrev_b32 v7, 3, v0")
    a("v_add_u32 v9, 0x10000, v6")
    a("v_add_u32 v10, 0x10000, v7")
    for w in range(4):
        a(f"ds_read_b64 v[{16+2*w}:{17+2*w}], v{6 if w<2 else 9} offset:{(w&1)*32768+2048}")
        a(f"ds_read_b64 v[{24+2*w}:{25+2*w}], v{7 if w<2 else 10} offset:{(w&1)*32768}")
    a("s_waitcnt lgkmcnt(0)")
    a("v_max_f32 v32, v16, v18")
    a("v_max3_f32 v32, v32, v20, v22")
    for w in range(4):
        a(f"v_sub_f32 v{16+2*w}, v{16+2*w}, v32")
        a(f"v_exp_f32 v{16+2*w}, v{16+2*w}")
    a("s_nop 0")
    a("v_mul_f32 v33, v16, v17")
    a("v_mul_f32 v34, v16, v24")
    a("v_mul_f32 v35, v16, v25")
    for w in range(1, 4):
        a(f"v_fmac_f32 v33, v{16+2*w}, v{17+2*w}")
        a(f"v_fmac_f32 v34, v{16+2*w}, v{24+2*w}")
        a(f"v_fmac_f32 v35, v{16+2*w}, v{25+2*w}")
    a("s_lshl_b32 s6, s98, 11")
    a(f"s_add_u32 s6, s6, {WS_OP}")
    a("buffer_store_dwordx2 v[34:35], v7, s[52:55], s6 offen sc1")
    a("v_and_b32 v8, 127, v0")
    a("v_cmp_gt_u32 vcc, 16, v8")
    a("v_lshlrev_b32 v8, 3, v8")
    a("v_lshl_add_u32 v8, v5, 7, v8")
    a("s_lshl_b32 s6, s98, 8")
    a(f"s_add_u32 s6, s6, {WS_ML}")
    a("s_and_b64 exec, exec, vcc")
    a("s_cbranch_execz L_noml")
    a("buffer_store_dwordx2 v[32:33], v8, s[52:55], s6 offen sc1")
    a.label("L_noml")
    a("s_mov_b64 exec, s[58:59]")
    a("s_branch L_tail")

    a.label("L_helpers")
    a("s_memrealtime s[16:17]")
    a("v_lshlrev_b32 v5, 4, v2")
    a("v_mov_b32 v6, 0x7fff0000")
    a("v_cndmask_b32 v5, v6, v5, s[56:57]")
    a("s_sub_u32 s6, s3, 4")
    a("s_mul_i32 s15, s6, 1792")
    a("buffer_load_dwordx4 v[8:11], v5, s[60:63], s15 offen")
    a("buffer_load_dwordx4 v[12:15], v5, s[60:63], s15 offen offset:896")
    a("s_cmp_ge_u32 s38, 14")
    a("s_cselect_b32 s99, 1, 0")
    a("s_mul_i32 s6, s99, 14")
    a("s_sub_u32 s100, s38, s6")
    a("s_lshl_b32 s101, s4, 1")
    a("s_add_u32 s101, s101, s99")
    a("s_cmp_lg_u32 s3, 4")
    a("s_cbranch_scc1 L_h_not4")
    a("v_lshrrev_b32 v5, 1, v2")
    a("v_lshlrev_b32 v5, 13, v5")
    a("v_and_b32 v6, 1, v2")
    a("v_lshl_add_u32 v5, v6, 4, v5")
    a("s_lshl_b32 s6, s39, 5")
    a(f"s_mov_b32 s7, {L_WQ}")
    for p in range(14):
        a("s_mov_b32 m0, s7")
        a("s_add_u32 s7, s7, 1024")
        a("buffer_load_dwordx4 v5, s[64:67], s6 offen lds")
        a("s_add_u32 s6, s6, 0x40000")
    a(f"v_mov_b32 v5, {L_F}")
    for i in range(4):
        a(f"v_mov_b32 v{16+i}, 0")
    a("ds_write_b128 v5, v[16:19]")
    a(f"s_mul_i32 s6, s97, {NSTAT}")
    a("v_add_u32 v16, s6, v2")
    a(f"v_cmp_gt_u32 vcc, {NSTAT}, v2")
    a("v_lshlrev_b32 v5, 2, v2")
    a(f"v_add_u32 v5, {L_NEXT}, v5")
    a("v_cndmask_b32 v16, -1, v16, vcc")
    if VX: a("v_add_u32 v16, s6, v2")
    if VX: a("v_max_u32 v16, v16, v16")
    if VX: a(f"v_mov_b32 v17, 0x1000")
    if VX: a("v_cndmask_b32 v16, v17, v16, vcc")
    a("v_mov_b32 v17, -1")
    a("ds_write_b32 v5, v16")
    a("ds_write_b32 v5, v17 offset:256")
    a("s_branch L_h_bar0")
    a.label("L_h_not4")
    a("s_cmp_lg_u32 s3, 6")
    a("s_cbranch_scc1 L_h_bar0")
    a("s_cmp_lg_u32 s97, 0")
    a("s_cbranch_scc1 L_nocinit")
    a("s_lshl_b32 s6, s4, 3")
    a("s_add_u32 s6, s6, s96")
    a("s_lshl_b32 s6, s6, 8")
    a(f"s_add_u32 s6, s6, {WS_CNT}")
    a("s_waitcnt lgkmcnt(0)")
    a("s_lshr_b64 s[18:19], s[16:17], 2")
    a("s_and_b32 s7, s18, 0xffffff00")
    a("v_mov_b32 v16, s7")
    a("v_mov_b32 v17, 0")
    a("s_mov_b64 exec, 1")
    a("buffer_store_dword v16, v17, s[52:55], s6 offen sc1")
    a("s_mov_b64 exec, s[58:59]")
    a.label("L_nocinit")
    a.label("L_h_bar0")
    a("s_waitcnt lgkmcnt(0)")
    if not LATE0: a("s_barrier")
    a("s_lshr_b64 s[16:17], s[16:17], 10")
    a("s_cmp_eq_u32 s3, 4")
    a("s_cbranch_scc1 L_h_w14")
    a("s_cmp_eq_u32 s3, 6")
    a("s_cbranch_scc1 L_h_w3")
    a("s_waitcnt vmcnt(0)")
    a("s_branch L_h_ln")
    a.label("L_h_w14")
    a(f"s_waitcnt vmcnt({0 if LATE0 else 14})")
    a("s_branch L_h_ln")
    a.label("L_h_w3")
    a("s_waitcnt vmcnt(1)")
    a("s_cmp_eq_u32 s97, 0")
    a("s_cbranch_scc1 L_h_ln")
    a("s_waitcnt vmcnt(0)")
    a.label("L_h_ln")
    if LATE0: a("s_barrier")
    unpack8(a, 8, 16)
    unpack8(a, 12, 24)
    layernorm8x2(a, 16, 24, (32, 33, 34), (35, 36, 37), 56)
    pack8(a, 16, 8)
    pack8(a, 24, 12)
    a("v_lshlrev_b32 v5, 4, v2")
    a(f"s_add_u32 s6, s15, {L_XN}")
    a("v_add_u32 v5, s6, v5")
    a("s_mov_b64 exec, s[56:57]")
    a("ds_write_b128 v5, v[8:11]")
    a("ds_write_b128 v5, v[12:15] offset:896")
    a("s_mov_b64 exec, 1")
    a(f"v_mov_b32 v5, {L_F}")
    a("v_mov_b32 v6, 1")
    a("s_waitcnt lgkmcnt(0)")
    a("ds_add_u32 v5, v6")
    a("s_mov_b64 exec, s[58:59]")
    a("s_lshl_b32 s7, s4, 5")
    a("v_mov_b32 v9, s7")
    a("v_mov_b32 v8, 1")
    a("s_cmp_eq_u32 s3, 4")
    a("s_cbranch_scc1 L_service")
    a("s_cmp_eq_u32 s3, 5")
    a("s_cbranch_scc1 L_w5")
    if IPF:
        a("s_cmp_lg_u32 s3, 7")
        a("s_cbranch_scc1 L_not7")
        assert IPF < NSTAT
        a(f"v_mov_b32 v5, {L_F+12}")
        a("s_mov_b32 s13, 0")
        a.label("L_w7s")
        a("s_sleep 32")
        a("ds_read_b32 v6, v5")
        a("s_add_u32 s13, s13, 1")
        a("s_waitcnt lgkmcnt(0)")
        a("v_readfirstlane_b32 s6, v6")
        a("s_cmp_ge_u32 s13, 0x10000")
        a("s_cbranch_scc1 L_w7s_d")
        a(f"s_cmp_lt_u32 s6, {IPF}")
        a("s_cbranch_scc1 L_w7s")
        a.label("L_w7s_d")
        a("s_getpc_b64 s[36:37]")
        a.label("L_pc0")
        a("s_add_u32 s36, s36, L_loop_done-L_pc0")
        a("s_addc_u32 s37, s37, -1")
        a("s_mov_b32 s6, 0")
        a.label("L_pf1")
        a("s_load_dwordx16 s[20:35], s[36:37], s6")
        a("s_add_u32 s6, s6, 64")
        a("s_cmp_lt_u32 s6, L_helpers-L_loop_done")
        a("s_cbranch_scc1 L_pf1")
        a("s_waitcnt lgkmcnt(0)")
        a("s_getpc_b64 s[36:37]")
        a.label("L_pc1")
        a("s_add_u32 s36, s36, L_tail-L_pc1")
        a("s_addc_u32 s37, s37, 0")
        a("s_mov_b32 s6, 0")
        a.label("L_pf2")
        a("s_load_dwordx16 s[20:35], s[36:37], s6")
        a("s_add_u32 s6, s6, 64")
        a("s_cmp_lt_u32 s6, L_done-L_tail")
        a("s_cbranch_scc1 L_pf2")
        a("s_waitcnt lgkmcnt(0)")
        a("s_branch L_h_bar3")
        a.label("L_not7")
    a("s_cmp_lg_u32 s3, 6")
    a("s_cbranch_scc1 L_h_bar3")
    if VX == 4: a("s_branch L_h_bar3")
    for i in range(4):
        a(f"v_mov_b32 v{16+i}, -1")
    a("v_lshlrev_b32 v6, 4, v2")
    a("s_lshl_b32 s6, s98, 11")
    a(f"s_add_u32 s6, s6, {WS_OP}")
    a("buffer_store_dwordx4 v[16:19], v6, s[52:55], s6 offen sc1")
    a("buffer_store_dwordx4 v[16:19], v6, s[52:55], s6 offen offset:1024 sc1")
    a("s_lshl_b32 s6, s98, 8")
    a(f"s_add_u32 s6, s6, {WS_ML}")
    a("s_mov_b64 exec, 0xffff")
    a("buffer_store_dwordx4 v[16:19], v6, s[52:55], s6 offen sc1")
    a("s_mov_b64 exec, s[58:59]")
    a("s_cmp_ge_u32 s38, 28")
    a("s_cbranch_scc1 L_clr_done")
    a("s_lshl_b32 s6, s4, 1")
    a("s_mul_i32 s6, s6, 14")
    a("s_add_u32 s6, s6, s38")
    a("s_lshl_b32 s6, s6, 10")
    a(f"s_add_u32 s6, s6, {WS_P2}")
    a("buffer_store_dwordx4 v[16:19], v6, s[52:55], s6 offen sc1")
    a.label("L_clr_done")
    a("s_mov_b64 exec, 1")
    a("s_waitcnt vmcnt(0)")
    a("buffer_atomic_add v8, v9, s[72:75], 0 offen sc1")
    a("s_mov_b64 exec, s[58:59]")
    a("s_branch L_h_bar3")
    a.label("L_w5")
    a(f"v_mov_b32 v5, {L_F+12}")
    a("s_mov_b32 s13, 0")
    a.label("L_w5s")
    a("s_sleep 32")
    a("ds_read_b32 v6, v5")
    a("s_add_u32 s13, s13, 1")
    a("s_waitcnt lgkmcnt(0)")
    a("v_readfirstlane_b32 s6, v6")
    a("s_cmp_ge_u32 s13, 0x10000")
    a("s_cbranch_scc1 L_w5s_d")
    a(f"s_cmp_lt_u32 s6, {min(20, NSTAT-2)}")
    a("s_cbranch_scc1 L_w5s")
    a.label("L_w5s_d")
    a("v_lshlrev_b32 v9, 5, v2")
    a("v_cmp_gt_u32 vcc, 8, v2")
    a("s_mov_b32 s13, 0")
    a("s_and_b64 exec, exec, vcc")
    a.label("L_pollall")
    a("buffer_load_dword v10, v9, s[72:75], 0 offen sc1")
    a("s_add_u32 s13, s13, 1")
    a("s_waitcnt vmcnt(0)")
    a("v_cmp_gt_u32 vcc, 64, v10")
    a(f"s_cmp_ge_u32 s13, {SPIN_MAX}")
    a("s_cbranch_scc1 L_pollall_done")
    a("s_cbranch_vccz L_pollall_done")
    a("s_sleep 64")
    a("s_branch L_pollall")
    a.label("L_pollall_done")
    a("s_mov_b64 exec, s[58:59]")
    stamp(a, 12, 236, 237)
    a.label("L_h_bar3")
    a("s_barrier")
    a("s_branch L_tail")

    a.label("L_service")
    a("v_bfe_u32 v6, v2, 2, 2")
    a("v_lshl_add_u32 v6, v4, 3, v6")
    a("v_lshlrev_b32 v6, 5, v6")
    a("v_and_b32 v7, 3, v2")
    a("v_lshl_add_u32 v6, v7, 3, v6")
    a(f"v_add_u32 v10, {L_WQ}, v6")
    a("v_and_b32 v7, 7, v2")
    a("v_mul_u32_u24 v7, 896, v7")
    a("v_lshl_add_u32 v7, v4, 4, v7")
    a(f"v_add_u32 v7, {L_XN}, v7")
    a("s_waitcnt vmcnt(0)")
    stamp(a, 1, 236, 237)
    for j in range(14):
        a(f"ds_read_b64_tr_b16 v[{40+4*j}:{41+4*j}], v10 offset:{j*1024}")
        a(f"ds_read_b64_tr_b16 v[{42+4*j}:{43+4*j}], v10 offset:{j*1024+128}")
    ldsspin(0, 4, "L_spin0")
    stamp(a, 2, 236, 237)
    for j in range(14):
        a(f"ds_read_b128 v[{100+4*j}:{103+4*j}], v7 offset:{j*64}")
    for j in range(14):
        a(f"s_waitcnt lgkmcnt({13-j})")
        c = "0" if j == 0 else "v[32:35]"
        a(f"v_mfma_f32_16x16x32_bf16 v[32:35], v[{40+4*j}:{43+4*j}], v[{100+4*j}:{103+4*j}], {c}")
    a("v_cmp_gt_u32 vcc, 8, v3")
    a("v_lshlrev_b32 v5, 6, v3")
    a("v_lshl_add_u32 v5, v4, 4, v5")
    a("s_lshl_b32 s6, s39, 9")
    a("v_mov_b32 v37, s16")
    a("v_mov_b32 v39, s16")
    a(f"v_mov_b32 v6, {L_F+4}")
    a("s_sub_u32 s17, s16, 2")
    a("s_nop 1")
    a("v_cvt_pk_bf16_f32 v36, v32, v33")
    a("v_cvt_pk_bf16_f32 v38, v34, v35")
    a("s_and_b64 exec, exec, vcc")
    a(f"buffer_store_dwordx4 v[36:39], v5, s[52:55], s6 offen offset:{WS_Q} sc1")
    a("s_mov_b64 exec, 1")
    a("ds_write_b32 v6, v8")
    a("s_mov_b64 exec, s[58:59]")
    stamp(a, 3, 236, 237)
    a("v_lshrrev_b32 v5, 1, v2")
    a("v_lshlrev_b32 v5, 9, v5")
    a("v_and_b32 v6, 1, v2")
    a("v_lshl_add_u32 v5, v6, 5, v5")
    a("s_lshl_b32 s6, s96, 6")
    a("s_lshl_b32 s7, s4, 14")
    a("s_add_u32 s15, s6, s7")
    a("s_mov_b32 s13, 0")
    def qld(base):
        a(f"buffer_load_dwordx4 v[{base}:{base+3}], v5, s[52:55], s15 offen offset:{WS_Q} sc1")
        a(f"buffer_load_dwordx4 v[{base+4}:{base+7}], v5, s[52:55], s15 offen offset:{WS_Q+16} sc1")
    def qchk(base):
        a(f"v_subrev_u32 v20, s17, v{base+1}")
        a(f"v_subrev_u32 v21, s17, v{base+3}")
        a(f"v_subrev_u32 v22, s17, v{base+5}")
        a(f"v_subrev_u32 v23, s17, v{base+7}")
        a("v_max_u32 v20, v20, v21")
        a("v_max3_u32 v20, v20, v22, v23")
        a("v_cmp_lt_u32 vcc, 4, v20")
    qld(12)
    a.label("L_pq2")
    qld(24)
    a("s_waitcnt vmcnt(2)")
    qchk(12)
    a("s_cbranch_vccz L_pollq_done")
    qld(12)
    a("s_waitcnt vmcnt(2)")
    qchk(24)
    a("s_cbranch_vccz L_pq_useB")
    a("s_add_u32 s13, s13, 2")
    a("s_cmp_lt_u32 s13, 2047")
    a("s_cbranch_scc1 L_pq2")
    a("s_mov_b32 s13, 2047")
    a("s_branch L_pollq")
    a.label("L_pq_useB")
    a("v_mov_b32 v32, v24")
    a("v_mov_b32 v33, v26")
    a("v_mov_b32 v34, v28")
    a("v_mov_b32 v35, v30")
    a("s_branch L_pollq_wr")
    a.label("L_pollq")
    qld(12)
    a("s_waitcnt vmcnt(0)")
    a("s_cmp_lg_u32 s13, 2047")
    a("s_cbranch_scc1 L_pq_noat")
    a("s_mov_b64 exec, 1")
    a("buffer_atomic_add v8, v9, s[72:75], 0 offen sc1")
    a("s_mov_b64 exec, s[58:59]")
    a.label("L_pq_noat")
    a("s_add_u32 s13, s13, 1")
    qchk(12)
    a("s_cbranch_vccz L_pollq_done")
    a("buffer_load_dword v10, v9, s[72:75], 0 offen sc1")
    a("s_waitcnt vmcnt(0)")
    a("v_readfirstlane_b32 s6, v10")
    a(f"s_cmp_ge_u32 s13, {SPIN_MAX}")
    a("s_cbranch_scc1 L_pollq_done")
    a("s_cmp_ge_u32 s6, 64")
    a("s_cbranch_scc0 L_pollq")
    qld(12)
    a("s_waitcnt vmcnt(0)")
    a.label("L_pollq_done")
    a("v_mov_b32 v32, v12")
    a("v_mov_b32 v33, v14")
    a("v_mov_b32 v34, v16")
    a("v_mov_b32 v35, v18")
    a.label("L_pollq_wr")
    stamp(a, 4, 236, 237)
    a("v_lshlrev_b32 v5, 4, v2")
    a(f"v_add_u32 v5, {L_QL}, v5")
    a(f"v_mov_b32 v6, {L_F+8}")
    a("ds_write_b128 v5, v[32:35]")
    a("s_waitcnt lgkmcnt(0)")
    a("s_mov_b64 exec, 1")
    a("ds_write_b32 v6, v8")
    a("s_cmp_ge_u32 s13, 2048")
    a("s_cbranch_scc1 L_pq_noat2")
    a("buffer_atomic_add v8, v9, s[72:75], 0 offen sc1")
    a.label("L_pq_noat2")
    a("s_mov_b64 exec, s[58:59]")
    a("s_waitcnt vmcnt(1)")
    stamp(a, 5, 236, 237)
    a("s_cmp_ge_u32 s38, 28")
    a("s_cbranch_scc1 L_nowo")
    a("v_lshrrev_b32 v5, 2, v2")
    a("v_mul_u32_u24 v5, 896, v5")
    a("v_and_b32 v6, 3, v2")
    a("v_lshl_add_u32 v5, v6, 4, v5")
    a("s_mul_i32 s6, s101, 229376")
    a("s_lshl_b32 s7, s100, 6")
    a("s_add_u32 s6, s6, s7")
    a(f"s_mov_b32 s7, {L_WO}")
    for p in range(16):
        a("s_mov_b32 m0, s7")
        a("s_add_u32 s7, s7, 1024")
        a("buffer_load_dwordx4 v5, s[68:71], s6 offen lds")
        a("s_add_u32 s6, s6, 14336")
    a.label("L_nowo")
    if VX: a("s_branch L_skipdyn")
    a("s_lshl_b32 s6, s4, 3")
    a("s_add_u32 s6, s6, s96")
    a("s_lshl_b32 s6, s6, 8")
    a(f"s_add_u32 s25, s6, {WS_CNT}")
    a("v_mov_b32 v14, 0")
    a("s_mov_b32 s13, 0")
    a.label("L_pcnt")
    a("buffer_load_dword v10, v14, s[52:55], s25 offen sc1")
    a("s_add_u32 s13, s13, 1")
    a("s_waitcnt vmcnt(0)")
    a("v_readfirstlane_b32 s6, v10")
    a("s_lshr_b32 s6, s6, 8")
    a("s_sub_u32 s6, s6, s17")
    a("s_and_b32 s6, s6, 0xffffff")
    a("s_cmp_le_u32 s6, 4")
    a("s_cbranch_scc1 L_pcnt_done")
    a("s_sleep 16")
    a("s_cmp_lt_u32 s13, 1024")
    a("s_cbranch_scc1 L_pcnt")
    a("buffer_load_dword v10, v9, s[72:75], 0 offen sc1")
    a("s_waitcnt vmcnt(0)")
    a("v_readfirstlane_b32 s6, v10")
    a(f"s_cmp_ge_u32 s13, {SPIN_MAX}")
    a("s_cbranch_scc1 L_pcnt_done")
    a("s_cmp_ge_u32 s6, 64")
    a("s_cbranch_scc0 L_pcnt")
    a.label("L_pcnt_done")
    a("s_mov_b32 s22, 1")
    a(f"s_mov_b32 s23, {NSTAT}")
    a(f"s_mov_b32 s24, {NSTAT}")
    a(f"v_mov_b32 v11, {L_F+12}")
    a("v_mov_b32 v10, s22")
    a("s_waitcnt vmcnt(0)")
    a.label("L_dyn")
    a("ds_read_b32 v6, v11")
    a("s_waitcnt lgkmcnt(0)")
    a("v_readfirstlane_b32 s6, v6")
    a(f"s_add_u32 s6, s6, {LOOK}")
    a("s_cmp_ge_u32 s6, s23")
    a("s_cbranch_scc1 L_dyn_go")
    a("s_sleep 4")
    a("s_branch L_dyn")
    a.label("L_dyn_go")
    if STAMP:
        a(f"s_cmp_lg_u32 s23, {NSTAT}")
        a("s_cbranch_scc1 L_sq1")
        a("s_memrealtime s[26:27]")
        a("s_waitcnt lgkmcnt(0)")
        a.label("L_sq1")
    a(f"s_sub_u32 s6, s23, {NSTAT}")
    a("s_lshl_b64 exec, 1, s6")
    a("buffer_atomic_add v10, v14, s[52:55], s25 offen sc0 sc1")
    a("s_mov_b64 exec, s[58:59]")
    a("s_add_u32 s23, s23, 1")
    a("s_sub_u32 s6, s23, s24")
    a(f"s_cmp_le_u32 s6, {DEPTH}")
    a("s_cbranch_scc1 L_dyn")
    a(f"s_waitcnt vmcnt({DEPTH})")
    if STAMP:
        a(f"s_cmp_lg_u32 s24, {NSTAT}")
        a("s_cbranch_scc1 L_sq2")
        a("s_memrealtime s[28:29]")
        a("s_waitcnt lgkmcnt(0)")
        a.label("L_sq2")
    a(f"s_sub_u32 s6, s24, {NSTAT}")
    a("v_readlane_b32 s6, v10, s6")
    a("s_and_b32 s6, s6, 0xff")
    a(f"s_add_u32 s7, s6, {4*NSTAT}")
    a(f"s_cmp_lt_u32 s6, {128-4*NSTAT}")
    a("s_cselect_b32 s7, s7, 0x1000")
    a("s_lshl_b32 s6, s24, 2")
    a(f"s_add_u32 s6, s6, {L_NEXT}")
    a("v_mov_b32 v12, s6")
    a("v_mov_b32 v13, s7")
    a("ds_write_b32 v12, v13")
    a("s_add_u32 s24, s24, 1")
    a("s_cmp_lt_u32 s7, 128")
    a("s_cbranch_scc1 L_dyn")
    a("v_add_u32 v12, 4, v12")
    a("ds_write_b32 v12, v13")
    a("s_waitcnt vmcnt(0) lgkmcnt(0)")
    if STAMP:
        stamp(a, 16, 236, 237)
        for (sr, idx) in ((26, 14), (28, 15)):
            a(f"v_mov_b32 v236, s{sr}")
            a("s_lshl_b32 s42, s2, 7")
            a(f"s_add_u32 s42, s42, {0x200000 + idx*4}")
            a("v_mov_b32 v237, 0")
            a("s_mov_b64 exec, 1")
            a("buffer_store_dword v236, v237, s[52:55], s42 offen")
            a("s_mov_b64 exec, s[58:59]")
    a.label("L_skipdyn")
    a("s_waitcnt vmcnt(0)")
    a("s_barrier")
    stamp(a, 7, 236, 237)

    a.label("L_tail")
    a("s_cmp_ge_u32 s38, 14")
    a("s_cselect_b32 s99, 1, 0")
    a("s_mul_i32 s6, s99, 14")
    a("s_sub_u32 s100, s38, s6")
    a("s_lshl_b32 s101, s4, 1")
    a("s_add_u32 s101, s101, s99")
    a("s_cmp_eq_u32 s3, 7")
    a("s_cbranch_scc1 L_now")
    a("v_mul_u32_u24 v5, 56, v2")
    for (base, sr) in ((128, 80), (144, 84), (160, 88)):
        for i in range(3):
            a(f"buffer_load_dwordx4 v[{base+4*i}:{base+4*i+3}], v5, s[{sr}:{sr+3}], 0 offen offset:{16*i}")
        a(f"buffer_load_dwordx2 v[{base+12}:{base+13}], v5, s[{sr}:{sr+3}], 0 offen offset:48")
    a("v_mov_b32 v6, 0")
    a("buffer_load_ushort v174, v6, s[92:95], 0 offen")
    a.label("L_now")
    a("s_cmp_ge_u32 s38, 28")
    a("s_cbranch_scc1 L_stageD")
    a("s_cmp_ge_u32 s3, 4")
    a("s_cbranch_scc1 L_bar4")
    a("v_lshrrev_b32 v5, 5, v0")
    a("v_and_b32 v6, 31, v0")
    a("v_lshlrev_b32 v7, 13, v5")
    a("v_lshl_add_u32 v7, v6, 5, v7")
    a("v_lshlrev_b32 v8, 10, v5")
    a("s_lshl_b32 s10, s4, 16")
    a("s_lshl_b32 s11, s99, 10")
    a("s_add_u32 s10, s10, s11")
    a(f"s_add_u32 s10, s10, {WS_OP}")
    a("s_add_u32 s11, s10, 4096")
    a("s_lshl_b32 s12, s4, 13")
    a("s_lshl_b32 s6, s99, 7")
    a("s_add_u32 s12, s12, s6")
    a(f"s_add_u32 s12, s12, {WS_ML}")
    a("v_and_b32 v9, 31, v2")
    a("v_lshlrev_b32 v9, 8, v9")
    a("s_mov_b32 s13, 0")
    if BULK & 1: a("s_branch L_pollC")
    a.label("L_pollC0")
    a("buffer_load_dwordx2 v[16:17], v9, s[52:55], s12 offen sc1")
    a("s_add_u32 s13, s13, 1")
    a("s_waitcnt vmcnt(0)")
    anysent(a, range(16, 18), 56)
    a("v_cmp_eq_u32 vcc, -1, v56")
    a(f"s_cmp_ge_u32 s13, {SPIN_MAX}")
    a("s_cbranch_scc1 L_pollC")
    a("s_cbranch_vccz L_pollC")
    a("s_sleep 8")
    a("s_branch L_pollC0")
    a.label("L_pollC")
    if STAMP:
        a("s_cmp_lg_u32 s3, 0")
        a("s_cbranch_scc1 L_st19")
        stamp(a, 19)
        a.label("L_st19")
    for s in range(4):
        a(f"buffer_load_dwordx2 v[{48+2*s}:{49+2*s}], v8, s[52:55], s12 offen offset:{s*256} sc1")
    for s in range(4):
        a(f"buffer_load_dwordx4 v[{16+8*s}:{19+8*s}], v7, s[52:55], s{10+(s>>1)} offen offset:{(s&1)*2048} sc1")
        a(f"buffer_load_dwordx4 v[{20+8*s}:{23+8*s}], v7, s[52:55], s{10+(s>>1)} offen offset:{(s&1)*2048+16} sc1")
    a("s_add_u32 s13, s13, 1")
    a("s_waitcnt vmcnt(0)")
    anysent(a, range(16, 56), 56)
    a("v_cmp_eq_u32 vcc, -1, v56")
    a(f"s_cmp_ge_u32 s13, {SPIN_MAX}")
    a("s_cbranch_scc1 L_pollC_done")
    a("s_cbranch_vccz L_pollC_done")
    a("s_sleep 4")
    a("s_branch L_pollC")
    a.label("L_pollC_done")
    if STAMP:
        a("s_cmp_lg_u32 s3, 0")
        a("s_cbranch_scc1 L_st8")
        stamp(a, 8)
        a.label("L_st8")
    a("v_max_f32 v56, v48, v50")
    a("v_max3_f32 v56, v56, v52, v54")
    for s in range(4):
        a(f"v_sub_f32 v{48+2*s}, v{48+2*s}, v56")
        a(f"v_exp_f32 v{48+2*s}, v{48+2*s}")
    a("s_nop 0")
    a("v_mul_f32 v57, v48, v49")
    for s in range(1, 4):
        a(f"v_fmac_f32 v57, v{48+2*s}, v{49+2*s}")
    a("v_rcp_f32 v57, v57")
    a("s_nop 0")
    for s in range(4):
        a(f"v_mul_f32 v{48+2*s}, v{48+2*s}, v57")
    for i in range(8):
        a(f"v_mul_f32 v{60+i}, v48, v{16+i}")
        for s in range(1, 4):
            a(f"v_fmac_f32 v{60+i}, v{48+2*s}, v{16+8*s+i}")
    pack8(a, 60, 68)
    a("v_lshlrev_b32 v6, 4, v0")
    a(f"v_add_u32 v6, {L_O}, v6")
    a("ds_write_b128 v6, v[68:71]")
    a("s_waitcnt lgkmcnt(0)")
    a.label("L_bar4")
    a("s_barrier")
    a("s_cmp_lg_u32 s3, 0")
    a("s_cbranch_scc1 L_stageD")
    a("v_bfe_u32 v5, v2, 2, 2")
    a("v_lshl_add_u32 v5, v4, 3, v5")
    a("v_lshlrev_b32 v5, 6, v5")
    a("v_and_b32 v6, 3, v2")
    a("v_lshl_add_u32 v5, v6, 3, v5")
    a(f"v_add_u32 v5, {L_WO}, v5")
    a("v_and_b32 v6, 7, v2")
    a("v_lshlrev_b32 v6, 9, v6")
    a("v_lshl_add_u32 v6, v4, 4, v6")
    a(f"v_add_u32 v6, {L_O}, v6")
    for j in range(8):
        a(f"ds_read_b128 v[{48+4*j}:{51+4*j}], v6 offset:{j*64}")
        a(f"ds_read_b64_tr_b16 v[{16+4*j}:{17+4*j}], v5 offset:{j*2048}")
        a(f"ds_read_b64_tr_b16 v[{18+4*j}:{19+4*j}], v5 offset:{j*2048+256}")
        a(f"ds_read_b64_tr_b16 v[{88+4*j}:{89+4*j}], v5 offset:{j*2048+32}")
        a(f"ds_read_b64_tr_b16 v[{90+4*j}:{91+4*j}], v5 offset:{j*2048+256+32}")
    a("s_waitcnt lgkmcnt(0)")
    for j in range(8):
        c0 = "0" if j == 0 else "v[80:83]"
        c1 = "0" if j == 0 else "v[84:87]"
        a(f"v_mfma_f32_16x16x32_bf16 v[80:83], v[{16+4*j}:{19+4*j}], v[{48+4*j}:{51+4*j}], {c0}")
        a(f"v_mfma_f32_16x16x32_bf16 v[84:87], v[{88+4*j}:{91+4*j}], v[{48+4*j}:{51+4*j}], {c1}")
    a("v_cmp_gt_u32 vcc, 8, v3")
    a("v_lshlrev_b32 v5, 7, v3")
    a("v_lshl_add_u32 v5, v4, 4, v5")
    a(f"v_add_u32 v5, {L_QL}, v5")
    a("v_lshlrev_b32 v6, 4, v2")
    a(f"v_add_u32 v7, {L_QL}, v6")
    a("s_lshl_b32 s6, s4, 1")
    a("s_mul_i32 s6, s6, 14")
    a("s_add_u32 s6, s6, s38")
    a("s_lshl_b32 s6, s6, 10")
    a(f"s_add_u32 s6, s6, {WS_P2}")
    a("s_and_b64 exec, exec, vcc")
    a("ds_write_b128 v5, v[80:83]")
    a("ds_write_b128 v5, v[84:87] offset:64")
    a("s_mov_b64 exec, s[58:59]")
    a("s_waitcnt lgkmcnt(0)")
    a("ds_read_b128 v[80:83], v7")
    a("s_waitcnt lgkmcnt(0)")
    a("buffer_store_dwordx4 v[80:83], v6, s[52:55], s6 offen sc1")
    if STAMP:
        a("s_cmp_lg_u32 s3, 0")
        a("s_cbranch_scc1 L_st9")
        stamp(a, 9)
        a("s_waitcnt vmcnt(0)")
        stamp(a, 18)
        a.label("L_st9")

    a.label("L_stageD")
    a("s_lshr_b32 s96, s2, 5")
    a("s_and_b32 s97, s2, 31")
    a("s_cmp_lg_u32 s3, 7")
    a("s_cbranch_scc1 L_bar5")
    a("v_lshrrev_b32 v5, 2, v2")
    a("v_lshlrev_b32 v5, 10, v5")
    a("v_and_b32 v6, 3, v2")
    a("v_lshl_add_u32 v5, v6, 5, v5")
    a("v_mov_b32 v6, 0x7fff0000")
    a("v_cndmask_b32 v5, v6, v5, s[56:57]")
    a("v_lshlrev_b32 v7, 4, v2")
    a("v_cndmask_b32 v7, v6, v7, s[56:57]")
    a("s_mul_i32 s6, s96, 896")
    a("buffer_load_dwordx4 v[8:11], v7, s[60:63], s6 offen")
    a("s_mov_b32 s13, 0")
    a.label("L_pollD")
    a("s_lshl_b32 s6, s96, 7")
    a(f"s_add_u32 s6, s6, {WS_P2}")
    for h in range(16):
        a(f"buffer_load_dwordx4 v[{128+8*h}:{131+8*h}], v5, s[52:55], s6 offen sc1")
        a(f"buffer_load_dwordx4 v[{132+8*h}:{135+8*h}], v5, s[52:55], s6 offen offset:16 sc1")
        a("s_add_u32 s6, s6, 14336")
    a("s_add_u32 s13, s13, 1")
    a("s_waitcnt vmcnt(0)")
    anysent(a, range(128, 256), 12)
    a("v_cmp_eq_u32 vcc, -1, v12")
    a(f"s_cmp_ge_u32 s13, {SPIN_MAX}")
    a("s_cbranch_scc1 L_pollD_done")
    a("s_cbranch_vccz L_pollD_done")
    a("s_sleep 4")
    a("s_branch L_pollD")
    a.label("L_pollD_done")
    stamp(a, 10, 13, 14)
    for h in range(1, 16):
        for i in range(8):
            a(f"v_add_f32 v{128+i}, v{128+i}, v{128+8*h+i}")
    unpack8(a, 8, 16)
    for i in range(0, 8, 2):
        bf16r2(a, 128+i, 129+i, 12)
        a(f"v_add_f32 v{16+i}, v{16+i}, v{128+i}")
        a(f"v_add_f32 v{17+i}, v{17+i}, v{129+i}")
        bf16r2(a, 16+i, 17+i, 12)
    a("v_lshlrev_b32 v5, 5, v2")
    a(f"v_add_u32 v5, {L_H}, v5")
    a("s_mov_b64 exec, s[56:57]")
    a("ds_write_b128 v5, v[16:19]")
    a("ds_write_b128 v5, v[20:23] offset:16")
    a("s_mov_b64 exec, s[58:59]")
    layernorm8(a, 16, 32, 33, 34, 56)
    for i in range(8):
        a(f"v_cndmask_b32 v{16+i}, 0, v{16+i}, s[56:57]")
    layernorm8(a, 16, 32, 33, 34, 56)
    a("s_mov_b64 exec, s[56:57]")
    a(f"ds_write_b128 v5, v[16:19] offset:{L_T-L_H}")
    a(f"ds_write_b128 v5, v[20:23] offset:{L_T-L_H+16}")
    a("s_mov_b64 exec, s[58:59]")
    a("s_waitcnt lgkmcnt(0)")
    stamp(a, 11, 13, 14)
    a("s_barrier")
    a("s_branch L_done")
    a.label("L_bar5")
    a("s_waitcnt vmcnt(0)")
    for i in range(14):
        a(f"v_lshlrev_b32 v{16+2*i}, 16, v{128+i}")
        a(f"v_and_b32 v{17+2*i}, 0xffff0000, v{128+i}")
        a(f"v_lshlrev_b32 v{44+2*i}, 16, v{144+i}")
        a(f"v_and_b32 v{45+2*i}, 0xffff0000, v{144+i}")
    a("v_lshlrev_b32 v174, 16, v174")
    C1 = -2.0 * LOG2E * math.sqrt(2.0/math.pi)
    C2 = C1 * 0.044715
    a(f"v_mov_b32 v72, {hex(f2u(C1))}")
    a(f"v_mov_b32 v73, {hex(f2u(C1))}")
    a(f"v_mov_b32 v74, {hex(f2u(C2))}")
    a(f"v_mov_b32 v75, {hex(f2u(C2))}")
    a("v_mov_b32 v76, 1.0")
    a("v_mov_b32 v77, 1.0")
    a("v_mov_b32 v78, 0")
    a("v_mov_b32 v79, 0")
    a("s_mul_i32 s6, s97, 56")
    a("s_lshl_b32 s7, s3, 3")
    a("s_add_u32 s6, s6, s7")
    a(f"s_add_u32 s6, s6, {L_H}")
    a("v_mov_b32 v5, s6")
    a("s_barrier")
    a(f"ds_read_b64 v[80:81], v5 offset:{L_T-L_H}")
    a("ds_read_b64 v[82:83], v5")
    a("s_waitcnt lgkmcnt(0)")
    for i in range(14):
        U = [84, 92]; Tt = [86, 94]; C = [88, 96]
        for d in range(2):
            osel = "op_sel_hi:[0,1]" if d == 0 else "op_sel:[1,0] op_sel_hi:[1,1]"
            a(f"v_pk_mul_f32 v[{U[d]}:{U[d]+1}], v[80:81], v[{16+2*i}:{17+2*i}] {osel}")
        for d in range(2):
            bf16r2(a, U[d], U[d]+1, C[d])
        for d in range(2):
            a(f"v_pk_add_f32 v[{U[d]}:{U[d]+1}], v[{U[d]}:{U[d]+1}], v[{44+2*i}:{45+2*i}]")
        for d in range(2):
            bf16r2(a, U[d], U[d]+1, C[d])
        for d in range(2):
            a(f"v_pk_mul_f32 v[{Tt[d]}:{Tt[d]+1}], v[{U[d]}:{U[d]+1}], v[{U[d]}:{U[d]+1}]")
        for d in range(2):
            a(f"v_pk_fma_f32 v[{Tt[d]}:{Tt[d]+1}], v[{Tt[d]}:{Tt[d]+1}], v[74:75], v[72:73]")
        for d in range(2):
            a(f"v_pk_mul_f32 v[{Tt[d]}:{Tt[d]+1}], v[{Tt[d]}:{Tt[d]+1}], v[{U[d]}:{U[d]+1}]")
        for d in range(2):
            a(f"v_exp_f32 v{Tt[d]}, v{Tt[d]}")
            a(f"v_exp_f32 v{Tt[d]+1}, v{Tt[d]+1}")
        for d in range(2):
            a(f"v_pk_add_f32 v[{Tt[d]}:{Tt[d]+1}], v[{Tt[d]}:{Tt[d]+1}], v[76:77]")
        for d in range(2):
            a(f"v_rcp_f32 v{Tt[d]}, v{Tt[d]}")
            a(f"v_rcp_f32 v{Tt[d]+1}, v{Tt[d]+1}")
        for d in range(2):
            a(f"v_pk_mul_f32 v[{Tt[d]}:{Tt[d]+1}], v[{Tt[d]}:{Tt[d]+1}], v[{U[d]}:{U[d]+1}]")
        for d in range(2):
            a(f"v_cvt_pk_bf16_f32 v{C[d]}, v{Tt[d]}, v{Tt[d]+1}")
        for d in range(2):
            a(f"v_dot2_f32_bf16 v{78+d}, v{C[d]}, v{160+i}, v{78+d}")
    a("s_nop 3")
    wave_reduce2(a, "v_add_f32", 78, 84, 79, 85)
    bf16r2(a, 78, 79, 84)
    a("v_add_f32 v78, v78, v174")
    a("v_add_f32 v79, v79, v174")
    bf16r2(a, 78, 79, 84)
    a("v_add_f32 v78, v78, v82")
    a("v_add_f32 v79, v79, v83")
    a("v_cvt_pk_bf16_f32 v78, v78, v79")
    a("s_mul_i32 s6, s96, 896")
    a("s_mul_i32 s7, s97, 28")
    a("s_add_u32 s6, s6, s7")
    a("s_lshl_b32 s7, s3, 2")
    a("s_add_u32 s6, s6, s7")
    a("v_mov_b32 v5, 0")
    a("s_mov_b64 exec, 1")
    a("buffer_store_dword v78, v5, s[76:79], s6 offen")
    if STAMP:
        a("s_cmp_lg_u32 s3, 0")
        a("s_cbranch_scc1 L_done")
        stamp(a, 13)
    a.label("L_done")
    a("s_endpgm")
    a.raw(".section .rodata,\"a\"")
    a.raw(".p2align 6")
    a.raw(f".amdhsa_kernel {n}")
    a.raw("  .amdhsa_next_free_vgpr 256")
    a.raw("  .amdhsa_next_free_sgpr 102")
    a.raw("  .amdhsa_accum_offset 256")
    a.raw("  .amdhsa_group_segment_fixed_size 0")
    a.raw("  .amdhsa_kernarg_size 104")
    a.raw("  .amdhsa_user_sgpr_count 2")
    a.raw("  .amdhsa_user_sgpr_kernarg_segment_ptr 1")
    a.raw("  .amdhsa_system_sgpr_workgroup_id_x 1")
    a.raw(".end_amdhsa_kernel")

def main():
    a = Asm()
    hdr = open("cdna_kernels/%s.s.ref" % NAME).read().split("\n")
    for l in hdr:
        if l.startswith("; @launch"):
            break
        a.raw(l)
    a.raw(f"; @launch grid=(256,1,1) block=(512,1,1) lds={LDS_BYTES}")
    a.raw('.amdgcn_target "amdgcn-amd-amdhsa--gfx950"')
    gen(a)
    out = sys.argv[1] if len(sys.argv) > 1 else OUT
    open(out, "w").write(a.text())

if __name__ == "__main__":
    main()
```

```python
import sys, math, struct, os, re

NAME = "sequential_preLN__gqa_block_cached__mixer_token_mlp__decode"
KNAME = NAME + "_kernel"
OUT = "cdna_kernels/%s.s" % NAME

def f2u(x):
    return struct.unpack("<I", struct.pack("<f", x))[0]

class Asm:
    def __init__(self):
        self.lines = []
    def __call__(self, s):
        for l in s.strip("\n").split("\n"):
            l = l.strip()
            m = re.search(r"offset:(\d+)", l)
            if m and l.startswith("buffer_"):
                assert int(m.group(1)) < 4096, l
            if m and l.startswith("ds_"):
                assert int(m.group(1)) < 65536, l
            self.lines.append("    " + l)
    def label(self, l):
        self.lines.append(l + ":")
    def raw(self, s):
        self.lines.append(s)
    def text(self):
        return "\n".join(self.lines) + "\n"

WS_Q = 0
WS_OP = 0x20000
WS_ML = 0xA0000
WS_P2 = 0xB0000
WS_CNT = 0xE8000
WS_BYTES = 0x400000

LOG2E = 1.4426950408889634
SCALE_C = 0.0625 * LOG2E
NT = os.environ.get("NT", " nt")
NTV = os.environ.get("NTV", NT)

MB = 131072
L_WQ = MB
L_XN = MB + 14336
L_QL = MB + 21504
L_WO = MB
L_O = MB + 22528
L_H = MB + 26624
L_T = MB + 28672
L_F = MB + 31744
L_NEXT = MB + 31808
NSTAT = int(os.environ.get("NSTAT", "24"))
LOOK = int(os.environ.get("LOOK", "4"))
DEPTH = int(os.environ.get("DEPTH", "2"))
VX = int(os.environ.get("VX", "0"))
BULK = int(os.environ.get("BULK", "0"))
IPF = int(os.environ.get("IPF", "0"))
G1 = int(os.environ.get("G1", "1"))
GR = int(os.environ.get("GR", "1"))
LDS_BYTES = 163840

SPIN_MAX = 1 << 18

def srd(a, d, base, nbytes):
    a(f"s_mov_b32 s{d}, s{base}")
    a(f"s_and_b32 s{d+1}, s{base+1}, 0xffff")
    a(f"s_mov_b32 s{d+2}, {nbytes}")
    a(f"s_mov_b32 s{d+3}, 0x00020000")

def wave_reduce(a, op, v, t):
    for ctl in ["quad_perm:[1,0,3,2]", "quad_perm:[2,3,0,1]", "row_half_mirror", "row_mirror"]:
        a("s_nop 1")
        a(f"{op}_dpp v{v}, v{v}, v{v} {ctl} row_mask:0xf bank_mask:0xf")
    group_reduce(a, op, v, t)

def group_reduce(a, op, v, t):
    a(f"v_mov_b32 v{t}, v{v}")
    a("s_nop 1")
    a(f"v_permlane16_swap_b32 v{v}, v{t}")
    a("s_nop 1")
    a(f"{op} v{v}, v{v}, v{t}")
    a(f"v_mov_b32 v{t}, v{v}")
    a("s_nop 1")
    a(f"v_permlane32_swap_b32 v{v}, v{t}")
    a("s_nop 1")
    a(f"{op} v{v}, v{v}, v{t}")

def wave_reduce2(a, op, v, t, w, u):
    for ctl in ["quad_perm:[1,0,3,2]", "quad_perm:[2,3,0,1]", "row_half_mirror", "row_mirror"]:
        a("s_nop 0")
        a(f"{op}_dpp v{v}, v{v}, v{v} {ctl} row_mask:0xf bank_mask:0xf")
        a(f"{op}_dpp v{w}, v{w}, v{w} {ctl} row_mask:0xf bank_mask:0xf")
    for sw in ["v_permlane16_swap_b32", "v_permlane32_swap_b32"]:
        a(f"v_mov_b32 v{t}, v{v}")
        a(f"v_mov_b32 v{u}, v{w}")
        a("s_nop 1")
        a(f"{sw} v{v}, v{t}")
        a(f"{sw} v{w}, v{u}")
        a("s_nop 1")
        a(f"{op} v{v}, v{v}, v{t}")
        a(f"{op} v{w}, v{w}, v{u}")

def bf16r(a, v):
    a(f"v_cvt_pk_bf16_f32 v{v}, v{v}, v{v}")
    a(f"v_and_b32 v{v}, 0xffff0000, v{v}")

def bf16r2(a, v, w, t):
    a(f"v_cvt_pk_bf16_f32 v{t}, v{v}, v{w}")
    a(f"v_lshlrev_b32 v{v}, 16, v{t}")
    a(f"v_and_b32 v{w}, 0xffff0000, v{t}")

def unpack8(a, src, dst):
    for i in range(4):
        a(f"v_lshlrev_b32 v{dst+2*i}, 16, v{src+i}")
        a(f"v_and_b32 v{dst+2*i+1}, 0xffff0000, v{src+i}")

def layernorm8(a, x, t0, t1, t2, smask, t3=35):
    a(f"v_add_f32 v{t0}, v{x}, v{x+1}")
    a(f"v_add_f32 v{t1}, v{x+2}, v{x+3}")
    a(f"v_add_f32 v{t2}, v{x+4}, v{x+5}")
    a(f"v_add_f32 v{t3}, v{x+6}, v{x+7}")
    a(f"v_add_f32 v{t0}, v{t0}, v{t1}")
    a(f"v_add_f32 v{t2}, v{t2}, v{t3}")
    a(f"v_add_f32 v{t0}, v{t0}, v{t2}")
    wave_reduce(a, "v_add_f32", t0, t1)
    a(f"v_mul_f32 v{t0}, {hex(f2u(1.0/448))}, v{t0}")
    a(f"v_sub_f32 v{t2}, v{x}, v{t0}")
    a(f"v_sub_f32 v{t3}, v{x+1}, v{t0}")
    a(f"v_mul_f32 v{t1}, v{t2}, v{t2}")
    a(f"v_mul_f32 v{t3}, v{t3}, v{t3}")
    for i in range(2, 8, 2):
        a(f"v_sub_f32 v{t2}, v{x+i}, v{t0}")
        a(f"v_fmac_f32 v{t1}, v{t2}, v{t2}")
        a(f"v_sub_f32 v{t2}, v{x+i+1}, v{t0}")
        a(f"v_fmac_f32 v{t3}, v{t2}, v{t2}")
    a(f"v_add_f32 v{t1}, v{t1}, v{t3}")
    a(f"v_cndmask_b32 v{t1}, 0, v{t1}, s[{smask}:{smask+1}]")
    wave_reduce(a, "v_add_f32", t1, t2)
    a(f"v_mul_f32 v{t1}, {hex(f2u(1.0/448))}, v{t1}")
    bf16r(a, t1)
    a(f"v_add_f32 v{t1}, {hex(f2u(1e-5))}, v{t1}")
    bf16r(a, t1)
    a(f"v_sqrt_f32 v{t1}, v{t1}")
    bf16r(a, t0)
    bf16r(a, t1)
    a(f"v_rcp_f32 v{t1}, v{t1}")
    for i in range(0, 8, 2):
        a(f"v_sub_f32 v{x+i}, v{x+i}, v{t0}")
        a(f"v_sub_f32 v{x+i+1}, v{x+i+1}, v{t0}")
        bf16r2(a, x+i, x+i+1, t2)
    for i in range(0, 8, 2):
        a(f"v_mul_f32 v{x+i}, v{x+i}, v{t1}")
        a(f"v_mul_f32 v{x+i+1}, v{x+i+1}, v{t1}")
        bf16r2(a, x+i, x+i+1, t2)

def layernorm8x2(a, x, y, tx, ty, smask):
    t0, t1, t2 = tx; u0, u1, u2 = ty
    a(f"v_add_f32 v{t0}, v{x}, v{x+1}")
    a(f"v_add_f32 v{u0}, v{y}, v{y+1}")
    for i in range(2, 8):
        a(f"v_add_f32 v{t0}, v{t0}, v{x+i}")
        a(f"v_add_f32 v{u0}, v{u0}, v{y+i}")
    wave_reduce2(a, "v_add_f32", t0, t1, u0, u1)
    a(f"v_mul_f32 v{t0}, {hex(f2u(1.0/448))}, v{t0}")
    a(f"v_mul_f32 v{u0}, {hex(f2u(1.0/448))}, v{u0}")
    for i in range(8):
        a(f"v_sub_f32 v{t2}, v{x+i}, v{t0}")
        a(f"v_sub_f32 v{u2}, v{y+i}, v{u0}")
        if i == 0:
            a(f"v_mul_f32 v{t1}, v{t2}, v{t2}")
            a(f"v_mul_f32 v{u1}, v{u2}, v{u2}")
        else:
            a(f"v_fmac_f32 v{t1}, v{t2}, v{t2}")
            a(f"v_fmac_f32 v{u1}, v{u2}, v{u2}")
    a(f"v_cndmask_b32 v{t1}, 0, v{t1}, s[{smask}:{smask+1}]")
    a(f"v_cndmask_b32 v{u1}, 0, v{u1}, s[{smask}:{smask+1}]")
    wave_reduce2(a, "v_add_f32", t1, t2, u1, u2)
    a(f"v_mul_f32 v{t1}, {hex(f2u(1.0/448))}, v{t1}")
    a(f"v_mul_f32 v{u1}, {hex(f2u(1.0/448))}, v{u1}")
    bf16r2(a, t1, u1, t2)
    a(f"v_add_f32 v{t1}, {hex(f2u(1e-5))}, v{t1}")
    a(f"v_add_f32 v{u1}, {hex(f2u(1e-5))}, v{u1}")
    bf16r2(a, t1, u1, t2)
    a(f"v_sqrt_f32 v{t1}, v{t1}")
    a(f"v_sqrt_f32 v{u1}, v{u1}")
    a("s_nop 0")
    bf16r2(a, t1, u1, t2)
    a(f"v_rcp_f32 v{t1}, v{t1}")
    a(f"v_rcp_f32 v{u1}, v{u1}")
    bf16r2(a, t0, u0, t2)
    for (z, m, r_) in ((x, t0, t1), (y, u0, u1)):
        for i in range(0, 8, 2):
            a(f"v_sub_f32 v{z+i}, v{z+i}, v{m}")
            a(f"v_sub_f32 v{z+i+1}, v{z+i+1}, v{m}")
            bf16r2(a, z+i, z+i+1, t2)
            a(f"v_mul_f32 v{z+i}, v{z+i}, v{r_}")
            a(f"v_mul_f32 v{z+i+1}, v{z+i+1}, v{r_}")

def pack8(a, x, dst):
    for i in range(4):
        a(f"v_cvt_pk_bf16_f32 v{dst+i}, v{x+2*i}, v{x+2*i+1}")

def anysent(a, regs, t):
    regs = list(regs)
    a(f"v_max_u32 v{t}, v{regs[0]}, v{regs[1]}")
    i = 2
    while i < len(regs):
        if i + 1 < len(regs):
            a(f"v_max3_u32 v{t}, v{t}, v{regs[i]}, v{regs[i+1]}")
            i += 2
        else:
            a(f"v_max_u32 v{t}, v{t}, v{regs[i]}")
            i += 1

QF = 16; OA = 64; KF = 128; VF = 160; KOFF = 192; VOFF = 200; KRA = 208; VRA = 212
SA = 220; PB = 224; M = 226; L = 227; AL = 228; T0 = 229; T1 = 230; T2 = 231

STAMP = int(os.environ.get("STAMP", "0"))
PRE = int(os.environ.get("PRE", "2"))
LATE0 = int(os.environ.get("LATE0", "0"))
MAP = int(os.environ.get("MAP", "1"))
def stamp(a, idx, va=233, vb=234):
    if not STAMP: return
    a("s_memrealtime s[42:43]")
    a("s_waitcnt lgkmcnt(0)")
    a(f"v_mov_b32 v{va}, s42")
    a("s_lshl_b32 s42, s2, 7")
    a(f"s_add_u32 s42, s42, {0x200000 + idx*4}")
    a(f"v_mov_b32 v{vb}, 0")
    a("s_mov_b64 exec, 1")
    a(f"buffer_store_dword v{va}, v{vb}, s[52:55], s42 offen")
    a("s_mov_b64 exec, s[58:59]")

def gen(a):
    n = KNAME
    a.raw(".text")
    a.raw(f".globl {n}")
    a.raw(".p2align 8")
    a.raw(f".type {n},@function")
    a.label(n)
    a("s_cmp_ge_u32 s2, 256")
    a("s_cbranch_scc1 L_done")
    a("s_load_dwordx16 s[16:31], s[0:1], 0")
    a("s_load_dwordx8 s[32:39], s[0:1], 64")
    a("s_load_dwordx2 s[40:41], s[0:1], 96")
    a("v_lshrrev_b32 v1, 6, v0")
    a("v_and_b32 v2, 63, v0")
    a("v_and_b32 v3, 15, v2")
    a("v_readfirstlane_b32 s3, v1")
    a("v_lshrrev_b32 v4, 4, v2")
    if MAP == 0:
        a("s_and_b32 s4, s2, 7")
        a("s_lshr_b32 s5, s2, 3")
    else:
        a("s_lshr_b32 s4, s2, 5")
        a("s_and_b32 s5, s2, 31")
    a("s_lshr_b32 s96, s5, 2")
    a("s_and_b32 s97, s5, 3")
    a("s_lshl_b32 s98, s4, 5")
    a("s_add_u32 s98, s98, s5")
    a("v_cmp_gt_u32 s[56:57], 56, v2")
    a("s_mov_b64 s[58:59], exec")
    a("s_waitcnt lgkmcnt(0)")
    srd(a, 60, 16, 7168)
    srd(a, 64, 22, 448*4096*2)
    srd(a, 72, 38, 256)
    def rest_srds():
        srd(a, 44, 18, 0x10000000)
        srd(a, 48, 20, 0x10000000)
        srd(a, 52, 40, WS_BYTES)
        srd(a, 68, 24, 4096*448*2)
        srd(a, 76, 36, 7168)
        srd(a, 80, 28, 3584)
        srd(a, 84, 30, 3584)
        srd(a, 88, 32, 3584)
        srd(a, 92, 34, 4)
    a("s_and_b32 s38, s5, 7")
    a("s_lshl_b32 s38, s38, 2")
    a("s_lshr_b32 s39, s5, 3")
    a("s_add_u32 s38, s38, s39")
    a("s_lshl_b32 s39, s4, 5")
    a("s_add_u32 s39, s39, s38")
    def ldsspin(word, target, lab):
        a(f"v_mov_b32 v5, {L_F + word*4}")
        a.label(lab)
        a("ds_read_b32 v6, v5")
        a("s_waitcnt lgkmcnt(0)")
        a("v_readfirstlane_b32 s6, v6")
        a(f"s_cmp_ge_u32 s6, {target}")
        a(f"s_cbranch_scc1 {lab}_d")
        a("s_sleep 1")
        a(f"s_branch {lab}")
        a.label(lab + "_d")

    a("s_cmp_lt_u32 s3, 4")
    a("s_cbranch_scc1 L_stream")
    a.label("L_helpers")
    a("s_memrealtime s[16:17]")
    a("v_lshlrev_b32 v5, 4, v2")
    a("v_mov_b32 v6, 0x7fff0000")
    a("v_cndmask_b32 v5, v6, v5, s[56:57]")
    a("s_sub_u32 s6, s3, 4")
    a("s_mul_i32 s15, s6, 1792")
    a("buffer_load_dwordx4 v[8:11], v5, s[60:63], s15 offen")
    a("buffer_load_dwordx4 v[12:15], v5, s[60:63], s15 offen offset:896")
    a("s_cmp_lg_u32 s3, 4")
    a("s_cbranch_scc1 L_h_nowq")
    a("v_lshrrev_b32 v5, 1, v2")
    a("v_lshlrev_b32 v5, 13, v5")
    a("v_and_b32 v6, 1, v2")
    a("v_lshl_add_u32 v5, v6, 4, v5")
    a("s_lshl_b32 s6, s39, 5")
    a(f"s_mov_b32 s7, {L_WQ}")
    for p in range(14):
        a("s_mov_b32 m0, s7")
        a("s_add_u32 s7, s7, 1024")
        a("buffer_load_dwordx4 v5, s[64:67], s6 offen lds")
        a("s_add_u32 s6, s6, 0x40000")
    a.label("L_h_nowq")
    rest_srds()
    a("s_cmp_ge_u32 s38, 14")
    a("s_cselect_b32 s99, 1, 0")
    a("s_mul_i32 s6, s99, 14")
    a("s_sub_u32 s100, s38, s6")
    a("s_lshl_b32 s101, s4, 1")
    a("s_add_u32 s101, s101, s99")
    a("s_cmp_lg_u32 s3, 4")
    a("s_cbranch_scc1 L_h_not4")
    a(f"v_mov_b32 v5, {L_F}")
    for i in range(4):
        a(f"v_mov_b32 v{16+i}, 0")
    a("ds_write_b128 v5, v[16:19]")
    a(f"s_mul_i32 s6, s97, {NSTAT}")
    a("v_add_u32 v16, s6, v2")
    a(f"v_cmp_gt_u32 vcc, {NSTAT}, v2")
    a("v_lshlrev_b32 v5, 2, v2")
    a(f"v_add_u32 v5, {L_NEXT}, v5")
    a("v_cndmask_b32 v16, -1, v16, vcc")
    if VX: a("v_add_u32 v16, s6, v2")
    if VX: a("v_max_u32 v16, v16, v16")
    if VX: a(f"v_mov_b32 v17, 0x1000")
    if VX: a("v_cndmask_b32 v16, v17, v16, vcc")
    a("v_mov_b32 v17, -1")
    a("ds_write_b32 v5, v16")
    a("ds_write_b32 v5, v17 offset:256")
    a("s_branch L_h_bar0")
    a.label("L_h_not4")
    a("s_cmp_lg_u32 s3, 6")
    a("s_cbranch_scc1 L_h_bar0")
    a("s_cmp_lg_u32 s97, 0")
    a("s_cbranch_scc1 L_nocinit")
    a("s_lshl_b32 s6, s4, 3")
    a("s_add_u32 s6, s6, s96")
    a("s_lshl_b32 s6, s6, 8")
    a(f"s_add_u32 s6, s6, {WS_CNT}")
    a("s_waitcnt lgkmcnt(0)")
    a("s_lshr_b64 s[18:19], s[16:17], 2")
    a("s_and_b32 s7, s18, 0xffffff00")
    a("v_mov_b32 v16, s7")
    a("v_mov_b32 v17, 0")
    a("s_mov_b64 exec, 1")
    a("buffer_store_dword v16, v17, s[52:55], s6 offen sc1")
    a("s_mov_b64 exec, s[58:59]")
    a.label("L_nocinit")
    a.label("L_h_bar0")
    a("s_waitcnt lgkmcnt(0)")
    if not LATE0: a("s_barrier")
    a("s_lshr_b64 s[16:17], s[16:17], 10")
    a("s_cmp_eq_u32 s3, 4")
    a("s_cbranch_scc1 L_h_w14")
    a("s_cmp_eq_u32 s3, 6")
    a("s_cbranch_scc1 L_h_w3")
    a("s_waitcnt vmcnt(0)")
    a("s_branch L_h_ln")
    a.label("L_h_w14")
    a(f"s_waitcnt vmcnt({0 if LATE0 else 14})")
    a("s_branch L_h_ln")
    a.label("L_h_w3")
    a("s_waitcnt vmcnt(1)")
    a("s_cmp_eq_u32 s97, 0")
    a("s_cbranch_scc1 L_h_ln")
    a("s_waitcnt vmcnt(0)")
    a.label("L_h_ln")
    if LATE0: a("s_barrier")
    unpack8(a, 8, 16)
    unpack8(a, 12, 24)
    layernorm8x2(a, 16, 24, (32, 33, 34), (35, 36, 37), 56)
    pack8(a, 16, 8)
    pack8(a, 24, 12)
    a("v_lshlrev_b32 v5, 4, v2")
    a(f"s_add_u32 s6, s15, {L_XN}")
    a("v_add_u32 v5, s6, v5")
    a("s_mov_b64 exec, s[56:57]")
    a("ds_write_b128 v5, v[8:11]")
    a("ds_write_b128 v5, v[12:15] offset:896")
    a("s_mov_b64 exec, 1")
    a(f"v_mov_b32 v5, {L_F}")
    a("v_mov_b32 v6, 1")
    a("s_waitcnt lgkmcnt(0)")
    a("ds_add_u32 v5, v6")
    a("s_mov_b64 exec, s[58:59]")
    a("s_lshl_b32 s7, s4, 5")
    a("v_mov_b32 v9, s7")
    a("v_mov_b32 v8, 1")
    a("s_cmp_eq_u32 s3, 4")
    a("s_cbranch_scc1 L_service")
    a("s_cmp_eq_u32 s3, 5")
    a("s_cbranch_scc1 L_w5")
    if IPF:
        a("s_cmp_lg_u32 s3, 7")
        a("s_cbranch_scc1 L_not7")
        assert IPF < NSTAT
        a(f"v_mov_b32 v5, {L_F+12}")
        a("s_mov_b32 s13, 0")
        a.label("L_w7s")
        a("s_sleep 32")
        a("ds_read_b32 v6, v5")
        a("s_add_u32 s13, s13, 1")
        a("s_waitcnt lgkmcnt(0)")
        a("v_readfirstlane_b32 s6, v6")
        a("s_cmp_ge_u32 s13, 0x10000")
        a("s_cbranch_scc1 L_w7s_d")
        a(f"s_cmp_lt_u32 s6, {IPF}")
        a("s_cbranch_scc1 L_w7s")
        a.label("L_w7s_d")
        a("s_getpc_b64 s[36:37]")
        a.label("L_pc0")
        a("s_add_u32 s36, s36, L_loop_done-L_pc0")
        a("s_addc_u32 s37, s37, -1")
        a("s_mov_b32 s6, 0")
        a.label("L_pf1")
        a("s_load_dwordx16 s[20:35], s[36:37], s6")
        a("s_add_u32 s6, s6, 64")
        a("s_cmp_lt_u32 s6, L_helpers-L_loop_done")
        a("s_cbranch_scc1 L_pf1")
        a("s_waitcnt lgkmcnt(0)")
        a("s_getpc_b64 s[36:37]")
        a.label("L_pc1")
        a("s_add_u32 s36, s36, L_tail-L_pc1")
        a("s_addc_u32 s37, s37, 0")
        a("s_mov_b32 s6, 0")
        a.label("L_pf2")
        a("s_load_dwordx16 s[20:35], s[36:37], s6")
        a("s_add_u32 s6, s6, 64")
        a("s_cmp_lt_u32 s6, L_done-L_tail")
        a("s_cbranch_scc1 L_pf2")
        a("s_waitcnt lgkmcnt(0)")
        a("s_branch L_h_bar3")
        a.label("L_not7")
    a("s_cmp_lg_u32 s3, 6")
    a("s_cbranch_scc1 L_h_bar3")
    if VX == 4: a("s_branch L_h_bar3")
    for i in range(4):
        a(f"v_mov_b32 v{16+i}, -1")
    a("v_lshlrev_b32 v6, 4, v2")
    a("s_lshl_b32 s6, s98, 11")
    a(f"s_add_u32 s6, s6, {WS_OP}")
    a("buffer_store_dwordx4 v[16:19], v6, s[52:55], s6 offen sc1")
    a("buffer_store_dwordx4 v[16:19], v6, s[52:55], s6 offen offset:1024 sc1")
    a("s_lshl_b32 s6, s98, 8")
    a(f"s_add_u32 s6, s6, {WS_ML}")
    a("s_mov_b64 exec, 0xffff")
    a("buffer_store_dwordx4 v[16:19], v6, s[52:55], s6 offen sc1")
    a("s_mov_b64 exec, s[58:59]")
    a("s_cmp_ge_u32 s38, 28")
    a("s_cbranch_scc1 L_clr_done")
    a("s_lshl_b32 s6, s4, 1")
    a("s_mul_i32 s6, s6, 14")
    a("s_add_u32 s6, s6, s38")
    a("s_lshl_b32 s6, s6, 10")
    a(f"s_add_u32 s6, s6, {WS_P2}")
    a("buffer_store_dwordx4 v[16:19], v6, s[52:55], s6 offen sc1")
    a.label("L_clr_done")
    a("s_mov_b64 exec, 1")
    a("s_waitcnt vmcnt(0)")
    a("buffer_atomic_add v8, v9, s[72:75], 0 offen sc1")
    a("s_mov_b64 exec, s[58:59]")
    a("s_branch L_h_bar3")
    a.label("L_w5")
    a(f"v_mov_b32 v5, {L_F+12}")
    a("s_mov_b32 s13, 0")
    a.label("L_w5s")
    a("s_sleep 32")
    a("ds_read_b32 v6, v5")
    a("s_add_u32 s13, s13, 1")
    a("s_waitcnt lgkmcnt(0)")
    a("v_readfirstlane_b32 s6, v6")
    a("s_cmp_ge_u32 s13, 0x10000")
    a("s_cbranch_scc1 L_w5s_d")
    a(f"s_cmp_lt_u32 s6, {min(20, NSTAT-2)}")
    a("s_cbranch_scc1 L_w5s")
    a.label("L_w5s_d")
    a("v_lshlrev_b32 v9, 5, v2")
    a("v_cmp_gt_u32 vcc, 8, v2")
    a("s_mov_b32 s13, 0")
    a("s_and_b64 exec, exec, vcc")
    a.label("L_pollall")
    a("buffer_load_dword v10, v9, s[72:75], 0 offen sc1")
    a("s_add_u32 s13, s13, 1")
    a("s_waitcnt vmcnt(0)")
    a("v_cmp_gt_u32 vcc, 64, v10")
    a(f"s_cmp_ge_u32 s13, {SPIN_MAX}")
    a("s_cbranch_scc1 L_pollall_done")
    a("s_cbranch_vccz L_pollall_done")
    a("s_sleep 64")
    a("s_branch L_pollall")
    a.label("L_pollall_done")
    a("s_mov_b64 exec, s[58:59]")
    stamp(a, 12, 236, 237)
    a.label("L_h_bar3")
    a("s_barrier")
    a("s_branch L_tail")

    a.label("L_service")
    a("v_bfe_u32 v6, v2, 2, 2")
    a("v_lshl_add_u32 v6, v4, 3, v6")
    a("v_lshlrev_b32 v6, 5, v6")
    a("v_and_b32 v7, 3, v2")
    a("v_lshl_add_u32 v6, v7, 3, v6")
    a(f"v_add_u32 v10, {L_WQ}, v6")
    a("v_and_b32 v7, 7, v2")
    a("v_mul_u32_u24 v7, 896, v7")
    a("v_lshl_add_u32 v7, v4, 4, v7")
    a(f"v_add_u32 v7, {L_XN}, v7")
    a("s_waitcnt vmcnt(0)")
    stamp(a, 1, 236, 237)
    for j in range(14):
        a(f"ds_read_b64_tr_b16 v[{40+4*j}:{41+4*j}], v10 offset:{j*1024}")
        a(f"ds_read_b64_tr_b16 v[{42+4*j}:{43+4*j}], v10 offset:{j*1024+128}")
    ldsspin(0, 4, "L_spin0")
    stamp(a, 2, 236, 237)
    for j in range(14):
        a(f"ds_read_b128 v[{100+4*j}:{103+4*j}], v7 offset:{j*64}")
    for j in range(14):
        a(f"s_waitcnt lgkmcnt({13-j})")
        c = "0" if j == 0 else "v[32:35]"
        a(f"v_mfma_f32_16x16x32_bf16 v[32:35], v[{40+4*j}:{43+4*j}], v[{100+4*j}:{103+4*j}], {c}")
    a("v_cmp_gt_u32 vcc, 8, v3")
    a("v_lshlrev_b32 v5, 6, v3")
    a("v_lshl_add_u32 v5, v4, 4, v5")
    a("s_lshl_b32 s6, s39, 9")
    a("v_mov_b32 v37, s16")
    a("v_mov_b32 v39, s16")
    a(f"v_mov_b32 v6, {L_F+4}")
    a("s_sub_u32 s17, s16, 2")
    a("s_nop 1")
    a("v_cvt_pk_bf16_f32 v36, v32, v33")
    a("v_cvt_pk_bf16_f32 v38, v34, v35")
    a("s_and_b64 exec, exec, vcc")
    a(f"buffer_store_dwordx4 v[36:39], v5, s[52:55], s6 offen offset:{WS_Q} sc1")
    a("s_mov_b64 exec, 1")
    a("ds_write_b32 v6, v8")
    a("s_mov_b64 exec, s[58:59]")
    stamp(a, 3, 236, 237)
    a("v_lshrrev_b32 v5, 1, v2")
    a("v_lshlrev_b32 v5, 9, v5")
    a("v_and_b32 v6, 1, v2")
    a("v_lshl_add_u32 v5, v6, 5, v5")
    a("s_lshl_b32 s6, s96, 6")
    a("s_lshl_b32 s7, s4, 14")
    a("s_add_u32 s15, s6, s7")
    a("s_mov_b32 s13, 0")
    def qld(base):
        a(f"buffer_load_dwordx4 v[{base}:{base+3}], v5, s[52:55], s15 offen offset:{WS_Q} sc1")
        a(f"buffer_load_dwordx4 v[{base+4}:{base+7}], v5, s[52:55], s15 offen offset:{WS_Q+16} sc1")
    def qchk(base):
        a(f"v_subrev_u32 v20, s17, v{base+1}")
        a(f"v_subrev_u32 v21, s17, v{base+3}")
        a(f"v_subrev_u32 v22, s17, v{base+5}")
        a(f"v_subrev_u32 v23, s17, v{base+7}")
        a("v_max_u32 v20, v20, v21")
        a("v_max3_u32 v20, v20, v22, v23")
        a("v_cmp_lt_u32 vcc, 4, v20")
    qld(12)
    a.label("L_pq2")
    qld(24)
    a("s_waitcnt vmcnt(2)")
    qchk(12)
    a("s_cbranch_vccz L_pollq_done")
    qld(12)
    a("s_waitcnt vmcnt(2)")
    qchk(24)
    a("s_cbranch_vccz L_pq_useB")
    a("s_add_u32 s13, s13, 2")
    a("s_cmp_lt_u32 s13, 2047")
    a("s_cbranch_scc1 L_pq2")
    a("s_mov_b32 s13, 2047")
    a("s_branch L_pollq")
    a.label("L_pq_useB")
    a("v_mov_b32 v32, v24")
    a("v_mov_b32 v33, v26")
    a("v_mov_b32 v34, v28")
    a("v_mov_b32 v35, v30")
    a("s_branch L_pollq_wr")
    a.label("L_pollq")
    qld(12)
    a("s_waitcnt vmcnt(0)")
    a("s_cmp_lg_u32 s13, 2047")
    a("s_cbranch_scc1 L_pq_noat")
    a("s_mov_b64 exec, 1")
    a("buffer_atomic_add v8, v9, s[72:75], 0 offen sc1")
    a("s_mov_b64 exec, s[58:59]")
    a.label("L_pq_noat")
    a("s_add_u32 s13, s13, 1")
    qchk(12)
    a("s_cbranch_vccz L_pollq_done")
    a("buffer_load_dword v10, v9, s[72:75], 0 offen sc1")
    a("s_waitcnt vmcnt(0)")
    a("v_readfirstlane_b32 s6, v10")
    a(f"s_cmp_ge_u32 s13, {SPIN_MAX}")
    a("s_cbranch_scc1 L_pollq_done")
    a("s_cmp_ge_u32 s6, 64")
    a("s_cbranch_scc0 L_pollq")
    qld(12)
    a("s_waitcnt vmcnt(0)")
    a.label("L_pollq_done")
    a("v_mov_b32 v32, v12")
    a("v_mov_b32 v33, v14")
    a("v_mov_b32 v34, v16")
    a("v_mov_b32 v35, v18")
    a.label("L_pollq_wr")
    stamp(a, 4, 236, 237)
    a("v_lshlrev_b32 v5, 4, v2")
    a(f"v_add_u32 v5, {L_QL}, v5")
    a(f"v_mov_b32 v6, {L_F+8}")
    a("ds_write_b128 v5, v[32:35]")
    a("s_waitcnt lgkmcnt(0)")
    a("s_mov_b64 exec, 1")
    a("ds_write_b32 v6, v8")
    a("s_cmp_ge_u32 s13, 2048")
    a("s_cbranch_scc1 L_pq_noat2")
    a("buffer_atomic_add v8, v9, s[72:75], 0 offen sc1")
    a.label("L_pq_noat2")
    a("s_mov_b64 exec, s[58:59]")
    a("s_waitcnt vmcnt(1)")
    stamp(a, 5, 236, 237)
    a("s_cmp_ge_u32 s38, 28")
    a("s_cbranch_scc1 L_nowo")
    a("v_lshrrev_b32 v5, 2, v2")
    a("v_mul_u32_u24 v5, 896, v5")
    a("v_and_b32 v6, 3, v2")
    a("v_lshl_add_u32 v5, v6, 4, v5")
    a("s_mul_i32 s6, s101, 229376")
    a("s_lshl_b32 s7, s100, 6")
    a("s_add_u32 s6, s6, s7")
    a(f"s_mov_b32 s7, {L_WO}")
    for p in range(16):
        a("s_mov_b32 m0, s7")
        a("s_add_u32 s7, s7, 1024")
        a("buffer_load_dwordx4 v5, s[68:71], s6 offen lds")
        a("s_add_u32 s6, s6, 14336")
    a.label("L_nowo")
    if VX: a("s_branch L_skipdyn")
    a("s_lshl_b32 s6, s4, 3")
    a("s_add_u32 s6, s6, s96")
    a("s_lshl_b32 s6, s6, 8")
    a(f"s_add_u32 s25, s6, {WS_CNT}")
    a("v_mov_b32 v14, 0")
    a("s_mov_b32 s13, 0")
    a.label("L_pcnt")
    a("buffer_load_dword v10, v14, s[52:55], s25 offen sc1")
    a("s_add_u32 s13, s13, 1")
    a("s_waitcnt vmcnt(0)")
    a("v_readfirstlane_b32 s6, v10")
    a("s_lshr_b32 s6, s6, 8")
    a("s_sub_u32 s6, s6, s17")
    a("s_and_b32 s6, s6, 0xffffff")
    a("s_cmp_le_u32 s6, 4")
    a("s_cbranch_scc1 L_pcnt_done")
    a("s_sleep 16")
    a("s_cmp_lt_u32 s13, 1024")
    a("s_cbranch_scc1 L_pcnt")
    a("buffer_load_dword v10, v9, s[72:75], 0 offen sc1")
    a("s_waitcnt vmcnt(0)")
    a("v_readfirstlane_b32 s6, v10")
    a(f"s_cmp_ge_u32 s13, {SPIN_MAX}")
    a("s_cbranch_scc1 L_pcnt_done")
    a("s_cmp_ge_u32 s6, 64")
    a("s_cbranch_scc0 L_pcnt")
    a.label("L_pcnt_done")
    a("s_mov_b32 s22, 1")
    a(f"s_mov_b32 s23, {NSTAT}")
    a(f"s_mov_b32 s24, {NSTAT}")
    a(f"v_mov_b32 v11, {L_F+12}")
    a("v_mov_b32 v10, s22")
    a("s_waitcnt vmcnt(0)")
    a.label("L_dyn")
    a("ds_read_b32 v6, v11")
    a("s_waitcnt lgkmcnt(0)")
    a("v_readfirstlane_b32 s6, v6")
    a(f"s_add_u32 s6, s6, {LOOK}")
    a("s_cmp_ge_u32 s6, s23")
    a("s_cbranch_scc1 L_dyn_go")
    a("s_sleep 4")
    a("s_branch L_dyn")
    a.label("L_dyn_go")
    if STAMP:
        a(f"s_cmp_lg_u32 s23, {NSTAT}")
        a("s_cbranch_scc1 L_sq1")
        a("s_memrealtime s[26:27]")
        a("s_waitcnt lgkmcnt(0)")
        a.label("L_sq1")
    a(f"s_sub_u32 s6, s23, {NSTAT}")
    a("s_lshl_b64 exec, 1, s6")
    a("buffer_atomic_add v10, v14, s[52:55], s25 offen sc0 sc1")
    a("s_mov_b64 exec, s[58:59]")
    a("s_add_u32 s23, s23, 1")
    a("s_sub_u32 s6, s23, s24")
    a(f"s_cmp_le_u32 s6, {DEPTH}")
    a("s_cbranch_scc1 L_dyn")
    a(f"s_waitcnt vmcnt({DEPTH})")
    if STAMP:
        a(f"s_cmp_lg_u32 s24, {NSTAT}")
        a("s_cbranch_scc1 L_sq2")
        a("s_memrealtime s[28:29]")
        a("s_waitcnt lgkmcnt(0)")
        a.label("L_sq2")
    a(f"s_sub_u32 s6, s24, {NSTAT}")
    a("v_readlane_b32 s6, v10, s6")
    a("s_and_b32 s6, s6, 0xff")
    a(f"s_add_u32 s7, s6, {4*NSTAT}")
    a(f"s_cmp_lt_u32 s6, {128-4*NSTAT}")
    a("s_cselect_b32 s7, s7, 0x1000")
    a("s_lshl_b32 s6, s24, 2")
    a(f"s_add_u32 s6, s6, {L_NEXT}")
    a("v_mov_b32 v12, s6")
    a("v_mov_b32 v13, s7")
    a("ds_write_b32 v12, v13")
    a("s_add_u32 s24, s24, 1")
    a("s_cmp_lt_u32 s7, 128")
    a("s_cbranch_scc1 L_dyn")
    a("v_add_u32 v12, 4, v12")
    a("ds_write_b32 v12, v13")
    a("s_waitcnt vmcnt(0) lgkmcnt(0)")
    if STAMP:
        stamp(a, 16, 236, 237)
        for (sr, idx) in ((26, 14), (28, 15)):
            a(f"v_mov_b32 v236, s{sr}")
            a("s_lshl_b32 s42, s2, 7")
            a(f"s_add_u32 s42, s42, {0x200000 + idx*4}")
            a("v_mov_b32 v237, 0")
            a("s_mov_b64 exec, 1")
            a("buffer_store_dword v236, v237, s[52:55], s42 offen")
            a("s_mov_b64 exec, s[58:59]")
    a.label("L_skipdyn")
    a("s_waitcnt vmcnt(0)")
    a("s_barrier")
    stamp(a, 7, 236, 237)

    a("s_branch L_tail")

    a.label("L_stream")
    rest_srds()
    if STAMP:
        a("s_cmp_lg_u32 s3, 0")
        a("s_cbranch_scc1 L_st0")
        stamp(a, 0)
        a.label("L_st0")
    a("v_lshrrev_b32 v7, 5, v2")
    a("v_and_b32 v8, 31, v2")
    for p in range(8):
        a(f"v_add_u32 v5, {2*p}, v7")
        a("v_xor_b32 v6, v8, v5")
        a("v_lshlrev_b32 v6, 4, v6")
        a(f"v_lshl_add_u32 v{KOFF+p}, v7, 9, v6")
        a(f"v_add_u32 v{KOFF+p}, {(p//GR)*GR*4096+(p%GR)*1024-(p&3)*1024}, v{KOFF+p}")
        a("v_and_b32 v5, 7, v5")
        a("v_lshlrev_b32 v5, 1, v5")
        a("v_xor_b32 v6, v8, v5")
        a("v_lshlrev_b32 v6, 4, v6")
        a(f"v_lshl_add_u32 v{VOFF+p}, v7, 9, v6")
        a(f"v_add_u32 v{VOFF+p}, {(p//GR)*GR*4096+(p%GR)*1024-(p&3)*1024}, v{VOFF+p}")
    a("s_lshl_b32 s8, s3, 15")
    a("s_lshl_b32 s20, s96, 3")
    a("s_add_u32 s20, s20, s4")
    a("s_lshl_b32 s20, s20, 22")
    a(f"s_mul_i32 s6, s3, {1024*GR}")
    a("s_add_u32 s20, s20, s6")
    a(f"s_mul_i32 s6, s97, {NSTAT*32768}")
    a("s_add_u32 s9, s20, s6")

    def issue(kind, slot):
        srd_ = "s[44:47]" if kind == "K" else "s[48:51]"
        so = "s9"
        off = KOFF if kind == "K" else VOFF
        ntk = NT if kind == "K" else NTV
        a(f"s_add_u32 s11, s8, {slot*8192}")
        a("s_mov_b32 m0, s11")
        a(f"s_add_u32 s12, s8, {slot*8192+4096}")
        for p in range(4):
            a(f"buffer_load_dwordx4 v{off+p}, {srd_}, {so} offen offset:{p*1024}{ntk} lds")
        a("s_mov_b32 m0, s12")
        a("s_nop 0")
        for p in range(4):
            a(f"buffer_load_dwordx4 v{off+4+p}, {srd_}, {so} offen offset:{p*1024}{ntk} lds")

    units = [("K", 0), ("V", 1), ("K", 2), ("V", 3)]
    a("s_barrier")
    assert PRE == 2
    for u in units[:2]: issue(*u)
    a("s_add_u32 s9, s9, 32768")
    for jj in range(4):
        a(f"v_add_u32 v5, {4*jj}, v4")
        a("v_xor_b32 v5, v5, v3")
        a("v_lshlrev_b32 v5, 4, v5")
        a(f"v_lshl_add_u32 v5, v3, 9, v5")
        a(f"v_add_u32 v{KRA+jj}, s8, v5")
    a("v_bfe_u32 v5, v2, 2, 2")
    a("v_lshl_add_u32 v5, v4, 2, v5")
    a("v_and_b32 v6, 7, v5")
    a("v_and_b32 v7, 3, v2")
    a("v_lshlrev_b32 v7, 3, v7")
    a("v_lshl_add_u32 v7, v5, 9, v7")
    a("v_add_u32 v7, s8, v7")
    for nn in range(8):
        a(f"v_xor_b32 v5, {nn}, v6")
        a(f"v_lshl_add_u32 v{VRA+nn}, v5, 5, v7")
    for i in range(64):
        a(f"v_mov_b32 v{OA+i}, 0")
    a(f"v_mov_b32 v{M}, 0xf149f2ca")
    a(f"v_mov_b32 v{L}, 0")
    a(f"s_mov_b32 s14, {hex(f2u(SCALE_C))}")
    if PRE < 4:
        ldsspin(G1, 1, "L_spin1")
        for u in units[PRE:]: issue(*u)
    ldsspin(2, 1, "L_spin2")
    a("v_and_b32 v5, 1, v2")
    a("v_lshlrev_b32 v5, 9, v5")
    a("v_lshl_add_u32 v5, v4, 4, v5")
    a(f"v_add_u32 v5, {L_QL}, v5")
    for j in range(8):
        a(f"ds_read_b128 v[{QF+4*j}:{QF+4*j+3}], v5 offset:{j*64}")
    a("s_waitcnt lgkmcnt(0)")
    a(f"v_mov_b32 v235, {L_NEXT+8}")
    a(f"v_mov_b32 v238, {L_F+12}")

    def step(kslot, vslot, do_issue, wk, wv, tag):
        a("s_cmp_eq_u32 s15, 1000")
        a(f"s_cbranch_scc1 L_wk_{tag}")
        a("s_waitcnt vmcnt(0)")
        a.label(f"L_wk_{tag}")
        a(f"s_waitcnt vmcnt({wk})")
        a("v_mov_b32 v237, s13")
        a("ds_read_b32 v236, v235")
        if VX != 2: a("ds_write_b32 v238, v237")
        for j in range(8):
            a(f"ds_read_b128 v[{KF+4*j}:{KF+4*j+3}], v{KRA+(j&3)} offset:{kslot*8192 + (j>>2)*256}")
        for j in range(8):
            a(f"s_waitcnt lgkmcnt({7-j})")
            c = "0" if j == 0 else f"v[{SA}:{SA+3}]"
            a(f"v_mfma_f32_16x16x32_bf16 v[{SA}:{SA+3}], v[{KF+4*j}:{KF+4*j+3}], v[{QF+4*j}:{QF+4*j+3}], {c}")
        a("v_readfirstlane_b32 s6, v236")
        a("s_cmp_lg_u32 s6, -1")
        a(f"s_cbranch_scc1 L_nx_{tag}")
        a.label(f"L_nxs_{tag}")
        a("s_sleep 1")
        a("ds_read_b32 v236, v235")
        a("s_waitcnt lgkmcnt(0)")
        a("v_readfirstlane_b32 s6, v236")
        a("s_cmp_eq_u32 s6, -1")
        a(f"s_cbranch_scc1 L_nxs_{tag}")
        a.label(f"L_nx_{tag}")
        a("v_add_u32 v235, 4, v235")
        a("s_lshl_b32 s7, s6, 15")
        a("s_add_u32 s9, s20, s7")
        a("s_add_u32 s7, s13, 2")
        a("s_min_u32 s7, s7, s15")
        a("s_cmp_ge_u32 s6, 128")
        a("s_cselect_b32 s15, s7, s15")
        a(f"s_cbranch_scc1 L_noik_{tag}")
        issue("K", kslot)
        a.label(f"L_noik_{tag}")
        a("s_nop 3")
        a(f"v_cvt_pk_bf16_f32 v{T0}, v{SA}, v{SA+1}")
        a(f"v_cvt_pk_bf16_f32 v{T1}, v{SA+2}, v{SA+3}")
        a(f"v_lshlrev_b32 v{SA}, 16, v{T0}")
        a(f"v_and_b32 v{SA+1}, 0xffff0000, v{T0}")
        a(f"v_lshlrev_b32 v{SA+2}, 16, v{T1}")
        a(f"v_and_b32 v{SA+3}, 0xffff0000, v{T1}")
        a(f"v_max3_f32 v{T0}, v{SA}, v{SA+1}, v{SA+2}")
        a(f"v_max_f32 v{T0}, v{T0}, v{SA+3}")
        group_reduce(a, "v_max_f32", T0, T1)
        a(f"v_mul_f32 v{T0}, s14, v{T0}")
        a(f"v_max_f32 v{T0}, v{T0}, v{M}")
        a(f"v_sub_f32 v{AL}, v{M}, v{T0}")
        a(f"v_exp_f32 v{AL}, v{AL}")
        a(f"v_mov_b32 v{M}, v{T0}")
        for r in range(4):
            a(f"v_fma_f32 v{SA+r}, v{SA+r}, s14, -v{T0}")
        for r in range(4):
            a(f"v_exp_f32 v{SA+r}, v{SA+r}")
        a(f"v_cmp_neq_f32 vcc, 1.0, v{AL}")
        a(f"v_cvt_pk_bf16_f32 v{PB}, v{SA}, v{SA+1}")
        a(f"v_cvt_pk_bf16_f32 v{PB+1}, v{SA+2}, v{SA+3}")
        a(f"v_add_f32 v{T1}, v{SA}, v{SA+1}")
        a(f"v_add_f32 v{T2}, v{SA+2}, v{SA+3}")
        a(f"v_add_f32 v{T1}, v{T1}, v{T2}")
        a(f"v_fma_f32 v{L}, v{L}, v{AL}, v{T1}")
        a(f"s_cbranch_vccz L_nors_{tag}")
        for i in range(64):
            a(f"v_mul_f32 v{OA+i}, v{OA+i}, v{AL}")
        a.label(f"L_nors_{tag}")
        a("s_cmp_eq_u32 s15, 1000")
        a(f"s_cbranch_scc1 L_wv_{tag}")
        a("s_waitcnt vmcnt(0)")
        a.label(f"L_wv_{tag}")
        a(f"s_waitcnt vmcnt({wv})")
        for nn in range(16):
            a(f"ds_read_b64_tr_b16 v[{VF+2*nn}:{VF+2*nn+1}], v{VRA+(nn&7)} offset:{vslot*8192 + (nn>>3)*256}")
        for nn in range(16):
            a(f"s_waitcnt lgkmcnt({15-nn})")
            a(f"v_mfma_f32_16x16x16_bf16 v[{OA+4*nn}:{OA+4*nn+3}], v[{VF+2*nn}:{VF+2*nn+1}], v[{PB}:{PB+1}], v[{OA+4*nn}:{OA+4*nn+3}]")
        a("s_cmp_lg_u32 s15, 1000")
        a(f"s_cbranch_scc1 L_noiv_{tag}")
        issue("V", vslot)
        a.label(f"L_noiv_{tag}")

    a("s_mov_b32 s13, 0")
    a("s_mov_b32 s15, 1000")
    a.label("L_loop")
    step(0, 1, True, 24, 24, "a")
    a("s_add_u32 s13, s13, 1")
    a("s_cmp_ge_u32 s13, s15")
    a("s_cbranch_scc1 L_loop_done")
    step(2, 3, True, 24, 24, "b")
    a("s_add_u32 s13, s13, 1")
    a("s_cmp_lt_u32 s13, s15")
    a("s_cbranch_scc1 L_loop")
    a.label("L_loop_done")
    a("s_waitcnt vmcnt(0)")
    if STAMP:
        a("s_cmp_lg_u32 s3, 0")
        a("s_cbranch_scc1 L_st6")
        stamp(a, 6)
        a.label("L_st6")
    group_reduce(a, "v_add_f32", L, T1)
    a("s_nop 7")
    a("v_cmp_gt_u32 vcc, 2, v3")
    a("v_lshlrev_b32 v5, 10, v3")
    a("v_lshl_add_u32 v5, v4, 4, v5")
    a("v_add_u32 v5, s8, v5")
    a("s_and_b64 exec, exec, vcc")
    for nn in range(16):
        a(f"ds_write_b128 v5, v[{OA+4*nn}:{OA+4*nn+3}] offset:{nn*64}")
    a("v_cmp_gt_u32 vcc, 2, v2")
    a("v_lshlrev_b32 v5, 3, v2")
    a("v_add_u32 v5, s8, v5")
    a("s_and_b64 exec, exec, vcc")
    a(f"ds_write_b64 v5, v[{M}:{M+1}] offset:2048")
    a("s_mov_b64 exec, s[58:59]")
    a("s_waitcnt lgkmcnt(0)")
    a("s_barrier")
    a("v_lshrrev_b32 v5, 7, v0")
    a("v_lshlrev_b32 v6, 3, v5")
    a("v_lshlrev_b32 v7, 3, v0")
    a("v_add_u32 v9, 0x10000, v6")
    a("v_add_u32 v10, 0x10000, v7")
    for w in range(4):
        a(f"ds_read_b64 v[{16+2*w}:{17+2*w}], v{6 if w<2 else 9} offset:{(w&1)*32768+2048}")
        a(f"ds_read_b64 v[{24+2*w}:{25+2*w}], v{7 if w<2 else 10} offset:{(w&1)*32768}")
    a("s_waitcnt lgkmcnt(0)")
    a("v_max_f32 v32, v16, v18")
    a("v_max3_f32 v32, v32, v20, v22")
    for w in range(4):
        a(f"v_sub_f32 v{16+2*w}, v{16+2*w}, v32")
        a(f"v_exp_f32 v{16+2*w}, v{16+2*w}")
    a("s_nop 0")
    a("v_mul_f32 v33, v16, v17")
    a("v_mul_f32 v34, v16, v24")
    a("v_mul_f32 v35, v16, v25")
    for w in range(1, 4):
        a(f"v_fmac_f32 v33, v{16+2*w}, v{17+2*w}")
        a(f"v_fmac_f32 v34, v{16+2*w}, v{24+2*w}")
        a(f"v_fmac_f32 v35, v{16+2*w}, v{25+2*w}")
    a("s_lshl_b32 s6, s98, 11")
    a(f"s_add_u32 s6, s6, {WS_OP}")
    a("buffer_store_dwordx2 v[34:35], v7, s[52:55], s6 offen sc1")
    a("v_and_b32 v8, 127, v0")
    a("v_cmp_gt_u32 vcc, 16, v8")
    a("v_lshlrev_b32 v8, 3, v8")
    a("v_lshl_add_u32 v8, v5, 7, v8")
    a("s_lshl_b32 s6, s98, 8")
    a(f"s_add_u32 s6, s6, {WS_ML}")
    a("s_and_b64 exec, exec, vcc")
    a("s_cbranch_execz L_noml")
    a("buffer_store_dwordx2 v[32:33], v8, s[52:55], s6 offen sc1")
    a.label("L_noml")
    a("s_mov_b64 exec, s[58:59]")
    a("s_branch L_tail")

    a.label("L_tail")
    a("s_cmp_ge_u32 s38, 14")
    a("s_cselect_b32 s99, 1, 0")
    a("s_mul_i32 s6, s99, 14")
    a("s_sub_u32 s100, s38, s6")
    a("s_lshl_b32 s101, s4, 1")
    a("s_add_u32 s101, s101, s99")
    a("s_cmp_eq_u32 s3, 7")
    a("s_cbranch_scc1 L_now")
    a("v_mul_u32_u24 v5, 56, v2")
    for (base, sr) in ((128, 80), (144, 84), (160, 88)):
        for i in range(3):
            a(f"buffer_load_dwordx4 v[{base+4*i}:{base+4*i+3}], v5, s[{sr}:{sr+3}], 0 offen offset:{16*i}")
        a(f"buffer_load_dwordx2 v[{base+12}:{base+13}], v5, s[{sr}:{sr+3}], 0 offen offset:48")
    a("v_mov_b32 v6, 0")
    a("buffer_load_ushort v174, v6, s[92:95], 0 offen")
    a.label("L_now")
    a("s_cmp_ge_u32 s38, 28")
    a("s_cbranch_scc1 L_stageD")
    a("s_cmp_ge_u32 s3, 4")
    a("s_cbranch_scc1 L_bar4")
    a("v_lshrrev_b32 v5, 5, v0")
    a("v_and_b32 v6, 31, v0")
    a("v_lshlrev_b32 v7, 13, v5")
    a("v_lshl_add_u32 v7, v6, 5, v7")
    a("v_lshlrev_b32 v8, 10, v5")
    a("s_lshl_b32 s10, s4, 16")
    a("s_lshl_b32 s11, s99, 10")
    a("s_add_u32 s10, s10, s11")
    a(f"s_add_u32 s10, s10, {WS_OP}")
    a("s_add_u32 s11, s10, 4096")
    a("s_lshl_b32 s12, s4, 13")
    a("s_lshl_b32 s6, s99, 7")
    a("s_add_u32 s12, s12, s6")
    a(f"s_add_u32 s12, s12, {WS_ML}")
    a("v_and_b32 v9, 31, v2")
    a("v_lshlrev_b32 v9, 8, v9")
    a("s_mov_b32 s13, 0")
    if BULK & 1: a("s_branch L_pollC")
    a.label("L_pollC0")
    a("buffer_load_dwordx2 v[16:17], v9, s[52:55], s12 offen sc1")
    a("s_add_u32 s13, s13, 1")
    a("s_waitcnt vmcnt(0)")
    anysent(a, range(16, 18), 56)
    a("v_cmp_eq_u32 vcc, -1, v56")
    a(f"s_cmp_ge_u32 s13, {SPIN_MAX}")
    a("s_cbranch_scc1 L_pollC")
    a("s_cbranch_vccz L_pollC")
    a("s_sleep 8")
    a("s_branch L_pollC0")
    a.label("L_pollC")
    if STAMP:
        a("s_cmp_lg_u32 s3, 0")
        a("s_cbranch_scc1 L_st19")
        stamp(a, 19)
        a.label("L_st19")
    for s in range(4):
        a(f"buffer_load_dwordx2 v[{48+2*s}:{49+2*s}], v8, s[52:55], s12 offen offset:{s*256} sc1")
    for s in range(4):
        a(f"buffer_load_dwordx4 v[{16+8*s}:{19+8*s}], v7, s[52:55], s{10+(s>>1)} offen offset:{(s&1)*2048} sc1")
        a(f"buffer_load_dwordx4 v[{20+8*s}:{23+8*s}], v7, s[52:55], s{10+(s>>1)} offen offset:{(s&1)*2048+16} sc1")
    a("s_add_u32 s13, s13, 1")
    a("s_waitcnt vmcnt(0)")
    anysent(a, range(16, 56), 56)
    a("v_cmp_eq_u32 vcc, -1, v56")
    a(f"s_cmp_ge_u32 s13, {SPIN_MAX}")
    a("s_cbranch_scc1 L_pollC_done")
    a("s_cbranch_vccz L_pollC_done")
    a("s_sleep 4")
    a("s_branch L_pollC")
    a.label("L_pollC_done")
    if STAMP:
        a("s_cmp_lg_u32 s3, 0")
        a("s_cbranch_scc1 L_st8")
        stamp(a, 8)
        a.label("L_st8")
    a("v_max_f32 v56, v48, v50")
    a("v_max3_f32 v56, v56, v52, v54")
    for s in range(4):
        a(f"v_sub_f32 v{48+2*s}, v{48+2*s}, v56")
        a(f"v_exp_f32 v{48+2*s}, v{48+2*s}")
    a("s_nop 0")
    a("v_mul_f32 v57, v48, v49")
    for s in range(1, 4):
        a(f"v_fmac_f32 v57, v{48+2*s}, v{49+2*s}")
    a("v_rcp_f32 v57, v57")
    a("s_nop 0")
    for s in range(4):
        a(f"v_mul_f32 v{48+2*s}, v{48+2*s}, v57")
    for i in range(8):
        a(f"v_mul_f32 v{60+i}, v48, v{16+i}")
        for s in range(1, 4):
            a(f"v_fmac_f32 v{60+i}, v{48+2*s}, v{16+8*s+i}")
    pack8(a, 60, 68)
    a("v_lshlrev_b32 v6, 4, v0")
    a(f"v_add_u32 v6, {L_O}, v6")
    a("ds_write_b128 v6, v[68:71]")
    a("s_waitcnt lgkmcnt(0)")
    a.label("L_bar4")
    a("s_barrier")
    a("s_cmp_lg_u32 s3, 0")
    a("s_cbranch_scc1 L_stageD")
    a("v_bfe_u32 v5, v2, 2, 2")
    a("v_lshl_add_u32 v5, v4, 3, v5")
    a("v_lshlrev_b32 v5, 6, v5")
    a("v_and_b32 v6, 3, v2")
    a("v_lshl_add_u32 v5, v6, 3, v5")
    a(f"v_add_u32 v5, {L_WO}, v5")
    a("v_and_b32 v6, 7, v2")
    a("v_lshlrev_b32 v6, 9, v6")
    a("v_lshl_add_u32 v6, v4, 4, v6")
    a(f"v_add_u32 v6, {L_O}, v6")
    for j in range(8):
        a(f"ds_read_b128 v[{48+4*j}:{51+4*j}], v6 offset:{j*64}")
        a(f"ds_read_b64_tr_b16 v[{16+4*j}:{17+4*j}], v5 offset:{j*2048}")
        a(f"ds_read_b64_tr_b16 v[{18+4*j}:{19+4*j}], v5 offset:{j*2048+256}")
        a(f"ds_read_b64_tr_b16 v[{88+4*j}:{89+4*j}], v5 offset:{j*2048+32}")
        a(f"ds_read_b64_tr_b16 v[{90+4*j}:{91+4*j}], v5 offset:{j*2048+256+32}")
    a("s_waitcnt lgkmcnt(0)")
    for j in range(8):
        c0 = "0" if j == 0 else "v[80:83]"
        c1 = "0" if j == 0 else "v[84:87]"
        a(f"v_mfma_f32_16x16x32_bf16 v[80:83], v[{16+4*j}:{19+4*j}], v[{48+4*j}:{51+4*j}], {c0}")
        a(f"v_mfma_f32_16x16x32_bf16 v[84:87], v[{88+4*j}:{91+4*j}], v[{48+4*j}:{51+4*j}], {c1}")
    a("v_cmp_gt_u32 vcc, 8, v3")
    a("v_lshlrev_b32 v5, 7, v3")
    a("v_lshl_add_u32 v5, v4, 4, v5")
    a(f"v_add_u32 v5, {L_QL}, v5")
    a("v_lshlrev_b32 v6, 4, v2")
    a(f"v_add_u32 v7, {L_QL}, v6")
    a("s_lshl_b32 s6, s4, 1")
    a("s_mul_i32 s6, s6, 14")
    a("s_add_u32 s6, s6, s38")
    a("s_lshl_b32 s6, s6, 10")
    a(f"s_add_u32 s6, s6, {WS_P2}")
    a("s_and_b64 exec, exec, vcc")
    a("ds_write_b128 v5, v[80:83]")
    a("ds_write_b128 v5, v[84:87] offset:64")
    a("s_mov_b64 exec, s[58:59]")
    a("s_waitcnt lgkmcnt(0)")
    a("ds_read_b128 v[80:83], v7")
    a("s_waitcnt lgkmcnt(0)")
    a("buffer_store_dwordx4 v[80:83], v6, s[52:55], s6 offen sc1")
    if STAMP:
        a("s_cmp_lg_u32 s3, 0")
        a("s_cbranch_scc1 L_st9")
        stamp(a, 9)
        a("s_waitcnt vmcnt(0)")
        stamp(a, 18)
        a.label("L_st9")

    a.label("L_stageD")
    a("s_lshr_b32 s96, s2, 5")
    a("s_and_b32 s97, s2, 31")
    a("s_cmp_lg_u32 s3, 7")
    a("s_cbranch_scc1 L_bar5")
    a("v_lshrrev_b32 v5, 2, v2")
    a("v_lshlrev_b32 v5, 10, v5")
    a("v_and_b32 v6, 3, v2")
    a("v_lshl_add_u32 v5, v6, 5, v5")
    a("v_mov_b32 v6, 0x7fff0000")
    a("v_cndmask_b32 v5, v6, v5, s[56:57]")
    a("v_lshlrev_b32 v7, 4, v2")
    a("v_cndmask_b32 v7, v6, v7, s[56:57]")
    a("s_mul_i32 s6, s96, 896")
    a("buffer_load_dwordx4 v[8:11], v7, s[60:63], s6 offen")
    a("s_mov_b32 s13, 0")
    a.label("L_pollD")
    a("s_lshl_b32 s6, s96, 7")
    a(f"s_add_u32 s6, s6, {WS_P2}")
    for h in range(16):
        a(f"buffer_load_dwordx4 v[{128+8*h}:{131+8*h}], v5, s[52:55], s6 offen sc1")
        a(f"buffer_load_dwordx4 v[{132+8*h}:{135+8*h}], v5, s[52:55], s6 offen offset:16 sc1")
        a("s_add_u32 s6, s6, 14336")
    a("s_add_u32 s13, s13, 1")
    a("s_waitcnt vmcnt(0)")
    anysent(a, range(128, 256), 12)
    a("v_cmp_eq_u32 vcc, -1, v12")
    a(f"s_cmp_ge_u32 s13, {SPIN_MAX}")
    a("s_cbranch_scc1 L_pollD_done")
    a("s_cbranch_vccz L_pollD_done")
    a("s_sleep 4")
    a("s_branch L_pollD")
    a.label("L_pollD_done")
    stamp(a, 10, 13, 14)
    for h in range(1, 16):
        for i in range(8):
            a(f"v_add_f32 v{128+i}, v{128+i}, v{128+8*h+i}")
    unpack8(a, 8, 16)
    for i in range(0, 8, 2):
        bf16r2(a, 128+i, 129+i, 12)
        a(f"v_add_f32 v{16+i}, v{16+i}, v{128+i}")
        a(f"v_add_f32 v{17+i}, v{17+i}, v{129+i}")
        bf16r2(a, 16+i, 17+i, 12)
    a("v_lshlrev_b32 v5, 5, v2")
    a(f"v_add_u32 v5, {L_H}, v5")
    a("s_mov_b64 exec, s[56:57]")
    a("ds_write_b128 v5, v[16:19]")
    a("ds_write_b128 v5, v[20:23] offset:16")
    a("s_mov_b64 exec, s[58:59]")
    layernorm8(a, 16, 32, 33, 34, 56)
    for i in range(8):
        a(f"v_cndmask_b32 v{16+i}, 0, v{16+i}, s[56:57]")
    layernorm8(a, 16, 32, 33, 34, 56)
    a("s_mov_b64 exec, s[56:57]")
    a(f"ds_write_b128 v5, v[16:19] offset:{L_T-L_H}")
    a(f"ds_write_b128 v5, v[20:23] offset:{L_T-L_H+16}")
    a("s_mov_b64 exec, s[58:59]")
    a("s_waitcnt lgkmcnt(0)")
    stamp(a, 11, 13, 14)
    a("s_barrier")
    a("s_branch L_done")
    a.label("L_bar5")
    a("s_waitcnt vmcnt(0)")
    for i in range(14):
        a(f"v_lshlrev_b32 v{16+2*i}, 16, v{128+i}")
        a(f"v_and_b32 v{17+2*i}, 0xffff0000, v{128+i}")
        a(f"v_lshlrev_b32 v{44+2*i}, 16, v{144+i}")
        a(f"v_and_b32 v{45+2*i}, 0xffff0000, v{144+i}")
    a("v_lshlrev_b32 v174, 16, v174")
    C1 = -2.0 * LOG2E * math.sqrt(2.0/math.pi)
    C2 = C1 * 0.044715
    a(f"v_mov_b32 v72, {hex(f2u(C1))}")
    a(f"v_mov_b32 v73, {hex(f2u(C1))}")
    a(f"v_mov_b32 v74, {hex(f2u(C2))}")
    a(f"v_mov_b32 v75, {hex(f2u(C2))}")
    a("v_mov_b32 v76, 1.0")
    a("v_mov_b32 v77, 1.0")
    a("v_mov_b32 v78, 0")
    a("v_mov_b32 v79, 0")
    a("s_mul_i32 s6, s97, 56")
    a("s_lshl_b32 s7, s3, 3")
    a("s_add_u32 s6, s6, s7")
    a(f"s_add_u32 s6, s6, {L_H}")
    a("v_mov_b32 v5, s6")
    a("s_barrier")
    a(f"ds_read_b64 v[80:81], v5 offset:{L_T-L_H}")
    a("ds_read_b64 v[82:83], v5")
    a("s_waitcnt lgkmcnt(0)")
    for i in range(14):
        U = [84, 92]; Tt = [86, 94]; C = [88, 96]
        for d in range(2):
            osel = "op_sel_hi:[0,1]" if d == 0 else "op_sel:[1,0] op_sel_hi:[1,1]"
            a(f"v_pk_mul_f32 v[{U[d]}:{U[d]+1}], v[80:81], v[{16+2*i}:{17+2*i}] {osel}")
        for d in range(2):
            bf16r2(a, U[d], U[d]+1, C[d])
        for d in range(2):
            a(f"v_pk_add_f32 v[{U[d]}:{U[d]+1}], v[{U[d]}:{U[d]+1}], v[{44+2*i}:{45+2*i}]")
        for d in range(2):
            bf16r2(a, U[d], U[d]+1, C[d])
        for d in range(2):
            a(f"v_pk_mul_f32 v[{Tt[d]}:{Tt[d]+1}], v[{U[d]}:{U[d]+1}], v[{U[d]}:{U[d]+1}]")
        for d in range(2):
            a(f"v_pk_fma_f32 v[{Tt[d]}:{Tt[d]+1}], v[{Tt[d]}:{Tt[d]+1}], v[74:75], v[72:73]")
        for d in range(2):
            a(f"v_pk_mul_f32 v[{Tt[d]}:{Tt[d]+1}], v[{Tt[d]}:{Tt[d]+1}], v[{U[d]}:{U[d]+1}]")
        for d in range(2):
            a(f"v_exp_f32 v{Tt[d]}, v{Tt[d]}")
            a(f"v_exp_f32 v{Tt[d]+1}, v{Tt[d]+1}")
        for d in range(2):
            a(f"v_pk_add_f32 v[{Tt[d]}:{Tt[d]+1}], v[{Tt[d]}:{Tt[d]+1}], v[76:77]")
        for d in range(2):
            a(f"v_rcp_f32 v{Tt[d]}, v{Tt[d]}")
            a(f"v_rcp_f32 v{Tt[d]+1}, v{Tt[d]+1}")
        for d in range(2):
            a(f"v_pk_mul_f32 v[{Tt[d]}:{Tt[d]+1}], v[{Tt[d]}:{Tt[d]+1}], v[{U[d]}:{U[d]+1}]")
        for d in range(2):
            a(f"v_cvt_pk_bf16_f32 v{C[d]}, v{Tt[d]}, v{Tt[d]+1}")
        for d in range(2):
            a(f"v_dot2_f32_bf16 v{78+d}, v{C[d]}, v{160+i}, v{78+d}")
    a("s_nop 3")
    wave_reduce2(a, "v_add_f32", 78, 84, 79, 85)
    bf16r2(a, 78, 79, 84)
    a("v_add_f32 v78, v78, v174")
    a("v_add_f32 v79, v79, v174")
    bf16r2(a, 78, 79, 84)
    a("v_add_f32 v78, v78, v82")
    a("v_add_f32 v79, v79, v83")
    a("v_cvt_pk_bf16_f32 v78, v78, v79")
    a("s_mul_i32 s6, s96, 896")
    a("s_mul_i32 s7, s97, 28")
    a("s_add_u32 s6, s6, s7")
    a("s_lshl_b32 s7, s3, 2")
    a("s_add_u32 s6, s6, s7")
    a("v_mov_b32 v5, 0")
    a("s_mov_b64 exec, 1")
    a("buffer_store_dword v78, v5, s[76:79], s6 offen")
    if STAMP:
        a("s_cmp_lg_u32 s3, 0")
        a("s_cbranch_scc1 L_done")
        stamp(a, 13)
    a.label("L_done")
    a("s_endpgm")
    a.raw(".section .rodata,\"a\"")
    a.raw(".p2align 6")
    a.raw(f".amdhsa_kernel {n}")
    a.raw("  .amdhsa_next_free_vgpr 256")
    a.raw("  .amdhsa_next_free_sgpr 102")
    a.raw("  .amdhsa_accum_offset 256")
    a.raw("  .amdhsa_group_segment_fixed_size 0")
    a.raw("  .amdhsa_kernarg_size 104")
    a.raw("  .amdhsa_user_sgpr_count 2")
    a.raw("  .amdhsa_user_sgpr_kernarg_segment_ptr 1")
    a.raw("  .amdhsa_system_sgpr_workgroup_id_x 1")
    a.raw(".end_amdhsa_kernel")

def main():
    a = Asm()
    hdr = open("cdna_kernels/%s.s.ref" % NAME).read().split("\n")
    for l in hdr:
        if l.startswith("; @launch"):
            break
        a.raw(l)
    a.raw(f"; @launch grid=(256,1,1) block=(512,1,1) lds={LDS_BYTES}")
    a.raw('.amdgcn_target "amdgcn-amd-amdhsa--gfx950"')
    gen(a)
    out = sys.argv[1] if len(sys.argv) > 1 else OUT
    open(out, "w").write(a.text())

if __name__ == "__main__":
    main()
```

```python
import sys, math, struct, os, re

NAME = "sequential_preLN__gqa_block_cached__mixer_token_mlp__decode"
KNAME = NAME + "_kernel"
OUT = "cdna_kernels/%s.s" % NAME

def f2u(x):
    return struct.unpack("<I", struct.pack("<f", x))[0]

class Asm:
    def __init__(self):
        self.lines = []
    def __call__(self, s):
        for l in s.strip("\n").split("\n"):
            l = l.strip()
            m = re.search(r"offset:(\d+)", l)
            if m and l.startswith("buffer_"):
                assert int(m.group(1)) < 4096, l
            if m and l.startswith("ds_"):
                assert int(m.group(1)) < 65536, l
            self.lines.append("    " + l)
    def label(self, l):
        self.lines.append(l + ":")
    def raw(self, s):
        self.lines.append(s)
    def text(self):
        return "\n".join(self.lines) + "\n"

WS_Q = 0
WS_OP = 0x20000
WS_ML = 0xA0000
WS_P2 = 0xB0000
WS_CNT = 0xE8000
WS_BYTES = 0x400000

LOG2E = 1.4426950408889634
SCALE_C = 0.0625 * LOG2E
NT = os.environ.get("NT", " nt")
NTV = os.environ.get("NTV", NT)

MB = 131072
L_WQ = MB
L_XN = MB + 14336
L_QL = MB + 21504
L_WO = MB
L_O = MB + 22528
L_H = MB + 26624
L_T = MB + 28672
L_F = MB + 31744
L_NEXT = MB + 31808
NSTAT = int(os.environ.get("NSTAT", "24"))
LOOK = int(os.environ.get("LOOK", "4"))
DEPTH = int(os.environ.get("DEPTH", "2"))
VX = int(os.environ.get("VX", "0"))
BULK = int(os.environ.get("BULK", "0"))
IPF = int(os.environ.get("IPF", "0"))
G1 = int(os.environ.get("G1", "1"))
GR = int(os.environ.get("GR", "1"))
LDS_BYTES = 163840

SPIN_MAX = 1 << 18

def srd(a, d, base, nbytes):
    a(f"s_mov_b32 s{d}, s{base}")
    a(f"s_and_b32 s{d+1}, s{base+1}, 0xffff")
    a(f"s_mov_b32 s{d+2}, {nbytes}")
    a(f"s_mov_b32 s{d+3}, 0x00020000")

def wave_reduce(a, op, v, t):
    for ctl in ["quad_perm:[1,0,3,2]", "quad_perm:[2,3,0,1]", "row_half_mirror", "row_mirror"]:
        a("s_nop 1")
        a(f"{op}_dpp v{v}, v{v}, v{v} {ctl} row_mask:0xf bank_mask:0xf")
    group_reduce(a, op, v, t)

def group_reduce(a, op, v, t):
    a(f"v_mov_b32 v{t}, v{v}")
    a("s_nop 1")
    a(f"v_permlane16_swap_b32 v{v}, v{t}")
    a("s_nop 1")
    a(f"{op} v{v}, v{v}, v{t}")
    a(f"v_mov_b32 v{t}, v{v}")
    a("s_nop 1")
    a(f"v_permlane32_swap_b32 v{v}, v{t}")
    a("s_nop 1")
    a(f"{op} v{v}, v{v}, v{t}")

def wave_reduce2(a, op, v, t, w, u):
    for ctl in ["quad_perm:[1,0,3,2]", "quad_perm:[2,3,0,1]", "row_half_mirror", "row_mirror"]:
        a("s_nop 0")
        a(f"{op}_dpp v{v}, v{v}, v{v} {ctl} row_mask:0xf bank_mask:0xf")
        a(f"{op}_dpp v{w}, v{w}, v{w} {ctl} row_mask:0xf bank_mask:0xf")
    for sw in ["v_permlane16_swap_b32", "v_permlane32_swap_b32"]:
        a(f"v_mov_b32 v{t}, v{v}")
        a(f"v_mov_b32 v{u}, v{w}")
        a("s_nop 1")
        a(f"{sw} v{v}, v{t}")
        a(f"{sw} v{w}, v{u}")
        a("s_nop 1")
        a(f"{op} v{v}, v{v}, v{t}")
        a(f"{op} v{w}, v{w}, v{u}")

def bf16r(a, v):
    a(f"v_cvt_pk_bf16_f32 v{v}, v{v}, v{v}")
    a(f"v_and_b32 v{v}, 0xffff0000, v{v}")

def bf16r2(a, v, w, t):
    a(f"v_cvt_pk_bf16_f32 v{t}, v{v}, v{w}")
    a(f"v_lshlrev_b32 v{v}, 16, v{t}")
    a(f"v_and_b32 v{w}, 0xffff0000, v{t}")

def unpack8(a, src, dst):
    for i in range(4):
        a(f"v_lshlrev_b32 v{dst+2*i}, 16, v{src+i}")
        a(f"v_and_b32 v{dst+2*i+1}, 0xffff0000, v{src+i}")

def layernorm8(a, x, t0, t1, t2, smask, t3=35):
    a(f"v_add_f32 v{t0}, v{x}, v{x+1}")
    a(f"v_add_f32 v{t1}, v{x+2}, v{x+3}")
    a(f"v_add_f32 v{t2}, v{x+4}, v{x+5}")
    a(f"v_add_f32 v{t3}, v{x+6}, v{x+7}")
    a(f"v_add_f32 v{t0}, v{t0}, v{t1}")
    a(f"v_add_f32 v{t2}, v{t2}, v{t3}")
    a(f"v_add_f32 v{t0}, v{t0}, v{t2}")
    wave_reduce(a, "v_add_f32", t0, t1)
    a(f"v_mul_f32 v{t0}, {hex(f2u(1.0/448))}, v{t0}")
    a(f"v_sub_f32 v{t2}, v{x}, v{t0}")
    a(f"v_sub_f32 v{t3}, v{x+1}, v{t0}")
    a(f"v_mul_f32 v{t1}, v{t2}, v{t2}")
    a(f"v_mul_f32 v{t3}, v{t3}, v{t3}")
    for i in range(2, 8, 2):
        a(f"v_sub_f32 v{t2}, v{x+i}, v{t0}")
        a(f"v_fmac_f32 v{t1}, v{t2}, v{t2}")
        a(f"v_sub_f32 v{t2}, v{x+i+1}, v{t0}")
        a(f"v_fmac_f32 v{t3}, v{t2}, v{t2}")
    a(f"v_add_f32 v{t1}, v{t1}, v{t3}")
    a(f"v_cndmask_b32 v{t1}, 0, v{t1}, s[{smask}:{smask+1}]")
    wave_reduce(a, "v_add_f32", t1, t2)
    a(f"v_mul_f32 v{t1}, {hex(f2u(1.0/448))}, v{t1}")
    bf16r(a, t1)
    a(f"v_add_f32 v{t1}, {hex(f2u(1e-5))}, v{t1}")
    bf16r(a, t1)
    a(f"v_sqrt_f32 v{t1}, v{t1}")
    bf16r(a, t0)
    bf16r(a, t1)
    a(f"v_rcp_f32 v{t1}, v{t1}")
    for i in range(0, 8, 2):
        a(f"v_sub_f32 v{x+i}, v{x+i}, v{t0}")
        a(f"v_sub_f32 v{x+i+1}, v{x+i+1}, v{t0}")
        bf16r2(a, x+i, x+i+1, t2)
    for i in range(0, 8, 2):
        a(f"v_mul_f32 v{x+i}, v{x+i}, v{t1}")
        a(f"v_mul_f32 v{x+i+1}, v{x+i+1}, v{t1}")
        bf16r2(a, x+i, x+i+1, t2)

def layernorm8x2(a, x, y, tx, ty, smask):
    t0, t1, t2 = tx; u0, u1, u2 = ty
    a(f"v_add_f32 v{t0}, v{x}, v{x+1}")
    a(f"v_add_f32 v{u0}, v{y}, v{y+1}")
    for i in range(2, 8):
        a(f"v_add_f32 v{t0}, v{t0}, v{x+i}")
        a(f"v_add_f32 v{u0}, v{u0}, v{y+i}")
    wave_reduce2(a, "v_add_f32", t0, t1, u0, u1)
    a(f"v_mul_f32 v{t0}, {hex(f2u(1.0/448))}, v{t0}")
    a(f"v_mul_f32 v{u0}, {hex(f2u(1.0/448))}, v{u0}")
    for i in range(8):
        a(f"v_sub_f32 v{t2}, v{x+i}, v{t0}")
        a(f"v_sub_f32 v{u2}, v{y+i}, v{u0}")
        if i == 0:
            a(f"v_mul_f32 v{t1}, v{t2}, v{t2}")
            a(f"v_mul_f32 v{u1}, v{u2}, v{u2}")
        else:
            a(f"v_fmac_f32 v{t1}, v{t2}, v{t2}")
            a(f"v_fmac_f32 v{u1}, v{u2}, v{u2}")
    a(f"v_cndmask_b32 v{t1}, 0, v{t1}, s[{smask}:{smask+1}]")
    a(f"v_cndmask_b32 v{u1}, 0, v{u1}, s[{smask}:{smask+1}]")
    wave_reduce2(a, "v_add_f32", t1, t2, u1, u2)
    a(f"v_mul_f32 v{t1}, {hex(f2u(1.0/448))}, v{t1}")
    a(f"v_mul_f32 v{u1}, {hex(f2u(1.0/448))}, v{u1}")
    bf16r2(a, t1, u1, t2)
    a(f"v_add_f32 v{t1}, {hex(f2u(1e-5))}, v{t1}")
    a(f"v_add_f32 v{u1}, {hex(f2u(1e-5))}, v{u1}")
    bf16r2(a, t1, u1, t2)
    a(f"v_sqrt_f32 v{t1}, v{t1}")
    a(f"v_sqrt_f32 v{u1}, v{u1}")
    a("s_nop 0")
    bf16r2(a, t1, u1, t2)
    a(f"v_rcp_f32 v{t1}, v{t1}")
    a(f"v_rcp_f32 v{u1}, v{u1}")
    bf16r2(a, t0, u0, t2)
    for (z, m, r_) in ((x, t0, t1), (y, u0, u1)):
        for i in range(0, 8, 2):
            a(f"v_sub_f32 v{z+i}, v{z+i}, v{m}")
            a(f"v_sub_f32 v{z+i+1}, v{z+i+1}, v{m}")
            bf16r2(a, z+i, z+i+1, t2)
            a(f"v_mul_f32 v{z+i}, v{z+i}, v{r_}")
            a(f"v_mul_f32 v{z+i+1}, v{z+i+1}, v{r_}")

def pack8(a, x, dst):
    for i in range(4):
        a(f"v_cvt_pk_bf16_f32 v{dst+i}, v{x+2*i}, v{x+2*i+1}")

def anysent(a, regs, t):
    regs = list(regs)
    a(f"v_max_u32 v{t}, v{regs[0]}, v{regs[1]}")
    i = 2
    while i < len(regs):
        if i + 1 < len(regs):
            a(f"v_max3_u32 v{t}, v{t}, v{regs[i]}, v{regs[i+1]}")
            i += 2
        else:
            a(f"v_max_u32 v{t}, v{t}, v{regs[i]}")
            i += 1

QF = 16; OA = 64; KF = 128; VF = 160; KOFF = 192; VOFF = 200; KRA = 208; VRA = 212
SA = 220; PB = 224; M = 226; L = 227; AL = 228; T0 = 229; T1 = 230; T2 = 231

STAMP = int(os.environ.get("STAMP", "0"))
PRE = int(os.environ.get("PRE", "2"))
LATE0 = int(os.environ.get("LATE0", "0"))
MAP = int(os.environ.get("MAP", "1"))
def stamp(a, idx, va=233, vb=234):
    if not STAMP: return
    a("s_memrealtime s[42:43]")
    a("s_waitcnt lgkmcnt(0)")
    a(f"v_mov_b32 v{va}, s42")
    a("s_lshl_b32 s42, s2, 7")
    a(f"s_add_u32 s42, s42, {0x200000 + idx*4}")
    a(f"v_mov_b32 v{vb}, 0")
    a("s_mov_b64 exec, 1")
    a(f"buffer_store_dword v{va}, v{vb}, s[52:55], s42 offen")
    a("s_mov_b64 exec, s[58:59]")

def gen(a):
    n = KNAME
    a.raw(".text")
    a.raw(f".globl {n}")
    a.raw(".p2align 8")
    a.raw(f".type {n},@function")
    a.label(n)
    a("s_cmp_ge_u32 s2, 256")
    a("s_cbranch_scc1 L_done")
    a("s_load_dwordx16 s[16:31], s[0:1], 0")
    a("s_load_dwordx8 s[32:39], s[0:1], 64")
    a("s_load_dwordx2 s[40:41], s[0:1], 96")
    a("v_lshrrev_b32 v1, 6, v0")
    a("v_and_b32 v2, 63, v0")
    a("v_and_b32 v3, 15, v2")
    a("v_readfirstlane_b32 s3, v1")
    a("v_lshrrev_b32 v4, 4, v2")
    if MAP == 0:
        a("s_and_b32 s4, s2, 7")
        a("s_lshr_b32 s5, s2, 3")
    else:
        a("s_lshr_b32 s4, s2, 5")
        a("s_and_b32 s5, s2, 31")
    a("s_lshr_b32 s96, s5, 2")
    a("s_and_b32 s97, s5, 3")
    a("s_lshl_b32 s98, s4, 5")
    a("s_add_u32 s98, s98, s5")
    a("v_cmp_gt_u32 s[56:57], 56, v2")
    a("s_mov_b64 s[58:59], exec")
    a("s_waitcnt lgkmcnt(0)")
    srd(a, 60, 16, 7168)
    srd(a, 64, 22, 448*4096*2)
    srd(a, 72, 38, 256)
    def rest_srds():
        srd(a, 44, 18, 0x10000000)
        srd(a, 48, 20, 0x10000000)
        srd(a, 52, 40, WS_BYTES)
        srd(a, 68, 24, 4096*448*2)
        srd(a, 76, 36, 7168)
        srd(a, 80, 28, 3584)
        srd(a, 84, 30, 3584)
        srd(a, 88, 32, 3584)
        srd(a, 92, 34, 4)
    a("s_and_b32 s38, s5, 7")
    a("s_lshl_b32 s38, s38, 2")
    a("s_lshr_b32 s39, s5, 3")
    a("s_add_u32 s38, s38, s39")
    a("s_lshl_b32 s39, s4, 5")
    a("s_add_u32 s39, s39, s38")
    def ldsspin(word, target, lab):
        a(f"v_mov_b32 v5, {L_F + word*4}")
        a.label(lab)
        a("ds_read_b32 v6, v5")
        a("s_waitcnt lgkmcnt(0)")
        a("v_readfirstlane_b32 s6, v6")
        a(f"s_cmp_ge_u32 s6, {target}")
        a(f"s_cbranch_scc1 {lab}_d")
        a("s_sleep 1")
        a(f"s_branch {lab}")
        a.label(lab + "_d")

    a("s_cmp_lt_u32 s3, 4")
    a("s_cbranch_scc1 L_stream")
    a.label("L_helpers")
    a("s_memrealtime s[16:17]")
    a("v_lshlrev_b32 v5, 4, v2")
    a("v_mov_b32 v6, 0x7fff0000")
    a("v_cndmask_b32 v5, v6, v5, s[56:57]")
    a("s_sub_u32 s6, s3, 4")
    a("s_mul_i32 s15, s6, 1792")
    a("buffer_load_dwordx4 v[8:11], v5, s[60:63], s15 offen")
    a("buffer_load_dwordx4 v[12:15], v5, s[60:63], s15 offen offset:896")
    a("s_cmp_lg_u32 s3, 4")
    a("s_cbranch_scc1 L_h_nowq")
    a("v_lshrrev_b32 v5, 1, v2")
    a("v_lshlrev_b32 v5, 13, v5")
    a("v_and_b32 v6, 1, v2")
    a("v_lshl_add_u32 v5, v6, 4, v5")
    a("s_lshl_b32 s6, s39, 5")
    a(f"s_mov_b32 s7, {L_WQ}")
    for p in range(14):
        a("s_mov_b32 m0, s7")
        a("s_add_u32 s7, s7, 1024")
        a("buffer_load_dwordx4 v5, s[64:67], s6 offen lds")
        a("s_add_u32 s6, s6, 0x40000")
    a.label("L_h_nowq")
    rest_srds()
    a("s_cmp_ge_u32 s38, 14")
    a("s_cselect_b32 s99, 1, 0")
    a("s_mul_i32 s6, s99, 14")
    a("s_sub_u32 s100, s38, s6")
    a("s_lshl_b32 s101, s4, 1")
    a("s_add_u32 s101, s101, s99")
    a("s_cmp_lg_u32 s3, 4")
    a("s_cbranch_scc1 L_h_not4")
    a(f"v_mov_b32 v5, {L_F}")
    for i in range(4):
        a(f"v_mov_b32 v{16+i}, 0")
    a("ds_write_b128 v5, v[16:19]")
    a(f"s_mul_i32 s6, s97, {NSTAT}")
    a("v_add_u32 v16, s6, v2")
    a(f"v_cmp_gt_u32 vcc, {NSTAT}, v2")
    a("v_lshlrev_b32 v5, 2, v2")
    a(f"v_add_u32 v5, {L_NEXT}, v5")
    a("v_cndmask_b32 v16, -1, v16, vcc")
    if VX: a("v_add_u32 v16, s6, v2")
    if VX: a("v_max_u32 v16, v16, v16")
    if VX: a(f"v_mov_b32 v17, 0x1000")
    if VX: a("v_cndmask_b32 v16, v17, v16, vcc")
    a("v_mov_b32 v17, -1")
    a("ds_write_b32 v5, v16")
    a("ds_write_b32 v5, v17 offset:256")
    a("s_branch L_h_bar0")
    a.label("L_h_not4")
    a("s_cmp_lg_u32 s3, 6")
    a("s_cbranch_scc1 L_h_bar0")
    a("s_cmp_lg_u32 s97, 0")
    a("s_cbranch_scc1 L_nocinit")
    a("s_lshl_b32 s6, s4, 3")
    a("s_add_u32 s6, s6, s96")
    a("s_lshl_b32 s6, s6, 8")
    a(f"s_add_u32 s6, s6, {WS_CNT}")
    a("s_waitcnt lgkmcnt(0)")
    a("s_lshr_b64 s[18:19], s[16:17], 2")
    a("s_and_b32 s7, s18, 0xffffff00")
    a("v_mov_b32 v16, s7")
    a("v_mov_b32 v17, 0")
    a("s_mov_b64 exec, 1")
    a("buffer_store_dword v16, v17, s[52:55], s6 offen sc1")
    a("s_mov_b64 exec, s[58:59]")
    a.label("L_nocinit")
    a.label("L_h_bar0")
    a("s_waitcnt lgkmcnt(0)")
    if not LATE0: a("s_barrier")
    a("s_lshr_b64 s[16:17], s[16:17], 10")
    a("s_cmp_eq_u32 s3, 4")
    a("s_cbranch_scc1 L_h_w14")
    a("s_cmp_eq_u32 s3, 6")
    a("s_cbranch_scc1 L_h_w3")
    a("s_waitcnt vmcnt(0)")
    a("s_branch L_h_ln")
    a.label("L_h_w14")
    a(f"s_waitcnt vmcnt({0 if LATE0 else 14})")
    a("s_branch L_h_ln")
    a.label("L_h_w3")
    a("s_waitcnt vmcnt(1)")
    a("s_cmp_eq_u32 s97, 0")
    a("s_cbranch_scc1 L_h_ln")
    a("s_waitcnt vmcnt(0)")
    a.label("L_h_ln")
    if LATE0: a("s_barrier")
    unpack8(a, 8, 16)
    unpack8(a, 12, 24)
    layernorm8x2(a, 16, 24, (32, 33, 34), (35, 36, 37), 56)
    pack8(a, 16, 8)
    pack8(a, 24, 12)
    a("v_lshlrev_b32 v5, 4, v2")
    a(f"s_add_u32 s6, s15, {L_XN}")
    a("v_add_u32 v5, s6, v5")
    a("s_mov_b64 exec, s[56:57]")
    a("ds_write_b128 v5, v[8:11]")
    a("ds_write_b128 v5, v[12:15] offset:896")
    a("s_mov_b64 exec, 1")
    a(f"v_mov_b32 v5, {L_F}")
    a("v_mov_b32 v6, 1")
    a("s_waitcnt lgkmcnt(0)")
    a("ds_add_u32 v5, v6")
    a("s_mov_b64 exec, s[58:59]")
    a("s_lshl_b32 s7, s4, 5")
    a("v_mov_b32 v9, s7")
    a("v_mov_b32 v8, 1")
    a("s_cmp_eq_u32 s3, 4")
    a("s_cbranch_scc1 L_service")
    a("s_cmp_eq_u32 s3, 5")
    a("s_cbranch_scc1 L_w5")
    if IPF:
        a("s_cmp_lg_u32 s3, 7")
        a("s_cbranch_scc1 L_not7")
        assert IPF < NSTAT
        a(f"v_mov_b32 v5, {L_F+12}")
        a("s_mov_b32 s13, 0")
        a.label("L_w7s")
        a("s_sleep 32")
        a("ds_read_b32 v6, v5")
        a("s_add_u32 s13, s13, 1")
        a("s_waitcnt lgkmcnt(0)")
        a("v_readfirstlane_b32 s6, v6")
        a("s_cmp_ge_u32 s13, 0x10000")
        a("s_cbranch_scc1 L_w7s_d")
        a(f"s_cmp_lt_u32 s6, {IPF}")
        a("s_cbranch_scc1 L_w7s")
        a.label("L_w7s_d")
        a("s_getpc_b64 s[36:37]")
        a.label("L_pc0")
        a("s_add_u32 s36, s36, L_loop_done-L_pc0")
        a("s_addc_u32 s37, s37, -1")
        a("s_mov_b32 s6, 0")
        a.label("L_pf1")
        a("s_load_dwordx16 s[20:35], s[36:37], s6")
        a("s_add_u32 s6, s6, 64")
        a("s_cmp_lt_u32 s6, L_helpers-L_loop_done")
        a("s_cbranch_scc1 L_pf1")
        a("s_waitcnt lgkmcnt(0)")
        a("s_getpc_b64 s[36:37]")
        a.label("L_pc1")
        a("s_add_u32 s36, s36, L_tail-L_pc1")
        a("s_addc_u32 s37, s37, 0")
        a("s_mov_b32 s6, 0")
        a.label("L_pf2")
        a("s_load_dwordx16 s[20:35], s[36:37], s6")
        a("s_add_u32 s6, s6, 64")
        a("s_cmp_lt_u32 s6, L_done-L_tail")
        a("s_cbranch_scc1 L_pf2")
        a("s_waitcnt lgkmcnt(0)")
        a("s_branch L_h_bar3")
        a.label("L_not7")
    a("s_cmp_lg_u32 s3, 6")
    a("s_cbranch_scc1 L_h_bar3")
    if VX == 4: a("s_branch L_h_bar3")
    for i in range(4):
        a(f"v_mov_b32 v{16+i}, -1")
    a("v_lshlrev_b32 v6, 4, v2")
    a("s_lshl_b32 s6, s98, 11")
    a(f"s_add_u32 s6, s6, {WS_OP}")
    a("buffer_store_dwordx4 v[16:19], v6, s[52:55], s6 offen sc1")
    a("buffer_store_dwordx4 v[16:19], v6, s[52:55], s6 offen offset:1024 sc1")
    a("s_lshl_b32 s6, s98, 8")
    a(f"s_add_u32 s6, s6, {WS_ML}")
    a("s_mov_b64 exec, 0xffff")
    a("buffer_store_dwordx4 v[16:19], v6, s[52:55], s6 offen sc1")
    a("s_mov_b64 exec, s[58:59]")
    a("s_cmp_ge_u32 s38, 28")
    a("s_cbranch_scc1 L_clr_done")
    a("s_lshl_b32 s6, s4, 1")
    a("s_mul_i32 s6, s6, 14")
    a("s_add_u32 s6, s6, s38")
    a("s_lshl_b32 s6, s6, 10")
    a(f"s_add_u32 s6, s6, {WS_P2}")
    a("buffer_store_dwordx4 v[16:19], v6, s[52:55], s6 offen sc1")
    a.label("L_clr_done")
    a("s_mov_b64 exec, 1")
    a("s_waitcnt vmcnt(0)")
    a("buffer_atomic_add v8, v9, s[72:75], 0 offen sc1")
    a("s_mov_b64 exec, s[58:59]")
    a("s_branch L_h_bar3")
    a.label("L_w5")
    a(f"v_mov_b32 v5, {L_F+12}")
    a("s_mov_b32 s13, 0")
    a.label("L_w5s")
    a("s_sleep 32")
    a("ds_read_b32 v6, v5")
    a("s_add_u32 s13, s13, 1")
    a("s_waitcnt lgkmcnt(0)")
    a("v_readfirstlane_b32 s6, v6")
    a("s_cmp_ge_u32 s13, 0x10000")
    a("s_cbranch_scc1 L_w5s_d")
    a(f"s_cmp_lt_u32 s6, {min(20, NSTAT-2)}")
    a("s_cbranch_scc1 L_w5s")
    a.label("L_w5s_d")
    a("v_lshlrev_b32 v9, 5, v2")
    a("v_cmp_gt_u32 vcc, 8, v2")
    a("s_mov_b32 s13, 0")
    a("s_and_b64 exec, exec, vcc")
    a.label("L_pollall")
    a("buffer_load_dword v10, v9, s[72:75], 0 offen sc1")
    a("s_add_u32 s13, s13, 1")
    a("s_waitcnt vmcnt(0)")
    a("v_cmp_gt_u32 vcc, 64, v10")
    a(f"s_cmp_ge_u32 s13, {SPIN_MAX}")
    a("s_cbranch_scc1 L_pollall_done")
    a("s_cbranch_vccz L_pollall_done")
    a("s_sleep 64")
    a("s_branch L_pollall")
    a.label("L_pollall_done")
    a("s_mov_b64 exec, s[58:59]")
    stamp(a, 12, 236, 237)
    a.label("L_h_bar3")
    a("s_barrier")
    a("s_branch L_tail")

    a.label("L_service")
    a("v_bfe_u32 v6, v2, 2, 2")
    a("v_lshl_add_u32 v6, v4, 3, v6")
    a("v_lshlrev_b32 v6, 5, v6")
    a("v_and_b32 v7, 3, v2")
    a("v_lshl_add_u32 v6, v7, 3, v6")
    a(f"v_add_u32 v10, {L_WQ}, v6")
    a("v_and_b32 v7, 7, v2")
    a("v_mul_u32_u24 v7, 896, v7")
    a("v_lshl_add_u32 v7, v4, 4, v7")
    a(f"v_add_u32 v7, {L_XN}, v7")
    a("s_waitcnt vmcnt(0)")
    stamp(a, 1, 236, 237)
    for j in range(14):
        a(f"ds_read_b64_tr_b16 v[{40+4*j}:{41+4*j}], v10 offset:{j*1024}")
        a(f"ds_read_b64_tr_b16 v[{42+4*j}:{43+4*j}], v10 offset:{j*1024+128}")
    ldsspin(0, 4, "L_spin0")
    stamp(a, 2, 236, 237)
    for j in range(14):
        a(f"ds_read_b128 v[{100+4*j}:{103+4*j}], v7 offset:{j*64}")
    for j in range(14):
        a(f"s_waitcnt lgkmcnt({13-j})")
        c = "0" if j == 0 else "v[32:35]"
        a(f"v_mfma_f32_16x16x32_bf16 v[32:35], v[{40+4*j}:{43+4*j}], v[{100+4*j}:{103+4*j}], {c}")
    a("v_cmp_gt_u32 vcc, 8, v3")
    a("v_lshlrev_b32 v5, 6, v3")
    a("v_lshl_add_u32 v5, v4, 4, v5")
    a("s_lshl_b32 s6, s39, 9")
    a("v_mov_b32 v37, s16")
    a("v_mov_b32 v39, s16")
    a(f"v_mov_b32 v6, {L_F+4}")
    a("s_sub_u32 s17, s16, 2")
    a("s_nop 1")
    a("v_cvt_pk_bf16_f32 v36, v32, v33")
    a("v_cvt_pk_bf16_f32 v38, v34, v35")
    a("s_and_b64 exec, exec, vcc")
    a(f"buffer_store_dwordx4 v[36:39], v5, s[52:55], s6 offen offset:{WS_Q} sc1")
    a("s_mov_b64 exec, 1")
    a("ds_write_b32 v6, v8")
    a("s_mov_b64 exec, s[58:59]")
    stamp(a, 3, 236, 237)
    a("v_lshrrev_b32 v5, 1, v2")
    a("v_lshlrev_b32 v5, 9, v5")
    a("v_and_b32 v6, 1, v2")
    a("v_lshl_add_u32 v5, v6, 5, v5")
    a("s_lshl_b32 s6, s96, 6")
    a("s_lshl_b32 s7, s4, 14")
    a("s_add_u32 s15, s6, s7")
    a("s_mov_b32 s13, 0")
    def qld(base):
        a(f"buffer_load_dwordx4 v[{base}:{base+3}], v5, s[52:55], s15 offen offset:{WS_Q} sc1")
        a(f"buffer_load_dwordx4 v[{base+4}:{base+7}], v5, s[52:55], s15 offen offset:{WS_Q+16} sc1")
    def qchk(base):
        a(f"v_subrev_u32 v20, s17, v{base+1}")
        a(f"v_subrev_u32 v21, s17, v{base+3}")
        a(f"v_subrev_u32 v22, s17, v{base+5}")
        a(f"v_subrev_u32 v23, s17, v{base+7}")
        a("v_max_u32 v20, v20, v21")
        a("v_max3_u32 v20, v20, v22, v23")
        a("v_cmp_lt_u32 vcc, 4, v20")
    qld(12)
    a.label("L_pq2")
    qld(24)
    a("s_waitcnt vmcnt(2)")
    qchk(12)
    a("s_cbranch_vccz L_pollq_done")
    qld(12)
    a("s_waitcnt vmcnt(2)")
    qchk(24)
    a("s_cbranch_vccz L_pq_useB")
    a("s_add_u32 s13, s13, 2")
    a("s_cmp_lt_u32 s13, 2047")
    a("s_cbranch_scc1 L_pq2")
    a("s_mov_b32 s13, 2047")
    a("s_branch L_pollq")
    a.label("L_pq_useB")
    a("v_mov_b32 v32, v24")
    a("v_mov_b32 v33, v26")
    a("v_mov_b32 v34, v28")
    a("v_mov_b32 v35, v30")
    a("s_branch L_pollq_wr")
    a.label("L_pollq")
    qld(12)
    a("s_waitcnt vmcnt(0)")
    a("s_cmp_lg_u32 s13, 2047")
    a("s_cbranch_scc1 L_pq_noat")
    a("s_mov_b64 exec, 1")
    a("buffer_atomic_add v8, v9, s[72:75], 0 offen sc1")
    a("s_mov_b64 exec, s[58:59]")
    a.label("L_pq_noat")
    a("s_add_u32 s13, s13, 1")
    qchk(12)
    a("s_cbranch_vccz L_pollq_done")
    a("buffer_load_dword v10, v9, s[72:75], 0 offen sc1")
    a("s_waitcnt vmcnt(0)")
    a("v_readfirstlane_b32 s6, v10")
    a(f"s_cmp_ge_u32 s13, {SPIN_MAX}")
    a("s_cbranch_scc1 L_pollq_done")
    a("s_cmp_ge_u32 s6, 64")
    a("s_cbranch_scc0 L_pollq")
    qld(12)
    a("s_waitcnt vmcnt(0)")
    a.label("L_pollq_done")
    a("v_mov_b32 v32, v12")
    a("v_mov_b32 v33, v14")
    a("v_mov_b32 v34, v16")
    a("v_mov_b32 v35, v18")
    a.label("L_pollq_wr")
    stamp(a, 4, 236, 237)
    a("v_lshlrev_b32 v5, 4, v2")
    a(f"v_add_u32 v5, {L_QL}, v5")
    a(f"v_mov_b32 v6, {L_F+8}")
    a("ds_write_b128 v5, v[32:35]")
    a("s_waitcnt lgkmcnt(0)")
    a("s_mov_b64 exec, 1")
    a("ds_write_b32 v6, v8")
    a("s_cmp_ge_u32 s13, 2048")
    a("s_cbranch_scc1 L_pq_noat2")
    a("buffer_atomic_add v8, v9, s[72:75], 0 offen sc1")
    a.label("L_pq_noat2")
    a("s_mov_b64 exec, s[58:59]")
    a("s_waitcnt vmcnt(1)")
    stamp(a, 5, 236, 237)
    a("s_cmp_ge_u32 s38, 28")
    a("s_cbranch_scc1 L_nowo")
    a("v_lshrrev_b32 v5, 2, v2")
    a("v_mul_u32_u24 v5, 896, v5")
    a("v_and_b32 v6, 3, v2")
    a("v_lshl_add_u32 v5, v6, 4, v5")
    a("s_mul_i32 s6, s101, 229376")
    a("s_lshl_b32 s7, s100, 6")
    a("s_add_u32 s6, s6, s7")
    a(f"s_mov_b32 s7, {L_WO}")
    for p in range(16):
        a("s_mov_b32 m0, s7")
        a("s_add_u32 s7, s7, 1024")
        a("buffer_load_dwordx4 v5, s[68:71], s6 offen lds")
        a("s_add_u32 s6, s6, 14336")
    a.label("L_nowo")
    if VX: a("s_branch L_skipdyn")
    a("s_lshl_b32 s6, s4, 3")
    a("s_add_u32 s6, s6, s96")
    a("s_lshl_b32 s6, s6, 8")
    a(f"s_add_u32 s25, s6, {WS_CNT}")
    a("v_mov_b32 v14, 0")
    a("s_mov_b32 s13, 0")
    a.label("L_pcnt")
    a("buffer_load_dword v10, v14, s[52:55], s25 offen sc1")
    a("s_add_u32 s13, s13, 1")
    a("s_waitcnt vmcnt(0)")
    a("v_readfirstlane_b32 s6, v10")
    a("s_lshr_b32 s6, s6, 8")
    a("s_sub_u32 s6, s6, s17")
    a("s_and_b32 s6, s6, 0xffffff")
    a("s_cmp_le_u32 s6, 4")
    a("s_cbranch_scc1 L_pcnt_done")
    a("s_sleep 16")
    a("s_cmp_lt_u32 s13, 1024")
    a("s_cbranch_scc1 L_pcnt")
    a("buffer_load_dword v10, v9, s[72:75], 0 offen sc1")
    a("s_waitcnt vmcnt(0)")
    a("v_readfirstlane_b32 s6, v10")
    a(f"s_cmp_ge_u32 s13, {SPIN_MAX}")
    a("s_cbranch_scc1 L_pcnt_done")
    a("s_cmp_ge_u32 s6, 64")
    a("s_cbranch_scc0 L_pcnt")
    a.label("L_pcnt_done")
    a("s_mov_b32 s22, 1")
    a(f"s_mov_b32 s23, {NSTAT}")
    a(f"s_mov_b32 s24, {NSTAT}")
    a(f"v_mov_b32 v11, {L_F+12}")
    a("v_mov_b32 v10, s22")
    a("s_waitcnt vmcnt(0)")
    a.label("L_dyn")
    a("ds_read_b32 v6, v11")
    a("s_waitcnt lgkmcnt(0)")
    a("v_readfirstlane_b32 s6, v6")
    a(f"s_add_u32 s6, s6, {LOOK}")
    a("s_cmp_ge_u32 s6, s23")
    a("s_cbranch_scc1 L_dyn_go")
    a("s_sleep 4")
    a("s_branch L_dyn")
    a.label("L_dyn_go")
    if STAMP:
        a(f"s_cmp_lg_u32 s23, {NSTAT}")
        a("s_cbranch_scc1 L_sq1")
        a("s_memrealtime s[26:27]")
        a("s_waitcnt lgkmcnt(0)")
        a.label("L_sq1")
    a(f"s_sub_u32 s6, s23, {NSTAT}")
    a("s_lshl_b64 exec, 1, s6")
    a("buffer_atomic_add v10, v14, s[52:55], s25 offen sc0 sc1")
    a("s_mov_b64 exec, s[58:59]")
    a("s_add_u32 s23, s23, 1")
    a("s_sub_u32 s6, s23, s24")
    a(f"s_cmp_le_u32 s6, {DEPTH}")
    a("s_cbranch_scc1 L_dyn")
    a(f"s_waitcnt vmcnt({DEPTH})")
    if STAMP:
        a(f"s_cmp_lg_u32 s24, {NSTAT}")
        a("s_cbranch_scc1 L_sq2")
        a("s_memrealtime s[28:29]")
        a("s_waitcnt lgkmcnt(0)")
        a.label("L_sq2")
    a(f"s_sub_u32 s6, s24, {NSTAT}")
    a("v_readlane_b32 s6, v10, s6")
    a("s_and_b32 s6, s6, 0xff")
    a(f"s_add_u32 s7, s6, {4*NSTAT}")
    a(f"s_cmp_lt_u32 s6, {128-4*NSTAT}")
    a("s_cselect_b32 s7, s7, 0x1000")
    a("s_lshl_b32 s6, s24, 2")
    a(f"s_add_u32 s6, s6, {L_NEXT}")
    a("v_mov_b32 v12, s6")
    a("v_mov_b32 v13, s7")
    a("ds_write_b32 v12, v13")
    a("s_add_u32 s24, s24, 1")
    a("s_cmp_lt_u32 s7, 128")
    a("s_cbranch_scc1 L_dyn")
    a("v_add_u32 v12, 4, v12")
    a("ds_write_b32 v12, v13")
    a("s_waitcnt vmcnt(0) lgkmcnt(0)")
    if STAMP:
        stamp(a, 16, 236, 237)
        for (sr, idx) in ((26, 14), (28, 15)):
            a(f"v_mov_b32 v236, s{sr}")
            a("s_lshl_b32 s42, s2, 7")
            a(f"s_add_u32 s42, s42, {0x200000 + idx*4}")
            a("v_mov_b32 v237, 0")
            a("s_mov_b64 exec, 1")
            a("buffer_store_dword v236, v237, s[52:55], s42 offen")
            a("s_mov_b64 exec, s[58:59]")
    a.label("L_skipdyn")
    a("s_waitcnt vmcnt(0)")
    a("s_barrier")
    stamp(a, 7, 236, 237)

    a("s_branch L_tail")

    a.label("L_stream")
    rest_srds()
    if STAMP:
        a("s_cmp_lg_u32 s3, 0")
        a("s_cbranch_scc1 L_st0")
        stamp(a, 0)
        a.label("L_st0")
    a("v_lshrrev_b32 v7, 5, v2")
    a("v_and_b32 v8, 31, v2")
    for p in range(8):
        a(f"v_add_u32 v5, {2*p}, v7")
        a("v_xor_b32 v6, v8, v5")
        a("v_lshlrev_b32 v6, 4, v6")
        a(f"v_lshl_add_u32 v{KOFF+p}, v7, 9, v6")
        a(f"v_add_u32 v{KOFF+p}, {(p//GR)*GR*4096+(p%GR)*1024-(p&3)*1024}, v{KOFF+p}")
        a("v_and_b32 v5, 7, v5")
        a("v_lshlrev_b32 v5, 1, v5")
        a("v_xor_b32 v6, v8, v5")
        a("v_lshlrev_b32 v6, 4, v6")
        a(f"v_lshl_add_u32 v{VOFF+p}, v7, 9, v6")
        a(f"v_add_u32 v{VOFF+p}, {(p//GR)*GR*4096+(p%GR)*1024-(p&3)*1024}, v{VOFF+p}")
    a("s_lshl_b32 s8, s3, 15")
    a("s_lshl_b32 s20, s96, 3")
    a("s_add_u32 s20, s20, s4")
    a("s_lshl_b32 s20, s20, 22")
    a(f"s_mul_i32 s6, s3, {1024*GR}")
    a("s_add_u32 s20, s20, s6")
    a(f"s_mul_i32 s6, s97, {NSTAT*32768}")
    a("s_add_u32 s9, s20, s6")

    def issue(kind, slot):
        srd_ = "s[44:47]" if kind == "K" else "s[48:51]"
        so = "s9"
        off = KOFF if kind == "K" else VOFF
        ntk = NT if kind == "K" else NTV
        a(f"s_add_u32 s11, s8, {slot*8192}")
        a("s_mov_b32 m0, s11")
        a(f"s_add_u32 s12, s8, {slot*8192+4096}")
        for p in range(4):
            a(f"buffer_load_dwordx4 v{off+p}, {srd_}, {so} offen offset:{p*1024}{ntk} lds")
        a("s_mov_b32 m0, s12")
        a("s_nop 0")
        for p in range(4):
            a(f"buffer_load_dwordx4 v{off+4+p}, {srd_}, {so} offen offset:{p*1024}{ntk} lds")

    units = [("K", 0), ("V", 1), ("K", 2), ("V", 3)]
    a("s_barrier")
    assert PRE == 2
    for u in units[:2]: issue(*u)
    a("s_add_u32 s9, s9, 32768")
    for jj in range(4):
        a(f"v_add_u32 v5, {4*jj}, v4")
        a("v_xor_b32 v5, v5, v3")
        a("v_lshlrev_b32 v5, 4, v5")
        a(f"v_lshl_add_u32 v5, v3, 9, v5")
        a(f"v_add_u32 v{KRA+jj}, s8, v5")
    a("v_bfe_u32 v5, v2, 2, 2")
    a("v_lshl_add_u32 v5, v4, 2, v5")
    a("v_and_b32 v6, 7, v5")
    a("v_and_b32 v7, 3, v2")
    a("v_lshlrev_b32 v7, 3, v7")
    a("v_lshl_add_u32 v7, v5, 9, v7")
    a("v_add_u32 v7, s8, v7")
    for nn in range(8):
        a(f"v_xor_b32 v5, {nn}, v6")
        a(f"v_lshl_add_u32 v{VRA+nn}, v5, 5, v7")
    for i in range(64):
        a(f"v_mov_b32 v{OA+i}, 0")
    a(f"v_mov_b32 v{M}, 0xf149f2ca")
    a(f"v_mov_b32 v{L}, 0")
    a(f"s_mov_b32 s14, {hex(f2u(SCALE_C))}")
    if PRE < 4:
        ldsspin(G1, 1, "L_spin1")
        for u in units[PRE:]: issue(*u)
    ldsspin(2, 1, "L_spin2")
    a("v_and_b32 v5, 1, v2")
    a("v_lshlrev_b32 v5, 9, v5")
    a("v_lshl_add_u32 v5, v4, 4, v5")
    a(f"v_add_u32 v5, {L_QL}, v5")
    for j in range(8):
        a(f"ds_read_b128 v[{QF+4*j}:{QF+4*j+3}], v5 offset:{j*64}")
    a("s_waitcnt lgkmcnt(0)")
    a(f"v_mov_b32 v235, {L_NEXT+8}")
    a(f"v_mov_b32 v238, {L_F+12}")

    def step(kslot, vslot, do_issue, wk, wv, tag):
        a("s_cmp_eq_u32 s15, 1000")
        a(f"s_cbranch_scc1 L_wk_{tag}")
        a("s_waitcnt vmcnt(0)")
        a.label(f"L_wk_{tag}")
        a(f"s_waitcnt vmcnt({wk})")
        a("v_mov_b32 v237, s13")
        a("ds_read_b32 v236, v235")
        if VX != 2: a("ds_write_b32 v238, v237")
        for j in range(8):
            a(f"ds_read_b128 v[{KF+4*j}:{KF+4*j+3}], v{KRA+(j&3)} offset:{kslot*8192 + (j>>2)*256}")
        for j in range(8):
            a(f"s_waitcnt lgkmcnt({7-j})")
            c = "0" if j == 0 else f"v[{SA}:{SA+3}]"
            a(f"v_mfma_f32_16x16x32_bf16 v[{SA}:{SA+3}], v[{KF+4*j}:{KF+4*j+3}], v[{QF+4*j}:{QF+4*j+3}], {c}")
        a("v_readfirstlane_b32 s6, v236")
        a("s_cmp_lg_u32 s6, -1")
        a(f"s_cbranch_scc1 L_nx_{tag}")
        a.label(f"L_nxs_{tag}")
        a("s_sleep 1")
        a("ds_read_b32 v236, v235")
        a("s_waitcnt lgkmcnt(0)")
        a("v_readfirstlane_b32 s6, v236")
        a("s_cmp_eq_u32 s6, -1")
        a(f"s_cbranch_scc1 L_nxs_{tag}")
        a.label(f"L_nx_{tag}")
        a("v_add_u32 v235, 4, v235")
        a("s_lshl_b32 s7, s6, 15")
        a("s_add_u32 s9, s20, s7")
        a("s_add_u32 s7, s13, 2")
        a("s_min_u32 s7, s7, s15")
        a("s_cmp_ge_u32 s6, 128")
        a("s_cselect_b32 s15, s7, s15")
        a(f"s_cbranch_scc1 L_noik_{tag}")
        issue("K", kslot)
        a.label(f"L_noik_{tag}")
        a("s_nop 3")
        a(f"v_cvt_pk_bf16_f32 v{T0}, v{SA}, v{SA+1}")
        a(f"v_cvt_pk_bf16_f32 v{T1}, v{SA+2}, v{SA+3}")
        a(f"v_lshlrev_b32 v{SA}, 16, v{T0}")
        a(f"v_and_b32 v{SA+1}, 0xffff0000, v{T0}")
        a(f"v_lshlrev_b32 v{SA+2}, 16, v{T1}")
        a(f"v_and_b32 v{SA+3}, 0xffff0000, v{T1}")
        a(f"v_max3_f32 v{T0}, v{SA}, v{SA+1}, v{SA+2}")
        a(f"v_max_f32 v{T0}, v{T0}, v{SA+3}")
        group_reduce(a, "v_max_f32", T0, T1)
        a(f"v_mul_f32 v{T0}, s14, v{T0}")
        a(f"v_max_f32 v{T0}, v{T0}, v{M}")
        a(f"v_sub_f32 v{AL}, v{M}, v{T0}")
        a(f"v_exp_f32 v{AL}, v{AL}")
        a(f"v_mov_b32 v{M}, v{T0}")
        for r in range(4):
            a(f"v_fma_f32 v{SA+r}, v{SA+r}, s14, -v{T0}")
        for r in range(4):
            a(f"v_exp_f32 v{SA+r}, v{SA+r}")
        a(f"v_cmp_neq_f32 vcc, 1.0, v{AL}")
        a(f"v_cvt_pk_bf16_f32 v{PB}, v{SA}, v{SA+1}")
        a(f"v_cvt_pk_bf16_f32 v{PB+1}, v{SA+2}, v{SA+3}")
        a(f"v_add_f32 v{T1}, v{SA}, v{SA+1}")
        a(f"v_add_f32 v{T2}, v{SA+2}, v{SA+3}")
        a(f"v_add_f32 v{T1}, v{T1}, v{T2}")
        a(f"v_fma_f32 v{L}, v{L}, v{AL}, v{T1}")
        a(f"s_cbranch_vccz L_nors_{tag}")
        for i in range(64):
            a(f"v_mul_f32 v{OA+i}, v{OA+i}, v{AL}")
        a.label(f"L_nors_{tag}")
        a("s_cmp_eq_u32 s15, 1000")
        a(f"s_cbranch_scc1 L_wv_{tag}")
        a("s_waitcnt vmcnt(0)")
        a.label(f"L_wv_{tag}")
        a(f"s_waitcnt vmcnt({wv})")
        for nn in range(16):
            a(f"ds_read_b64_tr_b16 v[{VF+2*nn}:{VF+2*nn+1}], v{VRA+(nn&7)} offset:{vslot*8192 + (nn>>3)*256}")
        for nn in range(16):
            a(f"s_waitcnt lgkmcnt({15-nn})")
            a(f"v_mfma_f32_16x16x16_bf16 v[{OA+4*nn}:{OA+4*nn+3}], v[{VF+2*nn}:{VF+2*nn+1}], v[{PB}:{PB+1}], v[{OA+4*nn}:{OA+4*nn+3}]")
        a("s_cmp_lg_u32 s15, 1000")
        a(f"s_cbranch_scc1 L_noiv_{tag}")
        issue("V", vslot)
        a.label(f"L_noiv_{tag}")

    a("s_mov_b32 s13, 0")
    a("s_mov_b32 s15, 1000")
    a.label("L_loop")
    step(0, 1, True, 24, 24, "a")
    a("s_add_u32 s13, s13, 1")
    a("s_cmp_ge_u32 s13, s15")
    a("s_cbranch_scc1 L_loop_done")
    step(2, 3, True, 24, 24, "b")
    a("s_add_u32 s13, s13, 1")
    a("s_cmp_lt_u32 s13, s15")
    a("s_cbranch_scc1 L_loop")
    a.label("L_loop_done")
    a("s_waitcnt vmcnt(0)")
    if STAMP:
        a("s_cmp_lg_u32 s3, 0")
        a("s_cbranch_scc1 L_st6")
        stamp(a, 6)
        a.label("L_st6")
    group_reduce(a, "v_add_f32", L, T1)
    a("s_nop 7")
    a("v_cmp_gt_u32 vcc, 2, v3")
    a("v_lshlrev_b32 v5, 10, v3")
    a("v_lshl_add_u32 v5, v4, 4, v5")
    a("v_add_u32 v5, s8, v5")
    a("s_and_b64 exec, exec, vcc")
    for nn in range(16):
        a(f"ds_write_b128 v5, v[{OA+4*nn}:{OA+4*nn+3}] offset:{nn*64}")
    a("v_cmp_gt_u32 vcc, 2, v2")
    a("v_lshlrev_b32 v5, 3, v2")
    a("v_add_u32 v5, s8, v5")
    a("s_and_b64 exec, exec, vcc")
    a(f"ds_write_b64 v5, v[{M}:{M+1}] offset:2048")
    a("s_mov_b64 exec, s[58:59]")
    a("s_waitcnt lgkmcnt(0)")
    a("s_barrier")
    a("v_lshrrev_b32 v5, 7, v0")
    a("v_lshlrev_b32 v6, 3, v5")
    a("v_lshlrev_b32 v7, 3, v0")
    a("v_add_u32 v9, 0x10000, v6")
    a("v_add_u32 v10, 0x10000, v7")
    for w in range(4):
        a(f"ds_read_b64 v[{16+2*w}:{17+2*w}], v{6 if w<2 else 9} offset:{(w&1)*32768+2048}")
        a(f"ds_read_b64 v[{24+2*w}:{25+2*w}], v{7 if w<2 else 10} offset:{(w&1)*32768}")
    a("s_waitcnt lgkmcnt(0)")
    a("v_max_f32 v32, v16, v18")
    a("v_max3_f32 v32, v32, v20, v22")
    for w in range(4):
        a(f"v_sub_f32 v{16+2*w}, v{16+2*w}, v32")
        a(f"v_exp_f32 v{16+2*w}, v{16+2*w}")
    a("s_nop 0")
    a("v_mul_f32 v33, v16, v17")
    a("v_mul_f32 v34, v16, v24")
    a("v_mul_f32 v35, v16, v25")
    for w in range(1, 4):
        a(f"v_fmac_f32 v33, v{16+2*w}, v{17+2*w}")
        a(f"v_fmac_f32 v34, v{16+2*w}, v{24+2*w}")
        a(f"v_fmac_f32 v35, v{16+2*w}, v{25+2*w}")
    a("s_lshl_b32 s6, s98, 11")
    a(f"s_add_u32 s6, s6, {WS_OP}")
    a("buffer_store_dwordx2 v[34:35], v7, s[52:55], s6 offen sc1")
    a("v_and_b32 v8, 127, v0")
    a("v_cmp_gt_u32 vcc, 16, v8")
    a("v_lshlrev_b32 v8, 3, v8")
    a("v_lshl_add_u32 v8, v5, 7, v8")
    a("s_lshl_b32 s6, s98, 8")
    a(f"s_add_u32 s6, s6, {WS_ML}")
    a("s_and_b64 exec, exec, vcc")
    a("s_cbranch_execz L_noml")
    a("buffer_store_dwordx2 v[32:33], v8, s[52:55], s6 offen sc1")
    a.label("L_noml")
    a("s_mov_b64 exec, s[58:59]")
    a("s_branch L_tail")

    a.label("L_tail")
    a("s_cmp_ge_u32 s38, 14")
    a("s_cselect_b32 s99, 1, 0")
    a("s_mul_i32 s6, s99, 14")
    a("s_sub_u32 s100, s38, s6")
    a("s_lshl_b32 s101, s4, 1")
    a("s_add_u32 s101, s101, s99")
    a("s_cmp_eq_u32 s3, 7")
    a("s_cbranch_scc1 L_now")
    a("v_mul_u32_u24 v5, 56, v2")
    for (base, sr) in ((128, 80), (144, 84), (160, 88)):
        for i in range(3):
            a(f"buffer_load_dwordx4 v[{base+4*i}:{base+4*i+3}], v5, s[{sr}:{sr+3}], 0 offen offset:{16*i}")
        a(f"buffer_load_dwordx2 v[{base+12}:{base+13}], v5, s[{sr}:{sr+3}], 0 offen offset:48")
    a("v_mov_b32 v6, 0")
    a("buffer_load_ushort v174, v6, s[92:95], 0 offen")
    a.label("L_now")
    a("s_cmp_ge_u32 s38, 28")
    a("s_cbranch_scc1 L_stageD")
    a("s_cmp_ge_u32 s3, 4")
    a("s_cbranch_scc1 L_bar4")
    a("v_lshrrev_b32 v5, 5, v0")
    a("v_and_b32 v6, 31, v0")
    a("v_lshlrev_b32 v7, 13, v5")
    a("v_lshl_add_u32 v7, v6, 5, v7")
    a("v_lshlrev_b32 v8, 10, v5")
    a("s_lshl_b32 s10, s4, 16")
    a("s_lshl_b32 s11, s99, 10")
    a("s_add_u32 s10, s10, s11")
    a(f"s_add_u32 s10, s10, {WS_OP}")
    a("s_add_u32 s11, s10, 4096")
    a("s_lshl_b32 s12, s4, 13")
    a("s_lshl_b32 s6, s99, 7")
    a("s_add_u32 s12, s12, s6")
    a(f"s_add_u32 s12, s12, {WS_ML}")
    a("v_and_b32 v9, 31, v2")
    a("v_lshlrev_b32 v9, 8, v9")
    a("s_mov_b32 s13, 0")
    if BULK & 1: a("s_branch L_pollC")
    a.label("L_pollC0")
    a("buffer_load_dwordx2 v[16:17], v9, s[52:55], s12 offen sc1")
    a("s_add_u32 s13, s13, 1")
    a("s_waitcnt vmcnt(0)")
    anysent(a, range(16, 18), 56)
    a("v_cmp_eq_u32 vcc, -1, v56")
    a(f"s_cmp_ge_u32 s13, {SPIN_MAX}")
    a("s_cbranch_scc1 L_pollC")
    a("s_cbranch_vccz L_pollC")
    a("s_sleep 8")
    a("s_branch L_pollC0")
    a.label("L_pollC")
    if STAMP:
        a("s_cmp_lg_u32 s3, 0")
        a("s_cbranch_scc1 L_st19")
        stamp(a, 19)
        a.label("L_st19")
    for s in range(4):
        a(f"buffer_load_dwordx2 v[{48+2*s}:{49+2*s}], v8, s[52:55], s12 offen offset:{s*256} sc1")
    for s in range(4):
        a(f"buffer_load_dwordx4 v[{16+8*s}:{19+8*s}], v7, s[52:55], s{10+(s>>1)} offen offset:{(s&1)*2048} sc1")
        a(f"buffer_load_dwordx4 v[{20+8*s}:{23+8*s}], v7, s[52:55], s{10+(s>>1)} offen offset:{(s&1)*2048+16} sc1")
    a("s_add_u32 s13, s13, 1")
    a("s_waitcnt vmcnt(0)")
    anysent(a, range(16, 56), 56)
    a("v_cmp_eq_u32 vcc, -1, v56")
    a(f"s_cmp_ge_u32 s13, {SPIN_MAX}")
    a("s_cbranch_scc1 L_pollC_done")
    a("s_cbranch_vccz L_pollC_done")
    a("s_sleep 4")
    a("s_branch L_pollC")
    a.label("L_pollC_done")
    if STAMP:
        a("s_cmp_lg_u32 s3, 0")
        a("s_cbranch_scc1 L_st8")
        stamp(a, 8)
        a.label("L_st8")
    a("v_max_f32 v56, v48, v50")
    a("v_max3_f32 v56, v56, v52, v54")
    for s in range(4):
        a(f"v_sub_f32 v{48+2*s}, v{48+2*s}, v56")
        a(f"v_exp_f32 v{48+2*s}, v{48+2*s}")
    a("s_nop 0")
    a("v_mul_f32 v57, v48, v49")
    for s in range(1, 4):
        a(f"v_fmac_f32 v57, v{48+2*s}, v{49+2*s}")
    a("v_rcp_f32 v57, v57")
    a("s_nop 0")
    for s in range(4):
        a(f"v_mul_f32 v{48+2*s}, v{48+2*s}, v57")
    for i in range(8):
        a(f"v_mul_f32 v{60+i}, v48, v{16+i}")
        for s in range(1, 4):
            a(f"v_fmac_f32 v{60+i}, v{48+2*s}, v{16+8*s+i}")
    pack8(a, 60, 68)
    a("v_lshlrev_b32 v6, 4, v0")
    a(f"v_add_u32 v6, {L_O}, v6")
    a("ds_write_b128 v6, v[68:71]")
    a("s_waitcnt lgkmcnt(0)")
    a.label("L_bar4")
    a("s_barrier")
    a("s_cmp_lg_u32 s3, 0")
    a("s_cbranch_scc1 L_stageD")
    a("v_bfe_u32 v5, v2, 2, 2")
    a("v_lshl_add_u32 v5, v4, 3, v5")
    a("v_lshlrev_b32 v5, 6, v5")
    a("v_and_b32 v6, 3, v2")
    a("v_lshl_add_u32 v5, v6, 3, v5")
    a(f"v_add_u32 v5, {L_WO}, v5")
    a("v_and_b32 v6, 7, v2")
    a("v_lshlrev_b32 v6, 9, v6")
    a("v_lshl_add_u32 v6, v4, 4, v6")
    a(f"v_add_u32 v6, {L_O}, v6")
    for j in range(8):
        a(f"ds_read_b128 v[{48+4*j}:{51+4*j}], v6 offset:{j*64}")
        a(f"ds_read_b64_tr_b16 v[{16+4*j}:{17+4*j}], v5 offset:{j*2048}")
        a(f"ds_read_b64_tr_b16 v[{18+4*j}:{19+4*j}], v5 offset:{j*2048+256}")
        a(f"ds_read_b64_tr_b16 v[{88+4*j}:{89+4*j}], v5 offset:{j*2048+32}")
        a(f"ds_read_b64_tr_b16 v[{90+4*j}:{91+4*j}], v5 offset:{j*2048+256+32}")
    a("s_waitcnt lgkmcnt(0)")
    for j in range(8):
        c0 = "0" if j == 0 else "v[80:83]"
        c1 = "0" if j == 0 else "v[84:87]"
        a(f"v_mfma_f32_16x16x32_bf16 v[80:83], v[{16+4*j}:{19+4*j}], v[{48+4*j}:{51+4*j}], {c0}")
        a(f"v_mfma_f32_16x16x32_bf16 v[84:87], v[{88+4*j}:{91+4*j}], v[{48+4*j}:{51+4*j}], {c1}")
    a("v_cmp_gt_u32 vcc, 8, v3")
    a("v_lshlrev_b32 v5, 7, v3")
    a("v_lshl_add_u32 v5, v4, 4, v5")
    a(f"v_add_u32 v5, {L_QL}, v5")
    a("v_lshlrev_b32 v6, 4, v2")
    a(f"v_add_u32 v7, {L_QL}, v6")
    a("s_lshl_b32 s6, s4, 1")
    a("s_mul_i32 s6, s6, 14")
    a("s_add_u32 s6, s6, s38")
    a("s_lshl_b32 s6, s6, 10")
    a(f"s_add_u32 s6, s6, {WS_P2}")
    a("s_and_b64 exec, exec, vcc")
    a("ds_write_b128 v5, v[80:83]")
    a("ds_write_b128 v5, v[84:87] offset:64")
    a("s_mov_b64 exec, s[58:59]")
    a("s_waitcnt lgkmcnt(0)")
    a("ds_read_b128 v[80:83], v7")
    a("s_waitcnt lgkmcnt(0)")
    a("buffer_store_dwordx4 v[80:83], v6, s[52:55], s6 offen sc1")
    if STAMP:
        a("s_cmp_lg_u32 s3, 0")
        a("s_cbranch_scc1 L_st9")
        stamp(a, 9)
        a("s_waitcnt vmcnt(0)")
        stamp(a, 18)
        a.label("L_st9")

    a.label("L_stageD")
    a("s_lshr_b32 s96, s2, 5")
    a("s_and_b32 s97, s2, 31")
    a("s_cmp_lg_u32 s3, 7")
    a("s_cbranch_scc1 L_bar5")
    a("v_lshrrev_b32 v5, 2, v2")
    a("v_lshlrev_b32 v5, 10, v5")
    a("v_and_b32 v6, 3, v2")
    a("v_lshl_add_u32 v5, v6, 5, v5")
    a("v_mov_b32 v6, 0x7fff0000")
    a("v_cndmask_b32 v5, v6, v5, s[56:57]")
    a("v_lshlrev_b32 v7, 4, v2")
    a("v_cndmask_b32 v7, v6, v7, s[56:57]")
    a("s_mul_i32 s6, s96, 896")
    a("buffer_load_dwordx4 v[8:11], v7, s[60:63], s6 offen")
    a("s_mov_b32 s13, 0")
    a.label("L_pollD")
    a("s_lshl_b32 s6, s96, 7")
    a(f"s_add_u32 s6, s6, {WS_P2}")
    for h in range(16):
        a(f"buffer_load_dwordx4 v[{128+8*h}:{131+8*h}], v5, s[52:55], s6 offen sc1")
        a(f"buffer_load_dwordx4 v[{132+8*h}:{135+8*h}], v5, s[52:55], s6 offen offset:16 sc1")
        a("s_add_u32 s6, s6, 14336")
    a("s_add_u32 s13, s13, 1")
    a("s_waitcnt vmcnt(0)")
    anysent(a, range(128, 256), 12)
    a("v_cmp_eq_u32 vcc, -1, v12")
    a(f"s_cmp_ge_u32 s13, {SPIN_MAX}")
    a("s_cbranch_scc1 L_pollD_done")
    a("s_cbranch_vccz L_pollD_done")
    a("s_sleep 4")
    a("s_branch L_pollD")
    a.label("L_pollD_done")
    stamp(a, 10, 13, 14)
    for h in range(1, 16):
        for i in range(8):
            a(f"v_add_f32 v{128+i}, v{128+i}, v{128+8*h+i}")
    unpack8(a, 8, 16)
    for i in range(0, 8, 2):
        bf16r2(a, 128+i, 129+i, 12)
        a(f"v_add_f32 v{16+i}, v{16+i}, v{128+i}")
        a(f"v_add_f32 v{17+i}, v{17+i}, v{129+i}")
        bf16r2(a, 16+i, 17+i, 12)
    a("v_lshlrev_b32 v5, 5, v2")
    a(f"v_add_u32 v5, {L_H}, v5")
    a("s_mov_b64 exec, s[56:57]")
    a("ds_write_b128 v5, v[16:19]")
    a("ds_write_b128 v5, v[20:23] offset:16")
    a("s_mov_b64 exec, s[58:59]")
    layernorm8(a, 16, 32, 33, 34, 56)
    for i in range(8):
        a(f"v_cndmask_b32 v{16+i}, 0, v{16+i}, s[56:57]")
    layernorm8(a, 16, 32, 33, 34, 56)
    a("s_mov_b64 exec, s[56:57]")
    a(f"ds_write_b128 v5, v[16:19] offset:{L_T-L_H}")
    a(f"ds_write_b128 v5, v[20:23] offset:{L_T-L_H+16}")
    a("s_mov_b64 exec, s[58:59]")
    a("s_waitcnt lgkmcnt(0)")
    stamp(a, 11, 13, 14)
    a("s_barrier")
    a("s_branch L_done")
    a.label("L_bar5")
    a("s_waitcnt vmcnt(0)")
    for i in range(14):
        a(f"v_lshlrev_b32 v{16+2*i}, 16, v{128+i}")
        a(f"v_and_b32 v{17+2*i}, 0xffff0000, v{128+i}")
        a(f"v_lshlrev_b32 v{44+2*i}, 16, v{144+i}")
        a(f"v_and_b32 v{45+2*i}, 0xffff0000, v{144+i}")
    a("v_lshlrev_b32 v174, 16, v174")
    C1 = -2.0 * LOG2E * math.sqrt(2.0/math.pi)
    C2 = C1 * 0.044715
    a(f"v_mov_b32 v72, {hex(f2u(C1))}")
    a(f"v_mov_b32 v73, {hex(f2u(C1))}")
    a(f"v_mov_b32 v74, {hex(f2u(C2))}")
    a(f"v_mov_b32 v75, {hex(f2u(C2))}")
    a("v_mov_b32 v76, 1.0")
    a("v_mov_b32 v77, 1.0")
    a("v_mov_b32 v78, 0")
    a("v_mov_b32 v79, 0")
    a("s_mul_i32 s6, s97, 56")
    a("s_lshl_b32 s7, s3, 3")
    a("s_add_u32 s6, s6, s7")
    a(f"s_add_u32 s6, s6, {L_H}")
    a("v_mov_b32 v5, s6")
    a("s_barrier")
    a(f"ds_read_b64 v[80:81], v5 offset:{L_T-L_H}")
    a("ds_read_b64 v[82:83], v5")
    a("s_waitcnt lgkmcnt(0)")
    for i in range(14):
        U = [84, 92]; Tt = [86, 94]; C = [88, 96]
        for d in range(2):
            osel = "op_sel_hi:[0,1]" if d == 0 else "op_sel:[1,0] op_sel_hi:[1,1]"
            a(f"v_pk_mul_f32 v[{U[d]}:{U[d]+1}], v[80:81], v[{16+2*i}:{17+2*i}] {osel}")
        for d in range(2):
            bf16r2(a, U[d], U[d]+1, C[d])
        for d in range(2):
            a(f"v_pk_add_f32 v[{U[d]}:{U[d]+1}], v[{U[d]}:{U[d]+1}], v[{44+2*i}:{45+2*i}]")
        for d in range(2):
            bf16r2(a, U[d], U[d]+1, C[d])
        for d in range(2):
            a(f"v_pk_mul_f32 v[{Tt[d]}:{Tt[d]+1}], v[{U[d]}:{U[d]+1}], v[{U[d]}:{U[d]+1}]")
        for d in range(2):
            a(f"v_pk_fma_f32 v[{Tt[d]}:{Tt[d]+1}], v[{Tt[d]}:{Tt[d]+1}], v[74:75], v[72:73]")
        for d in range(2):
            a(f"v_pk_mul_f32 v[{Tt[d]}:{Tt[d]+1}], v[{Tt[d]}:{Tt[d]+1}], v[{U[d]}:{U[d]+1}]")
        for d in range(2):
            a(f"v_exp_f32 v{Tt[d]}, v{Tt[d]}")
            a(f"v_exp_f32 v{Tt[d]+1}, v{Tt[d]+1}")
        for d in range(2):
            a(f"v_pk_add_f32 v[{Tt[d]}:{Tt[d]+1}], v[{Tt[d]}:{Tt[d]+1}], v[76:77]")
        for d in range(2):
            a(f"v_rcp_f32 v{Tt[d]}, v{Tt[d]}")
            a(f"v_rcp_f32 v{Tt[d]+1}, v{Tt[d]+1}")
        for d in range(2):
            a(f"v_pk_mul_f32 v[{Tt[d]}:{Tt[d]+1}], v[{Tt[d]}:{Tt[d]+1}], v[{U[d]}:{U[d]+1}]")
        for d in range(2):
            a(f"v_cvt_pk_bf16_f32 v{C[d]}, v{Tt[d]}, v{Tt[d]+1}")
        for d in range(2):
            a(f"v_dot2_f32_bf16 v{78+d}, v{C[d]}, v{160+i}, v{78+d}")
    a("s_nop 3")
    wave_reduce2(a, "v_add_f32", 78, 84, 79, 85)
    bf16r2(a, 78, 79, 84)
    a("v_add_f32 v78, v78, v174")
    a("v_add_f32 v79, v79, v174")
    bf16r2(a, 78, 79, 84)
    a("v_add_f32 v78, v78, v82")
    a("v_add_f32 v79, v79, v83")
    a("v_cvt_pk_bf16_f32 v78, v78, v79")
    a("s_mul_i32 s6, s96, 896")
    a("s_mul_i32 s7, s97, 28")
    a("s_add_u32 s6, s6, s7")
    a("s_lshl_b32 s7, s3, 2")
    a("s_add_u32 s6, s6, s7")
    a("v_mov_b32 v5, 0")
    a("s_mov_b64 exec, 1")
    a("buffer_store_dword v78, v5, s[76:79], s6 offen")
    if STAMP:
        a("s_cmp_lg_u32 s3, 0")
        a("s_cbranch_scc1 L_done")
        stamp(a, 13)
    a.label("L_done")
    a("s_endpgm")
    a.raw(".section .rodata,\"a\"")
    a.raw(".p2align 6")
    a.raw(f".amdhsa_kernel {n}")
    a.raw("  .amdhsa_next_free_vgpr 256")
    a.raw("  .amdhsa_next_free_sgpr 102")
    a.raw("  .amdhsa_accum_offset 256")
    a.raw("  .amdhsa_group_segment_fixed_size 0")
    a.raw("  .amdhsa_kernarg_size 104")
    a.raw("  .amdhsa_user_sgpr_count 2")
    a.raw("  .amdhsa_user_sgpr_kernarg_segment_ptr 1")
    a.raw("  .amdhsa_system_sgpr_workgroup_id_x 1")
    a.raw(".end_amdhsa_kernel")

DOC = """
Single persistent launch, 256 workgroups x 8 waves (one per CU, 160 KB LDS).  Generated by gen10.py.
 waves 0-3  stream K/V (LDS-DMA ring, 32 KB chunks, nt) and run online-softmax flash-decode with MFMA;
            4 workgroups share one (batch, kv-head) pair: static chunks first, then chunks handed out
            through a per-pair atomic counter (load balance across XCDs).
 waves 4-7  LayerNorm(x), 16 columns of q = xn @ wq per workgroup (published as tagged granules),
            hand-off bookkeeping, wo slice prefetch.
 tail       partials -> (sentinel-validated hand-off) combine + out-projection slice -> hand-off ->
            residual, two LayerNorms, token-mixing MLP (exact tanh-GELU via sigmoid form), output.
"""

def main():
    a = Asm()
    hdr = open("cdna_kernels/%s.s.ref" % NAME).read().split("\n")
    for l in hdr:
        if l.startswith("; @launch"):
            break
        a.raw(l)
    a.raw(f"; @launch grid=(256,1,1) block=(512,1,1) lds={LDS_BYTES}")
    a.raw('.amdgcn_target "amdgcn-amd-amdhsa--gfx950"')
    for l in DOC.strip().split("\n"):
        a.raw("; " + l)
    gen(a)
    out = sys.argv[1] if len(sys.argv) > 1 else OUT
    open(out, "w").write(a.text())

if __name__ == "__main__":
    main()
```
